```python
import torch

def _softmax(x, axis=-1):
    return torch.softmax(x, dim=axis)
def _gelu(x):
    return torch.nn.functional.gelu(x, approximate="tanh")
def _silu(x):
    return torch.nn.functional.silu(x)
def _sigmoid(x):
    return torch.sigmoid(x)
def _layernorm(x, axis=-1, eps=1e-5):
    m = x.mean(dim=axis, keepdim=True)
    v = x.var(dim=axis, keepdim=True, unbiased=False)
    return (x - m) / torch.sqrt(v + eps)
def _scatter_add(tgt, idx, src, axis=0):
    return tgt.clone().index_add_(axis, idx, src)
def _segment_sum(src, seg, n):
    out = torch.zeros((n,) + src.shape[1:], dtype=src.dtype)
    return out.index_add_(0, seg, src)
def _pad(x, pw):
    flat = tuple(v for pair in reversed(pw) for v in pair)
    return torch.nn.functional.pad(x, flat)

kernel_name = 'gated_mix__sliding_block__linear_attn_block__prompt'

def setup_inputs():

    _w = (lambda a: (lambda t: t.to(torch.bfloat16) if t.is_floating_point() else t)(torch.as_tensor(a)))
    def _A_setup():
        B, S, D = 1, 2048, 640
        return {
            "x": _w((lambda *s: torch.randn(*s, dtype=torch.bfloat16) * 0.05)(B, S, D)),
            "wqkv": _w((lambda *s: torch.randn(*s, dtype=torch.bfloat16) * 0.8)(D, 3 * D)),
            "wo": _w((lambda *s: torch.randn(*s, dtype=torch.bfloat16) * 0.05)(D, D)),
        }
    _A_in = _A_setup()

    def _B_setup():
        B, S, D = 1, 2048, 640
        return {
            "x": _w((lambda *s: torch.randn(*s, dtype=torch.bfloat16) * 0.05)(B, S, D)),
            "wqkv": _w((lambda *s: torch.randn(*s, dtype=torch.bfloat16) * 1.6)(D, 3 * D)),
            "wo": _w((lambda *s: torch.randn(*s, dtype=torch.bfloat16) * 0.4)(D, D)),
        }
    _B_in = _B_setup()

    return {
        "A_x": _A_in["x"],
        "A_wqkv": _A_in["wqkv"],
        "A_wo": _A_in["wo"],
        "B_x": _B_in["x"],
        "B_wqkv": _B_in["wqkv"],
        "B_wo": _B_in["wo"],
        "gate_w": _w((lambda *s: torch.randn(*s, dtype=torch.bfloat16) * 0.05)(640) * 16.0),
    }

def reference(A_x, A_wqkv, A_wo, B_x, B_wqkv, B_wo, gate_w):
    def _A_ref(x, wqkv, wo):
        B, S, D = x.shape
        H = 32; Dh = D // H; W = 256
        qkv = (lambda x, *d: x.permute(*d))((x @ wqkv).reshape(B, S, 3, H, Dh), 2, 0, 3, 1, 4)
        q, k, v = qkv[0], qkv[1], qkv[2]
        scores = torch.einsum("bhqd,bhkd->bhqk", q, k) * (Dh ** -0.5)
        idx = torch.arange(S)
        mask = (idx[:, None] - idx[None, :] >= 0) & (idx[:, None] - idx[None, :] < W)
        scores = torch.where(mask[None, None], scores, -1e9)
        p = _softmax(scores, axis=-1)
        o = torch.einsum("bhqk,bhkd->bhqd", p, v)
        return (lambda x, *d: x.permute(*d))(o, 0, 2, 1, 3).reshape(B, S, D) @ wo

    def _B_ref(x, wqkv, wo):
        B, S, D = x.shape
        H = 32; Dh = D // H
        qkv = (lambda x, *d: x.permute(*d))((x @ wqkv).reshape(B, S, 3, H, Dh), 2, 0, 3, 1, 4)
        q, k, v = qkv[0], qkv[1], qkv[2]
        phi = lambda t: torch.where(t > 0, t + 1, torch.exp(t)) + 1e-6
        pq, pk = phi(q), phi(k)
        kv = torch.einsum("bhsd,bhse->bhde", pk, v)
        z = torch.einsum("bhsd->bhd", pk)
        num = torch.einsum("bhqd,bhde->bhqe", pq, kv)
        den = torch.einsum("bhqd,bhd->bhq", pq, z)[..., None] + 1e-6
        o = num / den
        return (lambda x, *d: x.permute(*d))(o, 0, 2, 1, 3).reshape(B, S, D) @ wo

    x = A_x
    g = _sigmoid((x * gate_w).sum(-1, keepdims=True))
    a = _A_ref(x, A_wqkv, A_wo)
    b = _B_ref(x, B_wqkv, B_wo)
    return g * a + (1 - g) * b
```

```python
import re

def v(i, n=1):
    return f"v{i}" if n == 1 else f"v[{i}:{i+n-1}]"
def a(i, n=1):
    return f"a{i}" if n == 1 else f"a[{i}:{i+n-1}]"
def s(i, n=1):
    return f"s{i}" if n == 1 else f"s[{i}:{i+n-1}]"

_REG = re.compile(r"^(-|abs\()?([vas])(?:(\d+)|\[(\d+):(\d+)\])\)?$")
def regs_of(op):
    op = op.strip()
    if op == 'vcc': return {('s', 106), ('s', 107)}
    if op == 'vcc_lo': return {('s', 106)}
    if op == 'vcc_hi': return {('s', 107)}
    if op == 'exec': return {('s', 126), ('s', 127)}
    if op == 'exec_lo': return {('s', 126)}
    if op == 'exec_hi': return {('s', 127)}
    if op == 'm0': return {('s', 124)}
    m = _REG.match(op)
    if not m: return set()
    k = m.group(2)
    if m.group(3) is not None:
        return {(k, int(m.group(3)))}
    return {(k, i) for i in range(int(m.group(4)), int(m.group(5)) + 1)}

TRANS = ('v_exp_f32', 'v_log_f32', 'v_rcp_f32', 'v_rsq_f32', 'v_sqrt_f32', 'v_sin_f32', 'v_cos_f32')

class Ins:
    def __init__(self, text, cond=0):
        self.text = text
        self.cond = cond
        t = text.split(';')[0].strip()
        self.label = None
        self.op = None
        self.w = set(); self.r = set()
        self.kind = 'other'
        self.srcC = set(); self.srcAB = set()
        self.passes = 0
        self.target = None
        self.nops = 1
        if t.endswith(':'):
            self.label = t[:-1]; self.kind = 'label'; self.nops = 0
            return
        if t.startswith('.') or not t:
            self.kind = 'dir'; self.nops = 0
            return
        parts = t.split(None, 1)
        op = parts[0]; self.op = op
        rest = parts[1] if len(parts) > 1 else ''
        ops = [o.strip() for o in re.split(r",(?![^\[]*\])", rest)] if rest else []
        clean = []
        for o in ops:
            clean.append(o.split()[0] if o else o)
        self.ops = clean
        self.mods = rest
        R = regs_of
        if op.startswith('v_mfma'):
            self.kind = 'mfma'
            self.w = R(clean[0]); self.srcAB = R(clean[1]) | R(clean[2]); self.srcC = R(clean[3])
            self.r = self.srcAB | self.srcC
            self.passes = 8 if '32x32' in op else 4
        elif op.startswith('v_cmp'):
            self.kind = 'valu'
            self.w = R(clean[0]); self.r = set().union(*[R(o) for o in clean[1:]])
            if op.startswith('v_cmpx'): self.w |= R('exec')
        elif op.startswith('v_permlane'):
            self.kind = 'valu'; self.perm = True
            self.w = R(clean[0]) | R(clean[1]); self.r = set(self.w)
        elif op.startswith('v_add_co') or op.startswith('v_sub_co') or op.startswith('v_addc_co'):
            self.kind = 'valu'
            self.w = R(clean[0]) | R(clean[1]); self.r = set().union(*[R(o) for o in clean[2:]])
        elif op.startswith('v_'):
            self.kind = 'valu'
            self.w = R(clean[0]); self.r = set().union(*[R(o) for o in clean[1:]]) if len(clean) > 1 else set()
            if op.startswith('v_fmac') or op.startswith('v_dot2c') or op.startswith('v_writelane'):
                self.r |= self.w
            if op.startswith('v_cndmask') and len(clean) == 3: self.r |= R('vcc')
            if 'dpp' in op or 'row_' in rest or 'quad_perm' in rest:
                self.dpp = True
                self.r |= self.w
        elif op.startswith('ds_read') or op.startswith('ds_bpermute') or op.startswith('ds_swizzle'):
            self.kind = 'dsr'
            self.w = R(clean[0]); self.r = set().union(*[R(o) for o in clean[1:]])
        elif op.startswith('ds_'):
            self.kind = 'dsw'
            self.r = set().union(*[R(o) for o in clean])
        elif op.startswith('buffer_load') or op.startswith('global_load'):
            if re.search(r"\blds\b", rest) or '_lds_' in op:
                self.kind = 'dma'
                self.r = set().union(*[R(o) for o in clean]) | R('m0')
            else:
                self.kind = 'vld'
                self.w = R(clean[0]); self.r = set().union(*[R(o) for o in clean[1:]])

        elif op.startswith('buffer_store') or op.startswith('global_store') or op.startswith('buffer_atomic') or op.startswith('global_atomic'):
            self.kind = 'vst'
            self.r = set().union(*[R(o) for o in clean])
            self.data = R(clean[0]) if op.startswith('buffer') else R(clean[1])
            self.wide = ('x3' in op or 'x4' in op)
        elif op.startswith('buffer_wbl2') or op.startswith('buffer_inv'):
            self.kind = 'vmisc'
        elif op == 's_nop':
            self.kind = 'nop'; self.nops = int(clean[0], 0) + 1
        elif op.startswith('s_cbranch') or op == 's_branch':
            self.kind = 'branch'; self.target = clean[0]
        elif op == 's_waitcnt':
            self.kind = 'wait'
        elif op.startswith('s_load') or op.startswith('s_buffer_load') or op.startswith('s_memtime') or op.startswith('s_memrealtime'):
            self.kind = 'smem'
            self.w = R(clean[0]); self.r = set().union(*[R(o) for o in clean[1:]]) if len(clean) > 1 else set()
        elif op.startswith('s_cmp') or op in ('s_barrier', 's_endpgm', 's_setprio', 's_sleep'):
            self.kind = 'salu'
            self.r = set().union(*[R(o) for o in clean]) if clean else set()
        elif op.startswith('s_'):
            self.kind = 'salu'
            self.w = R(clean[0]) if clean else set()
            self.r = set().union(*[R(o) for o in clean[1:]]) if len(clean) > 1 else set()
            if 'saveexec' in op:
                self.w |= R('exec'); self.r |= R('exec')
        else:
            raise ValueError("unknown instruction: " + text)

def need_states(p, c):
    n = 0
    isv = lambda st: {x for x in st if x[0] in 'va'}
    iss = lambda st: {x for x in st if x[0] == 's'}
    vmem = c.kind in ('vld', 'vst', 'dma')
    if p.kind == 'valu':
        pw_v = isv(p.w); pw_s = iss(p.w)
        if c.kind == 'mfma' and (pw_v & c.r): n = max(n, 2)
        if c.kind == 'mfma' and (pw_s & regs_of('exec')): n = max(n, 4)
        if c.kind == 'valu':
            if getattr(c, 'perm', False) and (pw_v & c.r): n = max(n, 2)
            if getattr(c, 'dpp', False) and (pw_v & c.r): n = max(n, 2)
            if getattr(c, 'dpp', False) and (pw_s & regs_of('exec')): n = max(n, 5)
            if c.op.startswith('v_readfirstlane') or c.op.startswith('v_readlane'):
                if pw_v & c.r: n = max(n, 1)
                if pw_s & c.r: n = max(n, 4)
                if pw_s & regs_of('exec'): n = max(n, 4)
            if pw_s & iss(c.r): n = max(n, 2)
            if p.op.split('_e')[0] in TRANS and c.op.split('_e')[0] not in TRANS and (pw_v & c.r): n = max(n, 1)
        if vmem and (pw_s & iss(c.r)): n = max(n, 5)
        if c.kind == 'salu' and (pw_s & c.r): n = max(n, 1)
    if p.kind == 'mfma':
        big = 12 if p.passes == 8 else 8
        if c.kind == 'mfma':
            if p.w & c.srcAB: n = max(n, big)
            if p.w & c.srcC:
                if p.w == c.srcC and p.passes == c.passes: pass
                else: n = max(n, 10 if p.passes == 8 else 6)
            if (p.w & c.w) and not (p.w == c.srcC and p.passes == c.passes): n = max(n, 10 if p.passes == 8 else 6)
        elif c.kind in ('valu', 'dsr', 'dsw', 'vld', 'vst', 'dma'):
            if p.w & (c.r | c.w): n = max(n, big)
            if c.kind == 'valu' and (p.srcC & c.w): n = max(n, 7 if p.passes == 8 else 3)
            if c.kind in ('dsr', 'vld') and (p.srcC & c.w): n = max(n, 7 if p.passes == 8 else 3)
    if p.kind == 'vst' and getattr(p, 'wide', False):
        if c.kind in ('valu',) and (p.data & c.w): n = max(n, 2)
        elif c.kind in ('dsr', 'vld', 'mfma') and (p.data & c.w): n = max(n, 1)
    if p.kind == 'salu' and (p.w & regs_of('m0')) and c.kind == 'dma': n = max(n, 1)
    return n

class Prog:
    def __init__(self):
        self.ins = []
        self.cond = 0
        self._condid = 0
        self.lg = []
        self.vm = []
    def raw(self, text):
        self.ins.append(Ins(text, self.cond))
    def label(self, name):
        self.raw(name + ':')
    def _count_after(self, lst, idx):
        n = 0
        for (_, c) in lst[idx + 1:]:
            if c == 0 or c == self.cond: n += 1
        return n
    def _autowait(self, ins):
        touched = ins.r | ins.w
        lgn = None; vmn = None
        for idx in range(len(self.lg) - 1, -1, -1):
            if self.lg[idx][0] & touched:
                lgn = self._count_after(self.lg, idx); self.lg = self.lg[idx + 1:]; break
        for idx in range(len(self.vm) - 1, -1, -1):
            if self.vm[idx][0] & touched:
                vmn = self._count_after(self.vm, idx); self.vm = self.vm[idx + 1:]; break
        if lgn is not None or vmn is not None:
            t = 's_waitcnt'
            if vmn is not None: t += f" vmcnt({min(vmn, 63)})"
            if lgn is not None: t += f" lgkmcnt({min(lgn, 15)})"
            self.ins.append(Ins(t, self.cond))
    def __call__(self, text):
        ins = Ins(text, self.cond)
        if ins.kind not in ('label', 'dir', 'wait', 'nop', 'branch'):
            self._autowait(ins)
        if ins.kind == 'wait':
            m = re.search(r"vmcnt\((\d+)\)", text)
            if m:
                n = int(m.group(1)); self.vm = self.vm[len(self.vm) - n:] if n else []
            m = re.search(r"lgkmcnt\((\d+)\)", text)
            if m:
                n = int(m.group(1)); self.lg = self.lg[len(self.lg) - n:] if n else []
        self.ins.append(ins)
        if ins.kind == 'dsr': self.lg.append((set(ins.w), self.cond))
        elif ins.kind == 'dsw': self.lg.append((set(), self.cond))
        elif ins.kind == 'vld': self.vm.append((set(ins.w), self.cond))
        elif ins.kind in ('vst', 'dma', 'vmisc'): self.vm.append((set(), self.cond))
        return ins
    def begin_cond(self):
        self._condid += 1; self.cond = self._condid
    def end_cond(self):
        self.cond = 0
    def forget(self):
        self.lg = []; self.vm = []
    def pad(self):
        ins = self.ins
        for rnd in range(6):
            changed = False
            i = 0
            def maps():
                labels = {x.label: k for k, x in enumerate(ins) if x.kind == 'label'}
                preds = {}
                for k, x in enumerate(ins):
                    if x.kind == 'branch': preds.setdefault(labels[x.target], []).append(k)
                return preds
            preds = maps()
            while i < len(ins):
                c = ins[i]
                if c.kind in ('label', 'dir', 'nop', 'wait', 'branch'):
                    i += 1; continue
                need = 0
                stack = [(i - 1, 0)]
                seen = set()
                while stack:
                    j, dist = stack.pop()
                    while j >= 0 and dist < 20:
                        if (j, dist) in seen: break
                        seen.add((j, dist))
                        p = ins[j]
                        if p.kind == 'label':
                            for b in preds.get(j, []): stack.append((b, dist))
                            k = j - 1
                            while k >= 0 and ins[k].kind in ('dir',): k -= 1
                            if k >= 0 and (ins[k].op == 's_branch' or ins[k].op == 's_endpgm'): break
                            j -= 1; continue
                        if p.kind == 'dir': j -= 1; continue
                        ns = need_states(p, c)
                        if ns > dist: need = max(need, ns - dist)
                        dist += p.nops
                        j -= 1
                if need > 0:
                    k = need
                    new = []
                    while k > 0:
                        t = min(k, 16); new.append(Ins(f"s_nop {t-1}", c.cond)); k -= t
                    ins[i:i] = new
                    preds = maps()
                    i += len(new)
                    changed = True
                i += 1
            if not changed: return
        raise RuntimeError("hazard padding did not converge")
    def text(self):
        out = []
        for x in self.ins:
            if x.kind in ('label', 'dir'): out.append(x.text)
            else: out.append('    ' + x.text)
        return '\n'.join(out) + '\n'
```

```python
from asmlib import *
from gen import *

def gen_k2():
    p = Prog()
    header(p, "k2_kernel")
    SWS, SX, SWO, SGW = 16, 20, 24, 28
    sH, sR, sWV = 32, 33, 34
    LDS_V = 24576; LDS_RED = 49216
    p("s_cmp_ge_u32 s2, 256")
    p("s_cbranch_scc1 K2_end")
    p("s_load_dwordx2 s[4:5], s[0:1], 0")
    p("s_load_dwordx2 s[6:7], s[0:1], 16")
    p("s_load_dwordx4 s[8:11], s[0:1], 40")
    p("s_load_dwordx2 s[12:13], s[0:1], 72")
    p("v_lshrrev_b32 v1, 6, v0")
    p("v_and_b32 v2, 63, v0")
    p(f"v_readfirstlane_b32 {s(sWV)}, v1")
    p("s_and_b32 s36, s2, 7")
    p("s_lshr_b32 s37, s2, 3")
    p("s_and_b32 s38, s36, 3")
    p("s_lshl_b32 s38, s38, 3")
    p("s_and_b32 s39, s37, 7")
    p(f"s_add_u32 {s(sH)}, s38, s39")
    p("s_lshr_b32 s38, s36, 2")
    p("s_lshl_b32 s38, s38, 2")
    p("s_lshr_b32 s39, s37, 3")
    p(f"s_add_u32 {s(sR)}, s38, s39")
    vL16, vQA, vHH = 3, 4, 5
    p(f"v_lshlrev_b32 {v(vL16)}, 4, v2")
    p(f"v_and_b32 {v(vQA)}, 31, v2")
    p(f"v_lshrrev_b32 {v(vHH)}, 5, v2")
    sRow = 35
    p(f"s_lshl_b32 {s(sRow)}, {s(sH)}, 11")
    p(f"s_lshl_b32 s36, {s(sR)}, 8")
    p(f"s_add_u32 {s(sRow)}, {s(sRow)}, s36")
    p(f"s_mul_i32 s40, {s(sWV)}, 3072")
    p(f"v_add_u32 v6, s40, {v(vL16)}")
    p(f"s_mul_i32 s41, {s(sRow)}, 48")
    p(f"s_add_u32 s42, s41, {WS_KA - 12288}")
    p(f"s_add_u32 s43, s41, {WS_VA - 12288}")
    p("s_waitcnt lgkmcnt(0)")
    srd(p, SWS, 12, WS_SIZE)
    p(f"s_lshr_b32 s36, {s(sWV)}, 2")
    p(f"s_or_b32 s36, s36, {s(sR)}")
    p("s_cmp_eq_u32 s36, 0")
    p("s_cbranch_scc1 K2_fill")
    p("s_mov_b32 m0, s40")
    for i in range(3): p.raw(f"    buffer_load_dwordx4 v6, {s(SWS,4)}, s42 offen offset:{i*1024} lds") if False else p(f"buffer_load_dwordx4 v6, {s(SWS,4)}, s42 offen offset:{i*1024} lds")
    p(f"s_add_u32 m0, s40, {LDS_V}")
    p("s_nop 0")
    for i in range(3): p(f"buffer_load_dwordx4 v6, {s(SWS,4)}, s43 offen offset:{i*1024} lds")
    p("s_branch K2_filled")
    p.label("K2_fill")
    p("v_mul_u32_u24 v7, 48, v0")
    for k in range(4): p(f"v_mov_b32 {v(8+k)}, 0")
    p("v_mov_b32 v12, 0"); p("v_mov_b32 v13, 0"); p("v_mov_b32 v14, 0xf149"); p("v_mov_b32 v15, 0")
    p("ds_write_b128 v7, v[8:11]")
    p("ds_write_b128 v7, v[8:11] offset:16")
    p("ds_write_b128 v7, v[12:15] offset:32")
    for k in range(3): p(f"ds_write_b128 v7, v[8:11] offset:{LDS_V+16*k}")
    p.label("K2_filled")
    p.forget()
    Q0, Q1 = 16, 20
    PQR = 24
    MU, ML = 32, 48
    SB = [64, 80]
    KF = [96, 104]
    VF = [112, 120]
    PB = [128, 136]
    O = 144
    CM = 160
    PAR = 176
    WOR = 200
    WOH = 216
    GX, GWt = 204, 210
    vQo, vPQo, vK0, vK1, vV, vM = 6, 7, 8, 9, 10, 11
    p(f"s_lshl_b32 s36, {s(sWV)}, 5")
    p(f"v_add_u32 v12, s36, {v(vQA)}")
    p("v_mul_u32_u24 v12, 48, v12")
    p(f"v_lshl_add_u32 {v(vQo)}, {v(vHH)}, 4, v12")
    p(f"v_lshl_add_u32 {v(vPQo)}, {v(vHH)}, 3, v12")
    for k in range(4): p(f"v_mov_b32 {v(Q1+k)}, 0")
    p(f"buffer_load_dwordx4 {v(Q0,4)}, {v(vQo)}, {s(SWS,4)}, s41 offen")
    p("s_mov_b32 exec_hi, 0")
    p(f"buffer_load_dwordx4 {v(Q1,4)}, {v(vQo)}, {s(SWS,4)}, s41 offen offset:32")
    p("s_mov_b32 exec_hi, -1")
    p(f"s_add_u32 s44, s41, {WS_QB}")
    for k in range(3): p(f"buffer_load_dwordx2 {v(PQR+2*k,2)}, {v(vPQo)}, {s(SWS,4)}, s44 offen offset:{16*k}")
    p(f"s_lshl_b32 s36, {s(sH)}, 4")
    p(f"s_lshl_b32 s37, {s(sWV)}, 1")
    p("s_add_u32 s36, s36, s37")
    p("s_mul_i32 s36, s36, 3072")
    p(f"s_add_u32 s36, s36, {WS_KVP}")
    p("s_add_u32 s37, s36, 3072")
    for k in range(3): p(f"buffer_load_dwordx4 {v(PAR+4*k,4)}, {v(vL16)}, {s(SWS,4)}, s36 offen offset:{1024*k}")
    for k in range(3): p(f"buffer_load_dwordx4 {v(PAR+12+4*k,4)}, {v(vL16)}, {s(SWS,4)}, s37 offen offset:{1024*k}")
    srd(p, SX, 4, 2048*1280)
    srd(p, SGW, 10, 1280)
    sGR = 45
    p(f"s_lshl_b32 {s(sGR)}, s2, 3")
    p(f"s_add_u32 {s(sGR)}, {s(sGR)}, {s(sWV)}")
    p(f"s_mul_i32 s36, {s(sGR)}, 1280")
    p("v_lshlrev_b32 v13, 2, v2")
    p(f"buffer_load_dwordx4 {v(GX,4)}, {v(vL16)}, {s(SX,4)}, s36 offen")
    p(f"buffer_load_dword {v(GX+4)}, v13, {s(SX,4)}, s36 offen offset:1024")
    p(f"buffer_load_dwordx4 {v(GWt,4)}, {v(vL16)}, {s(SGW,4)}, 0 offen")
    p(f"buffer_load_dword {v(GWt+4)}, v13, {s(SGW,4)}, 0 offen offset:1024")
    p(f"s_cmp_ge_u32 {s(sGR)}, 800")
    p("s_cselect_b32 s6, s8, s6")
    p("s_cselect_b32 s7, s9, s7")
    p("s_cselect_b32 s46, 800, 0")
    p("s_cselect_b32 s47, 20, 0")
    srd(p, SWO, 6, 640*1280)
    p(f"s_sub_u32 s46, {s(sGR)}, s46")
    p("s_mul_i32 s48, s46, 1639")
    p("s_lshr_b32 s48, s48, 16")
    p("s_mul_i32 s49, s48, 40")
    p("s_sub_u32 s49, s46, s49")
    p("v_lshrrev_b32 v12, 4, v2")
    p("s_lshl_b32 s50, s48, 2")
    p("v_add_u32 v12, s50, v12")
    p("v_mul_u32_u24 v13, 205, v12")
    p("v_lshrrev_b32 v13, 10, v13")
    p("v_mul_u32_u24 v14, 5, v13")
    p("v_sub_u32 v14, v12, v14")
    p("v_lshrrev_b32 v15, 1, v14")
    p("v_mul_u32_u24 v15, 20, v15")
    p("v_and_b32 v12, 1, v14")
    p("v_lshl_add_u32 v15, v12, 2, v15")
    p("v_cmp_gt_u32 vcc, 4, v14")
    p("v_cndmask_b32 v15, 16, v15, vcc")
    p("v_mov_b32 v12, 20")
    p("v_cndmask_b32 v12, v12, 8, vcc") if False else p("v_cndmask_b32_e64 v12, v12, 8, vcc")
    p("v_mul_u32_u24 v13, 40, v13")
    p("v_add_u32 v15, v13, v15")
    p("s_movk_i32 s50, 1280")
    p("v_and_b32 v13, 15, v2")
    p("v_lshlrev_b32 v13, 1, v13")
    p("v_mad_u32_u24 v14, v15, s50, v13")
    p("v_mad_u32_u24 v15, v12, s50, v14")
    p("s_lshl_b32 s51, s49, 5")
    p(f"s_cmp_ge_u32 {s(sGR)}, 1600")
    p("s_cselect_b32 s51, 0x7fff0000, s51")
    for k in range(2):
        for q in range(2):
            p(f"buffer_load_ushort {v(WOR+2*k+q)}, {v(14+k)}, {s(SWO,4)}, s51 offen offset:{2560*q}")
            p(f"buffer_load_ushort {v(WOH+2*k+q)}, {v(14+k)}, {s(SWO,4)}, s51 offen offset:{2560*q+1280}")
    sWFo = 52
    p("s_mul_i32 s49, s49, 40")
    p("s_add_u32 s49, s49, s47")
    p("s_add_u32 s49, s49, s48")
    p("s_lshl_b32 s49, s49, 10")
    p(f"s_add_u32 s49, s49, {WS_WF}")
    p(f"s_cselect_b32 {s(sWFo)}, 0x7fff0000, s49") if False else None
    p(f"s_cmp_ge_u32 {s(sGR)}, 1600")
    p(f"s_cselect_b32 {s(sWFo)}, 0x7fff0000, s49")
    p(f"s_mul_i32 s36, {s(sWV)}, 1536")
    p(f"v_mul_u32_u24 v12, 48, {v(vQA)}")
    p("v_add_u32 v12, s36, v12")
    p(f"v_lshl_add_u32 {v(vK0)}, {v(vHH)}, 4, v12")
    p(f"v_add_u32 {v(vK1)}, 32, v12")
    p("v_bfe_u32 v12, v2, 2, 2")
    p(f"v_lshl_add_u32 v12, {v(vHH)}, 2, v12")
    p("v_mul_u32_u24 v12, 48, v12")
    p("v_bfe_u32 v13, v2, 4, 1")
    p("v_lshl_add_u32 v12, v13, 5, v12")
    p("v_and_b32 v13, 3, v2")
    p("v_lshl_add_u32 v12, v13, 3, v12")
    p(f"s_add_u32 s36, s36, {LDS_V}")
    p(f"v_add_u32 {v(vV)}, s36, v12")
    p(f"v_lshlrev_b32 v12, 2, {v(vHH)}")
    p(f"v_sub_u32 v12, {v(vQA)}, v12")
    p(f"v_mov_b32 v13, {f32(NEG)}")
    for r0 in range(0, 16, 4):
        for r in range(r0, r0+4):
            kb = 8*(r >> 2) + (r & 3)
            p(f"v_cmp_le_i32 {s(56+2*(r&3),2)}, {kb}, v12")
        for r in range(r0, r0+4):
            p(f"v_cndmask_b32 {v(ML+r)}, v13, 0, {s(56+2*(r&3),2)}")
            p(f"v_cndmask_b32 {v(MU+r)}, 0, v13, {s(56+2*(r&3),2)}")
    p(f"v_mov_b32 {v(vM)}, {f32(-3e38)}")
    p("s_waitcnt vmcnt(21) lgkmcnt(0)")
    p("s_barrier")
    def rdK(t):
        b = KF[t & 1]
        p(f"ds_read_b128 {v(b,4)}, {v(vK0)} offset:{t*1536}")
        p(f"ds_read_b128 {v(b+4,4)}, {v(vK1)} offset:{t*1536}")
    def rdV(t):
        b = VF[t & 1]
        for c in range(2):
            for hsel in range(2):
                p(f"ds_read_b64_tr_b16 {v(b+4*c+2*hsel,2)}, {v(vV)} offset:{t*1536 + c*768 + hsel*384}")
    def qk(t, half, C):
        S = SB[t & 1]; b = KF[t & 1]
        if half == 0: p(f"v_mfma_f32_32x32x16_bf16 {v(S,16)}, {v(b,4)}, {v(Q0,4)}, {C}")
        else: p(f"v_mfma_f32_32x32x16_bf16 {v(S,16)}, {v(b+4,4)}, {v(Q1,4)}, {v(S,16)}")
    def C1(t): return v(MU,16) if t == 0 else (v(ML,16) if t == 8 else '0')
    rdK(0); rdK(1)
    qk(0,0,C1(0)); qk(0,1,None)
    for t in range(9):
        if t+1 <= 8:
            qk(t+1,0,C1(t+1)); qk(t+1,1,None)
        if t+2 <= 8: rdK(t+2)
        S = SB[t & 1]
        for k in range(8): p(f"v_max3_f32 {v(vM)}, {v(vM)}, {v(S+2*k)}, {v(S+2*k+1)}")
    rdK(0); rdK(1)
    p(f"v_mov_b32 v12, {v(vM)}")
    p(f"v_permlane32_swap_b32 {v(vM)}, v12")
    p(f"v_max_f32 {v(vM)}, {v(vM)}, v12")
    for k in range(16): p(f"v_sub_f32 {v(MU+k)}, {v(MU+k)}, {v(vM)}")
    for k in range(16): p(f"v_sub_f32 {v(CM+k)}, 0, {v(vM)}")
    for k in range(16): p(f"v_sub_f32 {v(ML+k)}, {v(ML+k)}, {v(vM)}")
    for k in range(12): p(f"v_add_f32 {v(PAR+k)}, {v(PAR+k)}, {v(PAR+12+k)}")
    p(f"s_add_u32 s36, s40, {LDS_RED}")
    p(f"v_add_u32 v12, s36, {v(vL16)}")
    for k in range(3): p(f"ds_write_b128 v12, {v(PAR+4*k,4)} offset:{1024*k}")
    def C2(t): return v(MU,16) if t == 0 else (v(ML,16) if t == 8 else v(CM,16))
    def pv(t, c):
        p(f"v_mfma_f32_32x32x16_bf16 {v(O,16)}, {v(VF[t&1]+4*c,4)}, {v(PB[t&1]+4*c,4)}, {'0' if (t==0 and c==0) else v(O,16)}")
    qk(0,0,C2(0)); qk(0,1,None)
    for t in range(9):
        S = SB[t & 1]
        rdV(t)
        for k in range(16):
            p(f"v_exp_f32 {v(S+k)}, {v(S+k)}")
            if k == 0 and t+1 <= 8: qk(t+1,0,C2(t+1))
            if k == 4 and t+1 <= 8: qk(t+1,1,None)
            if k == 5 and t+2 <= 8: rdK(t+2)
            if k == 8 and t >= 1: pv(t-1,0)
            if k == 12 and t >= 1: pv(t-1,1)
        for k in range(8): p(f"v_cvt_pk_bf16_f32 {v(PB[t&1]+k)}, {v(S+2*k)}, {v(S+2*k+1)}")
    pv(8,0); pv(8,1)
    p("s_waitcnt lgkmcnt(0)")
    p("s_barrier")
    p(f"v_add_u32 v12, {LDS_RED}, {v(vL16)}")
    RB = 64
    for w2 in range(4):
        for k in range(3): p(f"ds_read_b128 {v(RB+12*w2+4*k,4)}, v12 offset:{w2*3072+1024*k}")
    vOo, vOt = 8, 9
    p(f"s_lshl_b32 s36, {s(sR)}, 4")
    p(f"s_lshl_b32 s37, {s(sWV)}, 1")
    p("s_add_u32 s36, s36, s37")
    p("s_mul_i32 s36, s36, 40960")
    p(f"s_lshr_b32 s37, {s(sH)}, 1")
    p("s_mul_i32 s37, s37, 5")
    p(f"s_and_b32 s38, {s(sH)}, 1")
    p("s_lshl_b32 s39, s38, 1")
    p("s_add_u32 s39, s39, s37")
    p("s_lshl_b32 s39, s39, 8")
    p("s_add_u32 s39, s39, s36")
    p(f"s_add_u32 s39, s39, {WS_OF}")
    p("s_add_u32 s37, s37, 4")
    p("s_lshl_b32 s37, s37, 8")
    p("s_lshl_b32 s38, s38, 3")
    p("s_add_u32 s37, s37, s38")
    p("s_add_u32 s37, s37, s36")
    p(f"s_add_u32 s37, s37, {WS_OF}")
    p("v_bfe_u32 v13, v2, 4, 1")
    p("s_mov_b32 s38, 40960")
    p("v_and_b32 v14, 15, v2")
    p("v_lshlrev_b32 v14, 4, v14")
    p(f"v_mad_u32_u24 {v(vOt)}, v13, s38, v14")
    p(f"v_lshl_add_u32 {v(vOo)}, {v(vHH)}, 8, {v(vOt)}")
    def oepi(A, s_main, s_tail, eps):
        p(f"v_mov_b32 v13, {v(A+8)}")
        p(f"v_mov_b32 v14, {v(A+8)}")
        p("v_permlane32_swap_b32 v13, v14")
        if eps: p(f"v_add_f32 v14, {f32(EPS)}, v14")
        p("v_rcp_f32 v14, v14")
        for k in range(12): p(f"v_mul_f32 {v(A+k)}, v14, {v(A+k)}")
        E = 128
        for k in range(6): p(f"v_cvt_pk_bf16_f32 {v(E+k)}, {v(A+2*k)}, {v(A+2*k+1)}")
        p(f"buffer_store_dwordx4 {v(E,4)}, {v(vOo)}, {s(SWS,4)}, {s(s_main)} offen")
        p("s_mov_b32 exec_hi, 0")
        p(f"buffer_store_dwordx2 {v(E+4,2)}, {v(vOt)}, {s(SWS,4)}, {s(s_tail)} offen")
        p("s_mov_b32 exec_hi, -1")
    oepi(O, 39, 37, False)
    for w2 in range(1, 4):
        for k in range(12): p(f"v_add_f32 {v(RB+k)}, {v(RB+k)}, {v(RB+12*w2+k)}")
    for w2 in range(4, 8):
        for k in range(3): p(f"ds_read_b128 {v(RB+12+12*((w2-4)%3)+4*k,4)}, v12 offset:{w2*3072+1024*k}") if w2 < 7 else None
    T = 176; U = 188
    p(f"s_mov_b32 s53, {f32(LOG2E)}")
    p(f"s_mov_b32 s54, {f32(EPS)}")
    for k in range(6):
        p(f"v_lshlrev_b32 {v(T+2*k)}, 16, {v(PQR+k)}")
        p(f"v_and_b32 {v(T+2*k+1)}, 0xffff0000, {v(PQR+k)}")
    for k in range(12): p(f"v_mul_f32 {v(U+k)}, s53, {v(T+k)}")
    for k in range(12): p(f"v_min_f32 {v(U+k)}, 0, {v(U+k)}")
    for k in range(12): p(f"v_exp_f32 {v(U+k)}, {v(U+k)}")
    for k in range(12): p(f"v_max_f32 {v(T+k)}, 0, {v(T+k)}")
    for k in range(12): p(f"v_add_f32 {v(T+k)}, {v(T+k)}, {v(U+k)}")
    for k in range(12): p(f"v_add_f32 {v(T+k)}, s54, {v(T+k)}")
    PQ = 16
    for k in range(6): p(f"v_cvt_pk_bf16_f32 {v(PQ+k)}, {v(T+2*k)}, {v(T+2*k+1)}")
    p(f"v_mov_b32 {v(PQ+6)}, 0"); p(f"v_mov_b32 {v(PQ+7)}, 0")
    for w2 in range(3):
        for k in range(12): p(f"v_add_f32 {v(RB+k)}, {v(RB+k)}, {v(RB+12+12*w2+k)}")
    for k in range(3): p(f"ds_read_b128 {v(RB+12+4*k,4)}, v12 offset:{7*3072+1024*k}")
    for k in range(12): p(f"v_add_f32 {v(RB+k)}, {v(RB+k)}, {v(RB+12+k)}")
    KVF = 112
    for k in range(6): p(f"v_cvt_pk_bf16_f32 {v(KVF+k)}, {v(RB+2*k)}, {v(RB+2*k+1)}")
    p(f"v_mov_b32 {v(KVF+6)}, 0"); p(f"v_mov_b32 {v(KVF+7)}, 0")
    N = 160
    p(f"v_mfma_f32_32x32x16_bf16 {v(N,16)}, {v(KVF,4)}, {v(PQ,4)}, 0")
    p(f"v_mfma_f32_32x32x16_bf16 {v(N,16)}, {v(KVF+4,4)}, {v(PQ+4,4)}, {v(N,16)}")
    for k in range(4): p(f"v_lshl_or_b32 {v(WOR+k)}, {v(WOH+k)}, 16, {v(WOR+k)}")
    p(f"buffer_store_dwordx4 {v(WOR,4)}, {v(vL16)}, {s(SWS,4)}, {s(sWFo)} offen")
    A0 = 32
    for k in range(5):
        p(f"v_lshlrev_b32 {v(A0+4*k)}, 16, {v(GX+k)}")
        p(f"v_and_b32 {v(A0+4*k+1)}, 0xffff0000, {v(GX+k)}")
        p(f"v_lshlrev_b32 {v(A0+4*k+2)}, 16, {v(GWt+k)}")
        p(f"v_and_b32 {v(A0+4*k+3)}, 0xffff0000, {v(GWt+k)}")
    for k in range(5):
        p(f"v_mul_f32 {v(A0+4*k)}, {v(A0+4*k)}, {v(A0+4*k+2)}")
        p(f"v_mul_f32 {v(A0+4*k+1)}, {v(A0+4*k+1)}, {v(A0+4*k+3)}")
    for k in range(5): p(f"v_cvt_pk_bf16_f32 {v(A0+4*k+2)}, {v(A0+4*k)}, {v(A0+4*k+1)}")
    for k in range(5):
        p(f"v_lshlrev_b32 {v(A0+4*k)}, 16, {v(A0+4*k+2)}")
        p(f"v_and_b32 {v(A0+4*k+1)}, 0xffff0000, {v(A0+4*k+2)}")
    for k in range(5): p(f"v_add_f32 {v(A0+4*k)}, {v(A0+4*k)}, {v(A0+4*k+1)}")
    p(f"v_add_f32 {v(A0)}, {v(A0)}, {v(A0+4)}")
    p(f"v_add_f32 {v(A0+8)}, {v(A0+8)}, {v(A0+12)}")
    p(f"v_add_f32 {v(A0)}, {v(A0)}, {v(A0+16)}")
    p(f"v_add_f32 {v(A0)}, {v(A0)}, {v(A0+8)}")
    p("s_add_u32 s39, s39, 20480")
    p("s_add_u32 s37, s37, 20480")
    oepi(N, 39, 37, True)
    G = A0
    for sh in (1, 2, 4, 8): p(f"v_add_f32_dpp {v(G)}, {v(G)}, {v(G)} row_shr:{sh} row_mask:0xf bank_mask:0xf")
    p(f"v_add_f32_dpp {v(G)}, {v(G)}, {v(G)} row_bcast:15 row_mask:0xa bank_mask:0xf")
    p(f"v_add_f32_dpp {v(G)}, {v(G)}, {v(G)} row_bcast:31 row_mask:0xc bank_mask:0xf")
    p(f"v_cvt_pk_bf16_f32 {v(G)}, {v(G)}, {v(G)}")
    p(f"v_lshlrev_b32 {v(G)}, 16, {v(G)}")
    p(f"v_mul_f32 {v(G)}, s53, {v(G)}")
    p(f"v_exp_f32 {v(G)}, -{v(G)}")
    p(f"v_add_f32 {v(G)}, 1.0, {v(G)}")
    p(f"v_rcp_f32 {v(G)}, {v(G)}")
    p(f"v_cvt_pk_bf16_f32 {v(G)}, {v(G)}, {v(G)}")
    p(f"v_lshlrev_b32 {v(G)}, 16, {v(G)}")
    p(f"v_sub_f32 {v(G+1)}, 1.0, {v(G)}")
    p(f"v_cvt_pk_bf16_f32 {v(G+1)}, {v(G+1)}, {v(G+1)}")
    p(f"v_lshlrev_b32 {v(G+1)}, 16, {v(G+1)}")
    p(f"s_lshl_b32 s36, {s(sGR)}, 3")
    p(f"s_add_u32 s36, s36, {WS_G}")
    p("v_mov_b32 v12, 0")
    p("s_mov_b32 exec_lo, 0")
    p("s_mov_b32 exec_hi, 0x80000000")
    p(f"buffer_store_dwordx2 {v(G,2)}, v12, {s(SWS,4)}, s36 offen")
    p.label("K2_end")
    p("s_endpgm")
    p.pad()
    return p.text(), dict(name="k2_kernel", vgpr=220, sgpr=72, grid=256, block=512, lds=LDS_RED + 8*3072)

def gen_k3():
    p = Prog()
    header(p, "k3_kernel")
    SWS, SO = 8, 12
    sWV, sRT, sCT = 16, 17, 18
    p("s_cmp_ge_u32 s2, 256")
    p("s_cbranch_scc1 K3_end")
    p("s_load_dwordx2 s[4:5], s[0:1], 56")
    p("s_load_dwordx2 s[6:7], s[0:1], 72")
    p("v_lshrrev_b32 v1, 6, v0")
    p("v_and_b32 v2, 63, v0")
    p(f"v_readfirstlane_b32 {s(sWV)}, v1")
    p("s_and_b32 s20, s2, 7")
    p("s_lshr_b32 s21, s2, 3")
    p("s_lshr_b32 s22, s20, 1")
    p("s_lshl_b32 s22, s22, 3")
    p("s_lshr_b32 s23, s21, 2")
    p(f"s_add_u32 {s(sRT)}, s22, s23")
    p("s_and_b32 s22, s20, 1")
    p("s_lshl_b32 s22, s22, 2")
    p("s_and_b32 s23, s21, 3")
    p(f"s_add_u32 {s(sCT)}, s22, s23")
    p(f"s_mul_i32 s20, {s(sWV)}, 10240")
    p("v_lshlrev_b32 v3, 4, v2")
    p("v_add_u32 v3, s20, v3")
    p("v_add_u32 v4, 4096, v3")
    p("v_add_u32 v5, 8192, v3")
    sA, sB = 24, 28
    p(f"s_mul_i32 s20, {s(sRT)}, {4*40960}")
    for i in range(4): p(f"s_add_u32 {s(sA+i)}, s20, {WS_OF + i*40960}")
    p(f"s_mul_i32 s20, {s(sCT)}, {5*40960}")
    for j in range(5): p(f"s_add_u32 {s(sB+j)}, s20, {WS_WF + j*40960}")
    p("s_waitcnt lgkmcnt(0)")
    srd(p, SWS, 6, WS_SIZE)
    NB = 6
    FB = 8
    def ld(ks):
        b = FB + 36*(ks % NB)
        vo = v(3 + ks // 4); im = (ks % 4) * 1024
        for j in range(5):
            if j < 4: p(f"buffer_load_dwordx4 {v(b+4*j,4)}, {vo}, {s(SWS,4)}, {s(sA+j)} offen offset:{im}")
            p(f"buffer_load_dwordx4 {v(b+16+4*j,4)}, {vo}, {s(SWS,4)}, {s(sB+j)} offen offset:{im}")
    for ks in range(NB): ld(ks)
    srd(p, SO, 4, 2048*1280)
    vGT = 6
    p("v_lshrrev_b32 v1, 2, v0")
    p("v_lshlrev_b32 v224, 3, v1") if False else None
    p(f"s_lshl_b32 s20, {s(sRT)}, 9")
    p(f"s_add_u32 s20, s20, {WS_G}")
    GV = FB + 36*NB
    p(f"v_lshlrev_b32 {v(GV+2)}, 3, v1")
    p(f"buffer_load_dwordx2 {v(GV,2)}, {v(GV+2)}, {s(SWS,4)}, s20 offen")
    for ks in range(10):
        b = FB + 36*(ks % NB)
        for j in range(5):
            for i in range(4):
                A = (j*4+i)*4
                p(f"v_mfma_f32_16x16x32_bf16 {a(A,4)}, {v(b+16+4*j,4)}, {v(b+4*i,4)}, {'0' if ks==0 else a(A,4)}")
        if ks + NB < 10: ld(ks + NB)
    RS = 336
    p("v_and_b32 v3, 15, v2")
    p(f"v_mul_u32_u24 v3, {RS}, v3")
    p("v_lshrrev_b32 v4, 4, v2")
    p("v_lshl_add_u32 v3, v4, 4, v3")
    p(f"s_mul_i32 s20, {s(sWV)}, {64*RS}")
    p("v_add_u32 v3, s20, v3")
    for j in range(5):
        for i in range(4):
            A = (j*4+i)*4
            p(f"ds_write_b128 v3, {a(A,4)} offset:{i*16*RS + j*64}")
    p(f"v_mul_u32_u24 v4, {RS}, v1")
    p("v_and_b32 v5, 3, v0")
    p("v_mul_u32_u24 v7, 80, v5")
    p("v_add_u32 v4, v4, v7")
    p(f"v_add_u32 v7, {2*64*RS}, v4")
    p("s_waitcnt lgkmcnt(0)")
    p("s_barrier")
    R = 8
    for w in range(4):
        for c in range(5):
            p(f"ds_read_b128 {v(R+20*w+4*c,4)}, {v(4 if w < 2 else 7)} offset:{(w&1)*64*RS + 16*c}")
    p("s_movk_i32 s20, 1280")
    p("v_mul_u32_u24 v5, 40, v5")
    p("v_mad_u32_u24 v5, v1, s20, v5")
    p(f"s_mul_i32 s21, {s(sRT)}, {64*1280}")
    p(f"s_mul_i32 s22, {s(sCT)}, 160")
    p("s_add_u32 s21, s21, s22")
    for k in range(20): p(f"v_add_f32 {v(R+k)}, {v(R+k)}, {v(R+20+k)}")
    for k in range(20): p(f"v_mul_f32 {v(R+k)}, {v(GV)}, {v(R+k)}")
    for k in range(20): p(f"v_add_f32 {v(R+40+k)}, {v(R+40+k)}, {v(R+60+k)}")
    for k in range(20): p(f"v_fmac_f32 {v(R+k)}, {v(GV+1)}, {v(R+40+k)}")
    E = 96
    for k in range(10): p(f"v_cvt_pk_bf16_f32 {v(E+k)}, {v(R+2*k)}, {v(R+2*k+1)}")
    p(f"buffer_store_dwordx4 {v(E,4)}, v5, {s(SO,4)}, s21 offen")
    p(f"buffer_store_dwordx4 {v(E+4,4)}, v5, {s(SO,4)}, s21 offen offset:16")
    p(f"buffer_store_dwordx2 {v(E+8,2)}, v5, {s(SO,4)}, s21 offen offset:32")
    p.label("K3_end")
    p("s_endpgm")
    p.pad()
    return p.text(), dict(name="k3_kernel", vgpr=228+80, arch=228, sgpr=40, grid=256, block=256, lds=4*64*RS)
```

```python
import math, struct, sys
from asmlib import *

NAME = "gated_mix__sliding_block__linear_attn_block__prompt"
WS_QA=0x000000; WS_KA=0x300000; WS_VA=0x600000; WS_QB=0x900000; WS_KVP=0xC00000
WS_OF=0xE00000; WS_WF=0x1300000; WS_G=0x1500000; WS_SIZE=0x1600000

def f32(x): return "0x%08x" % struct.unpack('<I', struct.pack('<f', x))[0]
LOG2E = math.log2(math.e)
QSCALE = (20 ** -0.5) * LOG2E
EPS = 1e-6
NEG = -1e30

def srd(p, d, base, nbytes):
    p(f"s_mov_b32 {s(d)}, {s(base)}")
    p(f"s_and_b32 {s(d+1)}, {s(base+1)}, 0xffff")
    p(f"s_mov_b32 {s(d+2)}, {nbytes}")
    p(f"s_mov_b32 {s(d+3)}, 0x20000")

def header(p, name):
    p.raw(f".globl {name}")
    p.raw(".p2align 8")
    p.raw(f".type {name},@function")
    p.label(name)

def gen_k1():
    p = Prog()
    header(p, "k1_kernel")
    SX, SW, SWS = 12, 16, 20
    sRT, sHG, sBR, sST, sKC, sOX, sOW, sSLI, sSLC, sWV = 24, 25, 26, 27, 28, 29, 30, 31, 32, 33
    sMH, sNG = 41, 42
    sINIT, sSCL, sFLG = 44, 48, 52
    sM0X, sM0W = 56, 57
    p("s_cmp_ge_u32 s2, 256")
    p("s_cbranch_scc1 K1_end")
    p("s_load_dwordx4 s[4:7], s[0:1], 0")
    p("s_load_dwordx2 s[8:9], s[0:1], 32")
    p("s_load_dwordx2 s[10:11], s[0:1], 72")
    p("v_lshrrev_b32 v1, 6, v0")
    p("v_and_b32 v2, 63, v0")
    p(f"v_readfirstlane_b32 {s(sWV)}, v1")
    p("s_and_b32 s34, s2, 7")
    p("s_lshr_b32 s35, s2, 3")
    p("s_lshr_b32 s36, s34, 2")
    p("s_and_b32 s37, s34, 3")
    p("s_lshr_b32 s38, s35, 2")
    p("s_and_b32 s39, s35, 3")
    p(f"s_lshl_b32 {s(sRT)}, s36, 3")
    p(f"s_add_u32 {s(sRT)}, {s(sRT)}, s38")
    p(f"s_lshr_b32 {s(sBR)}, s39, 1")
    p(f"s_and_b32 {s(sHG)}, s39, 1")
    p("s_lshl_b32 s40, s37, 1")
    p(f"s_add_u32 {s(sHG)}, {s(sHG)}, s40")
    p(f"s_mul_i32 {s(sKC)}, s39, 3")
    p(f"s_add_u32 {s(sKC)}, {s(sKC)}, s38")
    p(f"s_sub_u32 s40, {s(sKC)}, 10")
    p(f"s_cmp_ge_u32 {s(sKC)}, 10")
    p(f"s_cselect_b32 {s(sKC)}, s40, {s(sKC)}")
    p(f"s_lshr_b32 {s(sMH)}, {s(sWV)}, 2")
    p(f"s_and_b32 {s(sNG)}, {s(sWV)}, 3")
    vXO, vWO = 4, 6
    p("v_lshrrev_b32 v3, 3, v2")
    p("v_and_b32 v10, 7, v2")
    p("v_xor_b32 v10, v10, v3")
    p("v_lshlrev_b32 v10, 4, v10")
    p("s_movk_i32 s40, 1280")
    p(f"v_mad_u32_u24 {v(vXO)}, v3, s40, v10")
    p(f"s_lshl_b32 s34, {s(sRT)}, 7")
    p(f"s_lshl_b32 s35, {s(sWV)}, 4")
    p("s_add_u32 s34, s34, s35")
    p("s_mul_i32 s34, s34, 1280")
    p(f"v_add_u32 {v(vXO)}, s34, {v(vXO)}")
    p(f"v_add_u32 {v(vXO+1)}, 9216, {v(vXO)}")
    p("v_lshrrev_b32 v3, 5, v2")
    p("v_bfe_u32 v10, v2, 1, 4")
    p("v_and_b32 v11, 1, v2")
    p("v_lshlrev_b32 v11, 4, v11")
    p("s_movk_i32 s35, 3840")
    p("v_mad_u32_u24 v11, v3, s35, v11")
    p(f"s_and_b32 s36, {s(sWV)}, 1")
    p("s_lshl_b32 s36, s36, 2")
    p(f"s_mul_i32 s37, {s(sWV)}, {8*3840}")
    p(f"s_mul_i32 s38, {s(sHG)}, 160")
    p("s_add_u32 s37, s37, s38")
    p("v_mov_b32 v16, 0x7fff0000")
    for i in range(2):
        p(f"v_or_b32 v12, s36, v3")
        if i: p("v_or_b32 v12, 2, v12")
        p("v_xor_b32 v12, v12, v10")
        p("v_mul_u32_u24 v13, 52, v12")
        p("v_lshrrev_b32 v13, 8, v13")
        p("v_mul_u32_u24 v14, 5, v13")
        p("v_sub_u32 v14, v12, v14")
        p("v_lshl_add_u32 v14, v14, 5, v11")
        p("v_mad_u32_u24 v14, v13, s40, v14")
        p(f"v_add_u32 v14, s37, v14")
        if i: p(f"v_add_u32 v14, {2*3840-1024}, v14")
        p("v_cmp_eq_u32 vcc, 15, v12")
        p(f"v_cndmask_b32 {v(vWO+i)}, v14, v16, vcc")
        p(f"v_add_u32 {v(vWO+2+i)}, 13312, {v(vWO+i)}")
    p("s_waitcnt lgkmcnt(0)")
    srd(p, SX, 4, 2048*1280)
    p(f"s_cmp_eq_u32 {s(sBR)}, 0")
    p("s_cselect_b32 s6, s6, s8")
    p("s_cselect_b32 s7, s7, s9")
    srd(p, SW, 6, 640*3840)
    srd(p, SWS, 10, WS_SIZE)
    p(f"s_lshl_b32 {s(sM0X)}, {s(sWV)}, 11")
    p(f"s_lshl_b32 {s(sM0W)}, {s(sWV)}, 12")
    p(f"s_add_u32 {s(sM0W)}, {s(sM0W)}, 16384")
    p(f"s_mov_b32 {s(sSLI)}, 0")
    def issue():
        p(f"s_lshl_b32 {s(sOX)}, {s(sKC)}, 7")
        p(f"s_mul_i32 {s(sOW)}, {s(sKC)}, 245760")
        p(f"s_add_u32 m0, {s(sSLI)}, {s(sM0X)}")
        p(f"s_add_u32 {s(sKC)}, {s(sKC)}, 1")
        for i in range(2):
            p(f"buffer_load_dwordx4 {v(vXO+i)}, {s(SX,4)}, {s(sOX)} offen offset:{i*1024} lds")
        p(f"s_add_u32 m0, {s(sSLI)}, {s(sM0W)}")
        p(f"s_cmp_eq_u32 {s(sKC)}, 10")
        p(f"s_cselect_b32 {s(sKC)}, 0, {s(sKC)}")
        for i in range(4):
            p(f"buffer_load_dwordx4 {v(vWO+i)}, {s(SW,4)}, {s(sOW)} offen offset:{i*1024} lds")
        p(f"s_add_u32 {s(sSLI)}, {s(sSLI)}, 49152")
        p(f"s_cmp_eq_u32 {s(sSLI)}, 147456")
        p(f"s_cselect_b32 {s(sSLI)}, 0, {s(sSLI)}")
    for _ in range(3): issue()
    vXS, vWS, vXA, vWA = 10, 12, 16, 18
    vG, vM = 22, 23
    p(f"v_lshrrev_b32 {v(vG)}, 4, v2")
    p(f"v_and_b32 {v(vM)}, 15, v2")
    p("v_and_b32 v3, 7, v2")
    p(f"v_xor_b32 v3, v3, {v(vG)}")
    p("v_lshlrev_b32 v3, 4, v3")
    p(f"v_lshl_add_u32 v3, {v(vM)}, 7, v3")
    p(f"s_lshl_b32 s34, {s(sMH)}, 13")
    p(f"v_add_u32 {v(vXS)}, s34, v3")
    p(f"v_xor_b32 {v(vXS+1)}, 64, {v(vXS)}")
    p("v_bfe_u32 v3, v2, 2, 2")
    p(f"v_and_b32 v24, 1, {v(vG)}")
    p("v_lshl_or_b32 v24, v24, 2, v3")
    p(f"v_lshl_add_u32 v25, {v(vG)}, 3, v3")
    p("v_lshlrev_b32 v25, 9, v25")
    p("v_and_b32 v26, 3, v2")
    p("v_lshl_add_u32 v25, v26, 3, v25")
    p("v_add_u32 v25, 16384, v25")
    p(f"s_lshl_b32 s34, {s(sNG)}, 2")
    for jj in range(4):
        p(f"s_add_u32 s35, s34, {jj}")
        p(f"v_xor_b32 v26, s35, v24")
        p(f"v_lshl_add_u32 {v(vWS+jj)}, v26, 5, v25")
        p("s_sub_u32 s36, s35, 5")
        p("s_cmp_lt_u32 s36, 5")
        p(f"s_cselect_b32 {s(sFLG+jj)}, {s(sBR)}, 0")
        p(f"s_mul_i32 {s(sINIT+jj)}, {s(sFLG+jj)}, {f32(EPS)}")
        p("s_cmp_lt_u32 s35, 5")
        p("s_cselect_b32 s36, 1, 0")
        p(f"s_andn2_b32 s36, s36, {s(sBR)}")
        p("s_cmp_eq_u32 s36, 1")
        p(f"s_cselect_b32 {s(sSCL+jj)}, {f32(QSCALE)}, 1.0")
    ACC = 32
    FX = [96, 128]
    FW = [112, 144]
    for jj in range(4):
        for k in range(16):
            p(f"v_mov_b32 {v(ACC+jj*16+k)}, {s(sINIT+jj)}")
    p(f"s_mov_b32 {s(sST)}, 0")
    p(f"s_mov_b32 {s(sSLC)}, 0")
    p("s_waitcnt vmcnt(12)")
    p("s_barrier")
    p("s_branch K1_compute")
    p.label("K1_loop")
    p(f"s_cmp_lt_u32 {s(sST)}, 9")
    p("s_cbranch_scc1 K1_w6")
    p("s_waitcnt vmcnt(0)")
    p.label("K1_w6")
    p("s_waitcnt vmcnt(6)")
    p("s_barrier")
    p(f"s_cmp_gt_u32 {s(sST)}, 7")
    p("s_cbranch_scc1 K1_compute")
    issue()
    p.label("K1_compute")
    p.forget()
    for k in range(2): p(f"v_add_u32 {v(vXA+k)}, {s(sSLC)}, {v(vXS+k)}")
    for k in range(4): p(f"v_add_u32 {v(vWA+k)}, {s(sSLC)}, {v(vWS+k)}")
    def rdx(ks, i): p(f"ds_read_b128 {v(FX[ks]+4*i,4)}, {v(vXA+ks)} offset:{i*2048}")
    def rdw(ks, jj, h): p(f"ds_read_b64_tr_b16 {v(FW[ks]+4*jj+2*h,2)}, {v(vWA+jj)} offset:{ks*16384+h*2048}")
    def mm(ks, jj, i):
        A = ACC + (jj*4+i)*4
        p(f"v_mfma_f32_16x16x32_bf16 {v(A,4)}, {v(FW[ks]+4*jj,4)}, {v(FX[ks]+4*i,4)}, {v(A,4)}")
    rdw(0,0,0); rdw(0,0,1)
    for i in range(4): rdx(0,i)
    for jj in range(1,4): rdw(0,jj,0); rdw(0,jj,1)
    nxt = [('w',0,0),('w',0,1),('x',0),('x',1),('x',2),('x',3),('w',1,0),('w',1,1),('w',2,0),('w',2,1),('w',3,0),('w',3,1)]
    for jj in range(4):
        for i in range(4):
            mm(0,jj,i)
            if nxt and (jj*4+i) >= 1:
                t = nxt.pop(0)
                if t[0]=='w': rdw(1,t[1],t[2])
                else: rdx(1,t[1])
    assert not nxt
    p(f"s_add_u32 {s(sSLC)}, {s(sSLC)}, 49152")
    p(f"s_cmp_eq_u32 {s(sSLC)}, 147456")
    p(f"s_cselect_b32 {s(sSLC)}, 0, {s(sSLC)}")
    p(f"s_add_u32 {s(sST)}, {s(sST)}, 1")
    for jj in range(4):
        for i in range(4):
            mm(1,jj,i)
    p(f"s_cmp_lt_u32 {s(sST)}, 10")
    p("s_cbranch_scc1 K1_loop")
    p("s_barrier")
    vIM = 4
    p(f"s_lshl_b32 s34, {s(sMH)}, 6")
    p(f"v_add_u32 v3, s34, {v(vM)}")
    p("v_mul_u32_u24 v3, 48, v3")
    p(f"s_lshl_b32 s34, {s(sNG)}, 4")
    p("s_movk_i32 s36, 6144")
    for jj in range(4):
        p(f"s_add_u32 s35, s34, {4*jj}")
        p(f"v_add_u32 v8, s35, {v(vG)}")
        p("v_mul_u32_u24 v9, 52, v8")
        p("v_lshrrev_b32 v9, 8, v9")
        p("v_mul_u32_u24 v10, 5, v9")
        p("v_sub_u32 v10, v8, v10")
        p("v_lshl_add_u32 v10, v10, 3, v3")
        p(f"v_mad_u32_u24 {v(vIM+jj)}, v9, s36, v10")
    p("v_lshrrev_b32 v8, 7, v0")
    p("v_and_b32 v9, 127, v0")
    p("v_mul_u32_u24 v9, 48, v9")
    p("v_mad_u32_u24 v8, v8, s36, v9")
    p("v_mov_b32 v10, 0x3f80")
    p("v_mov_b32 v11, 0")
    p("v_mov_b32 v12, 0")
    p("v_mov_b32 v13, 0")
    p("ds_write_b64 v8, v[10:11] offset:40")
    p(f"ds_write_b64 v8, v[12:13] offset:{40+24576}")
    p(f"ds_write_b64 v8, v[10:11] offset:{40+49152}")
    p(f"s_mov_b32 s37, {f32(LOG2E)}")
    p(f"s_mov_b32 s38, {f32(EPS)}")
    T = 96
    for jj in range(4):
        A = ACC + jj*16
        p(f"s_cmp_eq_u32 {s(sFLG+jj)}, 0")
        p(f"s_cbranch_scc1 K1_nophi{jj}")
        for k in range(16): p(f"v_mul_f32 {v(T+k)}, s37, {v(A+k)}")
        for k in range(16): p(f"v_min_f32 {v(T+k)}, 0, {v(T+k)}")
        for k in range(16): p(f"v_exp_f32 {v(T+k)}, {v(T+k)}")
        for k in range(16): p(f"v_max_f32 {v(A+k)}, s38, {v(A+k)}")
        for k in range(16): p(f"v_add_f32 {v(A+k)}, {v(A+k)}, {v(T+k)}")
        p.label(f"K1_nophi{jj}")
        for k in range(16): p(f"v_mul_f32 {v(A+k)}, {s(sSCL+jj)}, {v(A+k)}")
        P = 112 + jj*8
        for k in range(8): p(f"v_cvt_pk_bf16_f32 {v(P+k)}, {v(A+2*k)}, {v(A+2*k+1)}")
        for i in range(4): p(f"ds_write_b64 {v(vIM+jj)}, {v(P+2*i,2)} offset:{i*768}")
    p("s_waitcnt lgkmcnt(0)")
    p("s_barrier")
    p(f"s_mul_i32 s34, {s(sWV)}, 768")
    p("v_lshlrev_b32 v3, 4, v2")
    p("v_add_u32 v3, s34, v3")
    p(f"v_add_u32 v4, {6*6144}, v3")
    p(f"s_mul_i32 s34, {s(sHG)}, {4*98304}")
    p(f"s_mul_i32 s35, {s(sRT)}, 6144")
    p("s_add_u32 s34, s34, s35")
    p(f"s_mul_i32 s35, {s(sBR)}, {3*0x300000}")
    p("s_add_u32 s34, s34, s35")
    p("s_mov_b32 exec_hi, 0xffff")
    D = 32
    def rdblk(b):
        if b < 6: p(f"ds_read_b128 {v(D+4*b,4)}, v3 offset:{b*6144}")
        else: p(f"ds_read_b128 {v(D+4*b,4)}, v4 offset:{(b-6)*6144}")
    def stblk(b):
        off = (b//4)*0x300000 + (b%4)*98304
        p(f"s_add_u32 s35, s34, {off}")
        p(f"buffer_store_dwordx4 {v(D+4*b,4)}, v3, {s(SWS,4)}, s35 offen")
    for b in range(4): rdblk(b)
    p(f"s_cmp_eq_u32 {s(sBR)}, 0")
    p("s_cbranch_scc0 K1_bpath")
    p.begin_cond()
    for b in range(4,12): rdblk(b)
    for b in range(12): stblk(b)
    p("s_endpgm")
    p.end_cond()
    p.label("K1_bpath")
    p("s_waitcnt lgkmcnt(0)")
    for b in range(4): stblk(b)
    p("s_mov_b32 exec_hi, -1")
    p(f"s_cmp_gt_u32 {s(sWV)}, 3")
    p("s_cbranch_scc1 K1_end")
    p("v_lshrrev_b32 v5, 5, v2")
    p("v_bfe_u32 v6, v2, 2, 2")
    p("v_lshl_add_u32 v5, v5, 3, v6")
    p("v_mul_u32_u24 v5, 48, v5")
    p("v_bfe_u32 v6, v2, 4, 1")
    p("v_lshl_add_u32 v5, v6, 5, v5")
    p("v_and_b32 v6, 3, v2")
    p("v_lshl_add_u32 v5, v6, 3, v5")
    p(f"s_add_u32 s35, {s(sWV)}, 4")
    p("s_mul_i32 s35, s35, 6144")
    p("v_add_u32 v5, s35, v5")
    KV = 96
    F = 112
    for t in range(8):
        for h in range(2): p(f"ds_read_b64_tr_b16 {v(F+8*t+2*h,2)}, v5 offset:{t*768+h*192}")
        for h in range(2): p(f"ds_read_b64_tr_b16 {v(F+8*t+4+2*h,2)}, v5 offset:{24576+t*768+h*192}")
        if t >= 2:
            tt = t-2
            p(f"v_mfma_f32_32x32x16_bf16 {v(KV,16)}, {v(F+8*tt,4)}, {v(F+8*tt+4,4)}, {'0' if tt==0 else v(KV,16)}")
    for tt in (6,7):
        p(f"v_mfma_f32_32x32x16_bf16 {v(KV,16)}, {v(F+8*tt,4)}, {v(F+8*tt+4,4)}, {v(KV,16)}")
    p(f"s_lshl_b32 s34, {s(sHG)}, 2")
    p(f"s_add_u32 s34, s34, {s(sWV)}")
    p("s_lshl_b32 s34, s34, 4")
    p(f"s_add_u32 s34, s34, {s(sRT)}")
    p("s_mul_i32 s34, s34, 3072")
    p(f"s_add_u32 s34, s34, {WS_KVP}")
    p("v_lshlrev_b32 v3, 4, v2")
    for q in range(3):
        p(f"buffer_store_dwordx4 {v(KV+4*q,4)}, v3, {s(SWS,4)}, s34 offen offset:{q*1024}")
    p.label("K1_end")
    p("s_endpgm")
    p.pad()
    return p.text(), dict(name="k1_kernel", vgpr=176, sgpr=64, grid=256, block=512, lds=147456)

def descriptor(k):
    acc = (k.get('arch', k['vgpr']) + 3)//4*4
    return f""".p2align 6
.amdhsa_kernel {k['name']}
  .amdhsa_next_free_vgpr {k['vgpr']}
  .amdhsa_next_free_sgpr {k['sgpr']}
  .amdhsa_accum_offset {acc}
  .amdhsa_group_segment_fixed_size 0
  .amdhsa_kernarg_size 80
  .amdhsa_user_sgpr_count 2
  .amdhsa_user_sgpr_kernarg_segment_ptr 1
  .amdhsa_system_sgpr_workgroup_id_x 1
.end_amdhsa_kernel
"""

def build(kernels, path):
    ref = open(f"cdna_kernels/{NAME}.s.ref").read().splitlines()
    head = [l for l in ref if l.startswith(';') and '@launch' not in l and 'Override' not in l and 'grid=ceil' not in l]
    out = head[:]
    for _, k in kernels:
        out.append(f"; @launch kernel={k['name']} grid=({k['grid']},1,1) block=({k['block']},1,1) lds={k['lds']}")
    out.append('.amdgcn_target "amdgcn-amd-amdhsa--gfx950"')
    out.append('.text')
    txt = '\n'.join(out) + '\n'
    for t, _ in kernels: txt += t
    txt += '.section .rodata,"a"\n'
    for _, k in kernels: txt += descriptor(k)
    open(path, 'w').write(txt)

if __name__ == '__main__':
    ks = [gen_k1()]
    try:
        from gen23 import gen_k2, gen_k3
        ks += [gen_k2(), gen_k3()]
    except ImportError:
        pass
    out = sys.argv[1] if len(sys.argv) > 1 else f"cdna_kernels/{NAME}.s"
    build(ks, out)
    print("wrote", out)
```

```python
from asmlib import *
from gen import *

def gen_k2():
    p = Prog()
    header(p, "k2_kernel")
    p.stv = 220
    SWS, SX, SWO, SGW = 16, 20, 24, 28
    sH, sR, sWV = 32, 33, 34
    LDS_V = 24576; LDS_RED = 49216
    p("s_cmp_ge_u32 s2, 256")
    p("s_cbranch_scc1 K2_end")
    stamp(p, 0)
    p("s_load_dwordx2 s[4:5], s[0:1], 0")
    p("s_load_dwordx2 s[6:7], s[0:1], 16")
    p("s_load_dwordx4 s[8:11], s[0:1], 40")
    p("s_load_dwordx2 s[12:13], s[0:1], 72")
    p("v_lshrrev_b32 v1, 6, v0")
    p("v_and_b32 v2, 63, v0")
    p(f"v_readfirstlane_b32 {s(sWV)}, v1")
    p("s_and_b32 s36, s2, 7")
    p("s_lshr_b32 s37, s2, 3")
    p("s_and_b32 s38, s36, 3")
    p("s_lshl_b32 s38, s38, 3")
    p("s_and_b32 s39, s37, 7")
    p(f"s_add_u32 {s(sH)}, s38, s39")
    p("s_lshr_b32 s38, s36, 2")
    p("s_lshl_b32 s38, s38, 2")
    p("s_lshr_b32 s39, s37, 3")
    p(f"s_add_u32 {s(sR)}, s38, s39")
    vL16, vQA, vHH = 3, 4, 5
    p(f"v_lshlrev_b32 {v(vL16)}, 4, v2")
    p(f"v_and_b32 {v(vQA)}, 31, v2")
    p(f"v_lshrrev_b32 {v(vHH)}, 5, v2")
    sRow = 35
    p(f"s_lshl_b32 {s(sRow)}, {s(sH)}, 11")
    p(f"s_lshl_b32 s36, {s(sR)}, 8")
    p(f"s_add_u32 {s(sRow)}, {s(sRow)}, s36")
    p(f"s_mul_i32 s40, {s(sWV)}, 3072")
    p(f"v_add_u32 v6, s40, {v(vL16)}")
    p(f"s_mul_i32 s41, {s(sRow)}, 48")
    p(f"s_add_u32 s42, s41, {WS_KA - 12288}")
    p(f"s_add_u32 s43, s41, {WS_VA - 12288}")
    p("s_waitcnt lgkmcnt(0)")
    srd(p, SWS, 12, WS_SIZE)
    stamp(p, 1)
    p(f"s_lshr_b32 s36, {s(sWV)}, 2")
    p(f"s_or_b32 s36, s36, {s(sR)}")
    p("s_cmp_eq_u32 s36, 0")
    p("s_cbranch_scc1 K2_fill")
    p("s_mov_b32 m0, s40")
    for i in range(3): p.raw(f"    buffer_load_dwordx4 v6, {s(SWS,4)}, s42 offen offset:{i*1024} lds") if False else p(f"buffer_load_dwordx4 v6, {s(SWS,4)}, s42 offen offset:{i*1024} lds")
    p(f"s_add_u32 m0, s40, {LDS_V}")
    p("s_nop 0")
    for i in range(3): p(f"buffer_load_dwordx4 v6, {s(SWS,4)}, s43 offen offset:{i*1024} lds")
    p("s_branch K2_filled")
    p.label("K2_fill")
    p("v_mul_u32_u24 v7, 48, v0")
    for k in range(4): p(f"v_mov_b32 {v(8+k)}, 0")
    p("v_mov_b32 v12, 0"); p("v_mov_b32 v13, 0"); p("v_mov_b32 v14, 0xf149"); p("v_mov_b32 v15, 0")
    p("ds_write_b128 v7, v[8:11]")
    p("ds_write_b128 v7, v[8:11] offset:16")
    p("ds_write_b128 v7, v[12:15] offset:32")
    for k in range(3): p(f"ds_write_b128 v7, v[8:11] offset:{LDS_V+16*k}")
    p.label("K2_filled")
    p.forget()
    Q0, Q1 = 16, 20
    PQR = 24
    MU, ML = 32, 48
    SB = [64, 80]
    KF = [96, 104]
    VF = [112, 120]
    PB = [128, 136]
    O = 144
    CM = 160
    PAR = 176
    WOR = 200
    WOH = 216
    GX, GWt = 204, 210
    vQo, vPQo, vK0, vK1, vV, vM = 6, 7, 8, 9, 10, 11
    p(f"s_lshl_b32 s36, {s(sWV)}, 5")
    p(f"v_add_u32 v12, s36, {v(vQA)}")
    p("v_mul_u32_u24 v12, 48, v12")
    p(f"v_lshl_add_u32 {v(vQo)}, {v(vHH)}, 4, v12")
    p(f"v_lshl_add_u32 {v(vPQo)}, {v(vHH)}, 3, v12")
    for k in range(4): p(f"v_mov_b32 {v(Q1+k)}, 0")
    p(f"buffer_load_dwordx4 {v(Q0,4)}, {v(vQo)}, {s(SWS,4)}, s41 offen")
    p("s_mov_b32 exec_hi, 0")
    p(f"buffer_load_dwordx4 {v(Q1,4)}, {v(vQo)}, {s(SWS,4)}, s41 offen offset:32")
    p("s_mov_b32 exec_hi, -1")
    p(f"s_add_u32 s44, s41, {WS_QB}")
    for k in range(3): p(f"buffer_load_dwordx2 {v(PQR+2*k,2)}, {v(vPQo)}, {s(SWS,4)}, s44 offen offset:{16*k}")
    p(f"s_lshl_b32 s36, {s(sH)}, 4")
    p(f"s_lshl_b32 s37, {s(sWV)}, 1")
    p("s_add_u32 s36, s36, s37")
    p("s_mul_i32 s36, s36, 3072")
    p(f"s_add_u32 s36, s36, {WS_KVP}")
    p("s_add_u32 s37, s36, 3072")
    for k in range(3): p(f"buffer_load_dwordx4 {v(PAR+4*k,4)}, {v(vL16)}, {s(SWS,4)}, s36 offen offset:{1024*k}")
    for k in range(3): p(f"buffer_load_dwordx4 {v(PAR+12+4*k,4)}, {v(vL16)}, {s(SWS,4)}, s37 offen offset:{1024*k}")
    srd(p, SX, 4, 2048*1280)
    srd(p, SGW, 10, 1280)
    sGR = 45
    p(f"s_lshl_b32 {s(sGR)}, s2, 3")
    p(f"s_add_u32 {s(sGR)}, {s(sGR)}, {s(sWV)}")
    p(f"s_mul_i32 s36, {s(sGR)}, 1280")
    p("v_lshlrev_b32 v13, 2, v2")
    p(f"buffer_load_dwordx4 {v(GX,4)}, {v(vL16)}, {s(SX,4)}, s36 offen")
    p(f"buffer_load_dword {v(GX+4)}, v13, {s(SX,4)}, s36 offen offset:1024")
    p(f"buffer_load_dwordx4 {v(GWt,4)}, {v(vL16)}, {s(SGW,4)}, 0 offen")
    p(f"buffer_load_dword {v(GWt+4)}, v13, {s(SGW,4)}, 0 offen offset:1024")
    p(f"s_cmp_ge_u32 {s(sGR)}, 800")
    p("s_cselect_b32 s6, s8, s6")
    p("s_cselect_b32 s7, s9, s7")
    p("s_cselect_b32 s46, 800, 0")
    p("s_cselect_b32 s47, 20, 0")
    srd(p, SWO, 6, 640*1280)
    p(f"s_sub_u32 s46, {s(sGR)}, s46")
    p("s_mul_i32 s48, s46, 1639")
    p("s_lshr_b32 s48, s48, 16")
    p("s_mul_i32 s49, s48, 40")
    p("s_sub_u32 s49, s46, s49")
    p("v_lshrrev_b32 v12, 4, v2")
    p("s_lshl_b32 s50, s48, 2")
    p("v_add_u32 v12, s50, v12")
    p("v_mul_u32_u24 v13, 205, v12")
    p("v_lshrrev_b32 v13, 10, v13")
    p("v_mul_u32_u24 v14, 5, v13")
    p("v_sub_u32 v14, v12, v14")
    p("v_lshrrev_b32 v15, 1, v14")
    p("v_mul_u32_u24 v15, 20, v15")
    p("v_and_b32 v12, 1, v14")
    p("v_lshl_add_u32 v15, v12, 2, v15")
    p("v_cmp_gt_u32 vcc, 4, v14")
    p("v_cndmask_b32 v15, 16, v15, vcc")
    p("v_mov_b32 v12, 20")
    p("v_cndmask_b32 v12, v12, 8, vcc") if False else p("v_cndmask_b32_e64 v12, v12, 8, vcc")
    p("v_mul_u32_u24 v13, 40, v13")
    p("v_add_u32 v15, v13, v15")
    p("s_movk_i32 s50, 1280")
    p("v_and_b32 v13, 15, v2")
    p("v_lshlrev_b32 v13, 1, v13")
    p("v_mad_u32_u24 v14, v15, s50, v13")
    p("v_mad_u32_u24 v15, v12, s50, v14")
    p("s_lshl_b32 s51, s49, 5")
    p(f"s_cmp_ge_u32 {s(sGR)}, 1600")
    p("s_cselect_b32 s51, 0x40000000, s51")
    for k in range(2):
        for q in range(2):
            p(f"buffer_load_ushort {v(WOR+2*k+q)}, {v(14+k)}, {s(SWO,4)}, s51 offen offset:{2560*q}")
            p(f"buffer_load_ushort {v(WOH+2*k+q)}, {v(14+k)}, {s(SWO,4)}, s51 offen offset:{2560*q+1280}")
    sWFo = 52
    p("s_mul_i32 s49, s49, 40")
    p("s_add_u32 s49, s49, s47")
    p("s_add_u32 s49, s49, s48")
    p("s_lshl_b32 s49, s49, 10")
    p(f"s_add_u32 s49, s49, {WS_WF}")
    p(f"s_cselect_b32 {s(sWFo)}, 0x40000000, s49") if False else None
    p(f"s_cmp_ge_u32 {s(sGR)}, 1600")
    p(f"s_cselect_b32 {s(sWFo)}, 0x40000000, s49")
    p(f"s_mul_i32 s36, {s(sWV)}, 1536")
    p(f"v_mul_u32_u24 v12, 48, {v(vQA)}")
    p("v_add_u32 v12, s36, v12")
    p(f"v_lshl_add_u32 {v(vK0)}, {v(vHH)}, 4, v12")
    p(f"v_add_u32 {v(vK1)}, 32, v12")
    p("v_bfe_u32 v12, v2, 2, 2")
    p(f"v_lshl_add_u32 v12, {v(vHH)}, 2, v12")
    p("v_mul_u32_u24 v12, 48, v12")
    p("v_bfe_u32 v13, v2, 4, 1")
    p("v_lshl_add_u32 v12, v13, 5, v12")
    p("v_and_b32 v13, 3, v2")
    p("v_lshl_add_u32 v12, v13, 3, v12")
    p(f"s_add_u32 s36, s36, {LDS_V}")
    p(f"v_add_u32 {v(vV)}, s36, v12")
    p(f"v_lshlrev_b32 v12, 2, {v(vHH)}")
    p(f"v_sub_u32 v12, {v(vQA)}, v12")
    p(f"v_mov_b32 v13, {f32(NEG)}")
    for r0 in range(0, 16, 4):
        for r in range(r0, r0+4):
            kb = 8*(r >> 2) + (r & 3)
            p(f"v_cmp_le_i32 {s(56+2*(r&3),2)}, {kb}, v12")
        for r in range(r0, r0+4):
            p(f"v_cndmask_b32 {v(ML+r)}, v13, 0, {s(56+2*(r&3),2)}")
            p(f"v_cndmask_b32 {v(MU+r)}, 0, v13, {s(56+2*(r&3),2)}")
    p(f"v_mov_b32 {v(vM)}, {f32(-3e38)}")
    stamp(p, 2)
    p("s_waitcnt vmcnt(21) lgkmcnt(0)")
    p("s_barrier")
    stamp(p, 3)
    def rdK(t):
        b = KF[t & 1]
        p(f"ds_read_b128 {v(b,4)}, {v(vK0)} offset:{t*1536}")
        p(f"ds_read_b128 {v(b+4,4)}, {v(vK1)} offset:{t*1536}")
    def rdV(t):
        b = VF[t & 1]
        for c in range(2):
            for hsel in range(2):
                p(f"ds_read_b64_tr_b16 {v(b+4*c+2*hsel,2)}, {v(vV)} offset:{t*1536 + c*768 + hsel*384}")
    def qk(t, half, C):
        S = SB[t & 1]; b = KF[t & 1]
        if half == 0: p(f"v_mfma_f32_32x32x16_bf16 {v(S,16)}, {v(b,4)}, {v(Q0,4)}, {C}")
        else: p(f"v_mfma_f32_32x32x16_bf16 {v(S,16)}, {v(b+4,4)}, {v(Q1,4)}, {v(S,16)}")
    def C1(t): return v(MU,16) if t == 0 else (v(ML,16) if t == 8 else '0')
    rdK(0); rdK(1)
    qk(0,0,C1(0)); qk(0,1,None)
    for t in range(9):
        if t+1 <= 8:
            qk(t+1,0,C1(t+1)); qk(t+1,1,None)
        if t+2 <= 8: rdK(t+2)
        S = SB[t & 1]
        for k in range(8): p(f"v_max3_f32 {v(vM)}, {v(vM)}, {v(S+2*k)}, {v(S+2*k+1)}")
    rdK(0); rdK(1)
    p(f"v_mov_b32 v12, {v(vM)}")
    p(f"v_permlane32_swap_b32 {v(vM)}, v12")
    p(f"v_max_f32 {v(vM)}, {v(vM)}, v12")
    for k in range(16): p(f"v_sub_f32 {v(MU+k)}, {v(MU+k)}, {v(vM)}")
    for k in range(16): p(f"v_sub_f32 {v(CM+k)}, 0, {v(vM)}")
    for k in range(16): p(f"v_sub_f32 {v(ML+k)}, {v(ML+k)}, {v(vM)}")
    stamp(p, 4)
    for k in range(12): p(f"v_add_f32 {v(PAR+k)}, {v(PAR+k)}, {v(PAR+12+k)}")
    p(f"s_add_u32 s36, s40, {LDS_RED}")
    p(f"v_add_u32 v12, s36, {v(vL16)}")
    for k in range(3): p(f"ds_write_b128 v12, {v(PAR+4*k,4)} offset:{1024*k}")
    def C2(t): return v(MU,16) if t == 0 else (v(ML,16) if t == 8 else v(CM,16))
    def pv(t, c):
        p(f"v_mfma_f32_32x32x16_bf16 {v(O,16)}, {v(VF[t&1]+4*c,4)}, {v(PB[t&1]+4*c,4)}, {'0' if (t==0 and c==0) else v(O,16)}")
    qk(0,0,C2(0)); qk(0,1,None)
    for t in range(9):
        S = SB[t & 1]
        rdV(t)
        for k in range(16):
            p(f"v_exp_f32 {v(S+k)}, {v(S+k)}")
            if k == 0 and t+1 <= 8: qk(t+1,0,C2(t+1))
            if k == 4 and t+1 <= 8: qk(t+1,1,None)
            if k == 5 and t+2 <= 8: rdK(t+2)
            if k == 8 and t >= 1: pv(t-1,0)
            if k == 12 and t >= 1: pv(t-1,1)
        for k in range(8): p(f"v_cvt_pk_bf16_f32 {v(PB[t&1]+k)}, {v(S+2*k)}, {v(S+2*k+1)}")
    pv(8,0); pv(8,1)
    p("s_waitcnt lgkmcnt(0)")
    stamp(p, 5)
    p("s_barrier")
    p(f"v_add_u32 v12, {LDS_RED}, {v(vL16)}")
    RB = 64
    for w2 in range(4):
        for k in range(3): p(f"ds_read_b128 {v(RB+12*w2+4*k,4)}, v12 offset:{w2*3072+1024*k}")
    vOo, vOt = 8, 9
    p(f"s_lshl_b32 s36, {s(sR)}, 4")
    p(f"s_lshl_b32 s37, {s(sWV)}, 1")
    p("s_add_u32 s36, s36, s37")
    p("s_mul_i32 s36, s36, 40960")
    p(f"s_lshr_b32 s37, {s(sH)}, 1")
    p("s_mul_i32 s37, s37, 5")
    p(f"s_and_b32 s38, {s(sH)}, 1")
    p("s_lshl_b32 s39, s38, 1")
    p("s_add_u32 s39, s39, s37")
    p("s_lshl_b32 s39, s39, 8")
    p("s_add_u32 s39, s39, s36")
    p(f"s_add_u32 s39, s39, {WS_OF}")
    p("s_add_u32 s37, s37, 4")
    p("s_lshl_b32 s37, s37, 8")
    p("s_lshl_b32 s38, s38, 3")
    p("s_add_u32 s37, s37, s38")
    p("s_add_u32 s37, s37, s36")
    p(f"s_add_u32 s37, s37, {WS_OF}")
    p("v_bfe_u32 v13, v2, 4, 1")
    p("s_mov_b32 s38, 40960")
    p("v_and_b32 v14, 15, v2")
    p("v_lshlrev_b32 v14, 4, v14")
    p(f"v_mad_u32_u24 {v(vOt)}, v13, s38, v14")
    p(f"v_lshl_add_u32 {v(vOo)}, {v(vHH)}, 8, {v(vOt)}")
    def oepi(A, s_main, s_tail, eps):
        p(f"v_mov_b32 v13, {v(A+8)}")
        p(f"v_mov_b32 v14, {v(A+8)}")
        p("v_permlane32_swap_b32 v13, v14")
        if eps: p(f"v_add_f32 v14, {f32(EPS)}, v14")
        p("v_rcp_f32 v14, v14")
        for k in range(12): p(f"v_mul_f32 {v(A+k)}, v14, {v(A+k)}")
        E = 128
        for k in range(6): p(f"v_cvt_pk_bf16_f32 {v(E+k)}, {v(A+2*k)}, {v(A+2*k+1)}")
        p(f"buffer_store_dwordx4 {v(E,4)}, {v(vOo)}, {s(SWS,4)}, {s(s_main)} offen")
        p("s_mov_b32 exec_hi, 0")
        p(f"buffer_store_dwordx2 {v(E+4,2)}, {v(vOt)}, {s(SWS,4)}, {s(s_tail)} offen")
        p("s_mov_b32 exec_hi, -1")
    oepi(O, 39, 37, False)
    for w2 in range(1, 4):
        for k in range(12): p(f"v_add_f32 {v(RB+k)}, {v(RB+k)}, {v(RB+12*w2+k)}")
    for w2 in range(4, 8):
        for k in range(3): p(f"ds_read_b128 {v(RB+12+12*((w2-4)%3)+4*k,4)}, v12 offset:{w2*3072+1024*k}") if w2 < 7 else None
    T = 176; U = 188
    p(f"s_mov_b32 s53, {f32(LOG2E)}")
    p(f"s_mov_b32 s54, {f32(EPS)}")
    for k in range(6):
        p(f"v_lshlrev_b32 {v(T+2*k)}, 16, {v(PQR+k)}")
        p(f"v_and_b32 {v(T+2*k+1)}, 0xffff0000, {v(PQR+k)}")
    for k in range(12): p(f"v_mul_f32 {v(U+k)}, s53, {v(T+k)}")
    for k in range(12): p(f"v_min_f32 {v(U+k)}, 0, {v(U+k)}")
    for k in range(12): p(f"v_exp_f32 {v(U+k)}, {v(U+k)}")
    for k in range(12): p(f"v_max_f32 {v(T+k)}, 0, {v(T+k)}")
    for k in range(12): p(f"v_add_f32 {v(T+k)}, {v(T+k)}, {v(U+k)}")
    for k in range(12): p(f"v_add_f32 {v(T+k)}, s54, {v(T+k)}")
    PQ = 16
    for k in range(6): p(f"v_cvt_pk_bf16_f32 {v(PQ+k)}, {v(T+2*k)}, {v(T+2*k+1)}")
    p(f"v_mov_b32 {v(PQ+6)}, 0"); p(f"v_mov_b32 {v(PQ+7)}, 0")
    for w2 in range(3):
        for k in range(12): p(f"v_add_f32 {v(RB+k)}, {v(RB+k)}, {v(RB+12+12*w2+k)}")
    for k in range(3): p(f"ds_read_b128 {v(RB+12+4*k,4)}, v12 offset:{7*3072+1024*k}")
    for k in range(12): p(f"v_add_f32 {v(RB+k)}, {v(RB+k)}, {v(RB+12+k)}")
    KVF = 112
    for k in range(6): p(f"v_cvt_pk_bf16_f32 {v(KVF+k)}, {v(RB+2*k)}, {v(RB+2*k+1)}")
    p(f"v_mov_b32 {v(KVF+6)}, 0"); p(f"v_mov_b32 {v(KVF+7)}, 0")
    N = 160
    p(f"v_mfma_f32_32x32x16_bf16 {v(N,16)}, {v(KVF,4)}, {v(PQ,4)}, 0")
    p(f"v_mfma_f32_32x32x16_bf16 {v(N,16)}, {v(KVF+4,4)}, {v(PQ+4,4)}, {v(N,16)}")
    for k in range(4): p(f"v_lshl_or_b32 {v(WOR+k)}, {v(WOH+k)}, 16, {v(WOR+k)}")
    p(f"buffer_store_dwordx4 {v(WOR,4)}, {v(vL16)}, {s(SWS,4)}, {s(sWFo)} offen")
    A0 = 32
    for k in range(5):
        p(f"v_lshlrev_b32 {v(A0+4*k)}, 16, {v(GX+k)}")
        p(f"v_and_b32 {v(A0+4*k+1)}, 0xffff0000, {v(GX+k)}")
        p(f"v_lshlrev_b32 {v(A0+4*k+2)}, 16, {v(GWt+k)}")
        p(f"v_and_b32 {v(A0+4*k+3)}, 0xffff0000, {v(GWt+k)}")
    for k in range(5):
        p(f"v_mul_f32 {v(A0+4*k)}, {v(A0+4*k)}, {v(A0+4*k+2)}")
        p(f"v_mul_f32 {v(A0+4*k+1)}, {v(A0+4*k+1)}, {v(A0+4*k+3)}")
    for k in range(5): p(f"v_cvt_pk_bf16_f32 {v(A0+4*k+2)}, {v(A0+4*k)}, {v(A0+4*k+1)}")
    for k in range(5):
        p(f"v_lshlrev_b32 {v(A0+4*k)}, 16, {v(A0+4*k+2)}")
        p(f"v_and_b32 {v(A0+4*k+1)}, 0xffff0000, {v(A0+4*k+2)}")
    for k in range(5): p(f"v_add_f32 {v(A0+4*k)}, {v(A0+4*k)}, {v(A0+4*k+1)}")
    p(f"v_add_f32 {v(A0)}, {v(A0)}, {v(A0+4)}")
    p(f"v_add_f32 {v(A0+8)}, {v(A0+8)}, {v(A0+12)}")
    p(f"v_add_f32 {v(A0)}, {v(A0)}, {v(A0+16)}")
    p(f"v_add_f32 {v(A0)}, {v(A0)}, {v(A0+8)}")
    p("s_add_u32 s39, s39, 20480")
    p("s_add_u32 s37, s37, 20480")
    oepi(N, 39, 37, True)
    G = A0
    for sh in (1, 2, 4, 8): p(f"v_add_f32_dpp {v(G)}, {v(G)}, {v(G)} row_shr:{sh} row_mask:0xf bank_mask:0xf")
    p(f"v_add_f32_dpp {v(G)}, {v(G)}, {v(G)} row_bcast:15 row_mask:0xa bank_mask:0xf")
    p(f"v_add_f32_dpp {v(G)}, {v(G)}, {v(G)} row_bcast:31 row_mask:0xc bank_mask:0xf")
    p(f"v_cvt_pk_bf16_f32 {v(G)}, {v(G)}, {v(G)}")
    p(f"v_lshlrev_b32 {v(G)}, 16, {v(G)}")
    p(f"v_mul_f32 {v(G)}, s53, {v(G)}")
    p(f"v_exp_f32 {v(G)}, -{v(G)}")
    p(f"v_add_f32 {v(G)}, 1.0, {v(G)}")
    p(f"v_rcp_f32 {v(G)}, {v(G)}")
    p(f"v_cvt_pk_bf16_f32 {v(G)}, {v(G)}, {v(G)}")
    p(f"v_lshlrev_b32 {v(G)}, 16, {v(G)}")
    p(f"v_sub_f32 {v(G+1)}, 1.0, {v(G)}")
    p(f"v_cvt_pk_bf16_f32 {v(G+1)}, {v(G+1)}, {v(G+1)}")
    p(f"v_lshlrev_b32 {v(G+1)}, 16, {v(G+1)}")
    p(f"s_lshl_b32 s36, {s(sGR)}, 3")
    p(f"s_add_u32 s36, s36, {WS_G}")
    p("v_mov_b32 v12, 0")
    p("s_mov_b32 exec_lo, 0")
    p("s_mov_b32 exec_hi, 0x80000000")
    p(f"buffer_store_dwordx2 {v(G,2)}, v12, {s(SWS,4)}, s36 offen")
    stamp(p, 6)
    if STAMP: p("s_waitcnt vmcnt(0)")
    stamp(p, 7)
    stamp_flush(p, 1, SWS, 8, sWV)
    p.label("K2_end")
    p("s_endpgm")
    p.pad()
    return p.text(), dict(name="k2_kernel", vgpr=221, sgpr=100, grid=256, block=512, lds=LDS_RED + 8*3072)

def gen_k3():
    p = Prog()
    header(p, "k3_kernel")
    p.stv = 227
    SWS, SO = 8, 12
    sWV, sRT, sCT = 16, 17, 18
    p("s_cmp_ge_u32 s2, 256")
    p("s_cbranch_scc1 K3_end")
    stamp(p, 0)
    p("s_load_dwordx2 s[4:5], s[0:1], 56")
    p("s_load_dwordx2 s[6:7], s[0:1], 72")
    p("v_lshrrev_b32 v1, 6, v0")
    p("v_and_b32 v2, 63, v0")
    p(f"v_readfirstlane_b32 {s(sWV)}, v1")
    p("s_and_b32 s20, s2, 7")
    p("s_lshr_b32 s21, s2, 3")
    p("s_lshr_b32 s22, s20, 1")
    p("s_lshl_b32 s22, s22, 3")
    p("s_lshr_b32 s23, s21, 2")
    p(f"s_add_u32 {s(sRT)}, s22, s23")
    p("s_and_b32 s22, s20, 1")
    p("s_lshl_b32 s22, s22, 2")
    p("s_and_b32 s23, s21, 3")
    p(f"s_add_u32 {s(sCT)}, s22, s23")
    p(f"s_mul_i32 s20, {s(sWV)}, 10240")
    p("v_lshlrev_b32 v3, 4, v2")
    p("v_add_u32 v3, s20, v3")
    p("v_add_u32 v4, 4096, v3")
    p("v_add_u32 v5, 8192, v3")
    sA, sB = 24, 28
    p(f"s_mul_i32 s20, {s(sRT)}, {4*40960}")
    for i in range(4): p(f"s_add_u32 {s(sA+i)}, s20, {WS_OF + i*40960}")
    p(f"s_mul_i32 s20, {s(sCT)}, {5*40960}")
    for j in range(5): p(f"s_add_u32 {s(sB+j)}, s20, {WS_WF + j*40960}")
    p("s_waitcnt lgkmcnt(0)")
    srd(p, SWS, 6, WS_SIZE)
    NB = 6
    FB = 8
    def ld(ks):
        b = FB + 36*(ks % NB)
        vo = v(3 + ks // 4); im = (ks % 4) * 1024
        for j in range(5):
            if j < 4: p(f"buffer_load_dwordx4 {v(b+4*j,4)}, {vo}, {s(SWS,4)}, {s(sA+j)} offen offset:{im}")
            p(f"buffer_load_dwordx4 {v(b+16+4*j,4)}, {vo}, {s(SWS,4)}, {s(sB+j)} offen offset:{im}")
    stamp(p, 1)
    for ks in range(NB): ld(ks)
    stamp(p, 2)
    srd(p, SO, 4, 2048*1280)
    vGT = 6
    p("v_lshrrev_b32 v1, 2, v0")
    p("v_lshlrev_b32 v224, 3, v1") if False else None
    p(f"s_lshl_b32 s20, {s(sRT)}, 9")
    p(f"s_add_u32 s20, s20, {WS_G}")
    GV = FB + 36*NB
    p(f"v_lshlrev_b32 {v(GV+2)}, 3, v1")
    p(f"buffer_load_dwordx2 {v(GV,2)}, {v(GV+2)}, {s(SWS,4)}, s20 offen")
    for ks in range(10):
        b = FB + 36*(ks % NB)
        for j in range(5):
            for i in range(4):
                A = (j*4+i)*4
                p(f"v_mfma_f32_16x16x32_bf16 {a(A,4)}, {v(b+16+4*j,4)}, {v(b+4*i,4)}, {'0' if ks==0 else a(A,4)}")
        if ks + NB < 10: ld(ks + NB)
        if ks == 0: stamp(p, 3)
    stamp(p, 4)
    RS = 336
    p("v_and_b32 v3, 15, v2")
    p(f"v_mul_u32_u24 v3, {RS}, v3")
    p("v_lshrrev_b32 v4, 4, v2")
    p("v_lshl_add_u32 v3, v4, 4, v3")
    p(f"s_mul_i32 s20, {s(sWV)}, {64*RS}")
    p("v_add_u32 v3, s20, v3")
    for j in range(5):
        for i in range(4):
            A = (j*4+i)*4
            p(f"ds_write_b128 v3, {a(A,4)} offset:{i*16*RS + j*64}")
    p(f"v_mul_u32_u24 v4, {RS}, v1")
    p("v_and_b32 v5, 3, v0")
    p("v_mul_u32_u24 v7, 80, v5")
    p("v_add_u32 v4, v4, v7")
    p(f"v_add_u32 v7, {2*64*RS}, v4")
    p("s_waitcnt lgkmcnt(0)")
    p("s_barrier")
    stamp(p, 5)
    R = 8
    for w in range(4):
        for c in range(5):
            p(f"ds_read_b128 {v(R+20*w+4*c,4)}, {v(4 if w < 2 else 7)} offset:{(w&1)*64*RS + 16*c}")
    p("s_movk_i32 s20, 1280")
    p("v_mul_u32_u24 v5, 40, v5")
    p("v_mad_u32_u24 v5, v1, s20, v5")
    p(f"s_mul_i32 s21, {s(sRT)}, {64*1280}")
    p(f"s_mul_i32 s22, {s(sCT)}, 160")
    p("s_add_u32 s21, s21, s22")
    for k in range(20): p(f"v_add_f32 {v(R+k)}, {v(R+k)}, {v(R+20+k)}")
    for k in range(20): p(f"v_mul_f32 {v(R+k)}, {v(GV)}, {v(R+k)}")
    for k in range(20): p(f"v_add_f32 {v(R+40+k)}, {v(R+40+k)}, {v(R+60+k)}")
    for k in range(20): p(f"v_fmac_f32 {v(R+k)}, {v(GV+1)}, {v(R+40+k)}")
    E = 96
    for k in range(10): p(f"v_cvt_pk_bf16_f32 {v(E+k)}, {v(R+2*k)}, {v(R+2*k+1)}")
    p(f"buffer_store_dwordx4 {v(E,4)}, v5, {s(SO,4)}, s21 offen")
    p(f"buffer_store_dwordx4 {v(E+4,4)}, v5, {s(SO,4)}, s21 offen offset:16")
    p(f"buffer_store_dwordx2 {v(E+8,2)}, v5, {s(SO,4)}, s21 offen offset:32")
    stamp(p, 6)
    if STAMP: p("s_waitcnt vmcnt(0)")
    stamp(p, 7)
    stamp_flush(p, 2, SWS, 8, sWV)
    p.label("K3_end")
    p("s_endpgm")
    p.pad()
    return p.text(), dict(name="k3_kernel", vgpr=228+80, arch=228, sgpr=100, grid=256, block=256, lds=4*64*RS)
```

```python
import math, struct, sys
from asmlib import *

NAME = "gated_mix__sliding_block__linear_attn_block__prompt"
WS_QA=0x000000; WS_KA=0x300000; WS_VA=0x600000; WS_QB=0x900000; WS_KVP=0xC00000
WS_OF=0xE00000; WS_WF=0x1300000; WS_G=0x1500000; WS_SIZE=0x1600000

def f32(x): return "0x%08x" % struct.unpack('<I', struct.pack('<f', x))[0]
LOG2E = math.log2(math.e)
QSCALE = (20 ** -0.5) * LOG2E
EPS = 1e-6
NEG = -1e30

def srd(p, d, base, nbytes):
    p(f"s_mov_b32 {s(d)}, {s(base)}")
    p(f"s_and_b32 {s(d+1)}, {s(base+1)}, 0xffff")
    p(f"s_mov_b32 {s(d+2)}, {nbytes}")
    p(f"s_mov_b32 {s(d+3)}, 0x20000")

import os
STAMP = int(os.environ.get('STAMP', '0'))
WS_DBG = 0x1580000
STV = {}
def stamp(p, i, sreg=None):
    if not STAMP: return
    p("s_memrealtime s[78:79]")
    p("s_waitcnt lgkmcnt(0)")
    if sreg is None:
        p(f"v_writelane_b32 {v(p.stv)}, s78, {i}")
    else:
        p(f"s_mov_b32 s79, m0")
        p(f"s_add_u32 m0, {s(sreg)}, {i}")
        p("s_nop 1")
        p(f"v_writelane_b32 {v(p.stv)}, s78, m0")
        p(f"s_mov_b32 m0, s79")
def stampc(p, i):
    if not STAMP: return
    p("s_memtime s[78:79]")
    p("s_waitcnt lgkmcnt(0)")
    p(f"v_writelane_b32 {v(p.stv)}, s78, {i}")
def stamp_flush(p, kidx, srdreg, n, wavereg):
    if not STAMP: return
    lab = f"STK{kidx}_{len(p.ins)}"
    p("s_getreg_b32 s78, hwreg(HW_REG_XCC_ID)")
    p(f"v_writelane_b32 {v(p.stv)}, s78, 29")
    p("s_getreg_b32 s78, hwreg(HW_REG_HW_ID)")
    p(f"v_writelane_b32 {v(p.stv)}, s78, 28")
    p(f"s_cmp_lg_u32 {s(wavereg)}, 0")
    p(f"s_cbranch_scc1 {lab}")
    p("s_mov_b32 exec_lo, -1")
    p("s_mov_b32 exec_hi, 0")
    p("s_lshl_b32 s78, s2, 7")
    p(f"s_add_u32 s78, s78, {WS_DBG + kidx*0x8000}")
    p("v_mbcnt_lo_u32_b32 v1, -1, 0")
    p("v_lshlrev_b32 v1, 2, v1")
    p(f"buffer_store_dword {v(p.stv)}, v1, {s(srdreg,4)}, s78 offen")
    p.label(lab)

def header(p, name):
    p.raw(f".globl {name}")
    p.raw(".p2align 8")
    p.raw(f".type {name},@function")
    p.label(name)

def gen_k1():
    p = Prog()
    header(p, "k1_kernel")
    p.stv = 176
    SX, SW, SWS = 12, 16, 20
    sRT, sHG, sBR, sST, sKC, sOX, sOW, sSLI, sSLC, sWV = 24, 25, 26, 27, 28, 29, 30, 31, 32, 33
    sMH, sNG = 41, 42
    sINIT, sSCL, sFLG = 44, 48, 52
    sM0X, sM0W = 56, 57
    p("s_cmp_ge_u32 s2, 256")
    p("s_cbranch_scc1 K1_end")
    stamp(p, 0)
    p("s_load_dwordx4 s[4:7], s[0:1], 0")
    p("s_load_dwordx2 s[8:9], s[0:1], 32")
    p("s_load_dwordx2 s[10:11], s[0:1], 72")
    p("v_lshrrev_b32 v1, 6, v0")
    p("v_and_b32 v2, 63, v0")
    p(f"v_readfirstlane_b32 {s(sWV)}, v1")
    p("s_and_b32 s34, s2, 7")
    p("s_lshr_b32 s35, s2, 3")
    p("s_lshr_b32 s36, s34, 2")
    p("s_and_b32 s37, s34, 3")
    p("s_lshr_b32 s38, s35, 2")
    p("s_and_b32 s39, s35, 3")
    p(f"s_lshl_b32 {s(sRT)}, s36, 3")
    p(f"s_add_u32 {s(sRT)}, {s(sRT)}, s38")
    p(f"s_lshr_b32 {s(sBR)}, s39, 1")
    p(f"s_and_b32 {s(sHG)}, s39, 1")
    p("s_lshl_b32 s40, s37, 1")
    p(f"s_add_u32 {s(sHG)}, {s(sHG)}, s40")
    p("s_mov_b32 s58, s38")
    p("s_mov_b32 s59, s39")
    p(f"s_lshr_b32 {s(sMH)}, {s(sWV)}, 2")
    p(f"s_and_b32 {s(sNG)}, {s(sWV)}, 3")
    vXO, vWO = 4, 6
    p("v_lshrrev_b32 v3, 3, v2")
    p("v_and_b32 v10, 7, v2")
    p("v_xor_b32 v10, v10, v3")
    p("v_lshlrev_b32 v10, 4, v10")
    p("s_movk_i32 s40, 1280")
    p(f"v_mad_u32_u24 {v(vXO)}, v3, s40, v10")
    p(f"s_lshl_b32 s34, {s(sRT)}, 7")
    p(f"s_lshl_b32 s35, {s(sWV)}, 4")
    p("s_add_u32 s34, s34, s35")
    p("s_mul_i32 s34, s34, 1280")
    p(f"v_add_u32 {v(vXO)}, s34, {v(vXO)}")
    p(f"v_add_u32 {v(vXO+1)}, 9216, {v(vXO)}")
    p("v_lshrrev_b32 v3, 5, v2")
    p("v_bfe_u32 v10, v2, 1, 4")
    p("v_and_b32 v11, 1, v2")
    p("v_lshlrev_b32 v11, 4, v11")
    p("s_movk_i32 s35, 3840")
    p("v_mad_u32_u24 v11, v3, s35, v11")
    p(f"s_and_b32 s36, {s(sWV)}, 1")
    p("s_lshl_b32 s36, s36, 2")
    p(f"s_mul_i32 s37, {s(sWV)}, {8*3840}")
    p(f"s_mul_i32 s38, {s(sHG)}, 160")
    p("s_add_u32 s37, s37, s38")
    p("v_mov_b32 v16, 0x40000000")
    for i in range(2):
        p(f"v_or_b32 v12, s36, v3")
        if i: p("v_or_b32 v12, 2, v12")
        p("v_xor_b32 v12, v12, v10")
        p("v_mul_u32_u24 v13, 52, v12")
        p("v_lshrrev_b32 v13, 8, v13")
        p("v_mul_u32_u24 v14, 5, v13")
        p("v_sub_u32 v14, v12, v14")
        p("v_lshl_add_u32 v14, v14, 5, v11")
        p("v_mad_u32_u24 v14, v13, s40, v14")
        p(f"v_add_u32 v14, s37, v14")
        if i: p(f"v_add_u32 v14, {2*3840-1024}, v14")
        p("v_cmp_eq_u32 vcc, 15, v12")
        p(f"v_cndmask_b32 {v(vWO+i)}, v14, v16, vcc")
        p(f"v_add_u32 {v(vWO+2+i)}, 13312, {v(vWO+i)}")
    p("s_waitcnt lgkmcnt(0)")
    srd(p, SX, 4, 2048*1280)
    p(f"s_cmp_eq_u32 {s(sBR)}, 0")
    p("s_cselect_b32 s6, s6, s8")
    p("s_cselect_b32 s7, s7, s9")
    srd(p, SW, 6, 640*3840)
    srd(p, SWS, 10, WS_SIZE)
    p(f"s_lshl_b32 {s(sM0X)}, {s(sWV)}, 11")
    p(f"s_lshl_b32 {s(sM0W)}, {s(sWV)}, 12")
    p(f"s_add_u32 {s(sM0W)}, {s(sM0W)}, 16384")
    p(f"s_mov_b32 {s(sSLI)}, 0")
    p(f"s_mov_b32 {s(sOX)}, 0")
    p(f"s_mov_b32 {s(sOW)}, 0")
    def issue_steps():
        g = []
        g.append([f"s_add_u32 m0, {s(sSLI)}, {s(sM0X)}", "s_nop 0",
                  f"buffer_load_dwordx4 {v(vXO)}, {s(SX,4)}, {s(sOX)} offen lds"])
        g.append([f"buffer_load_dwordx4 {v(vXO+1)}, {s(SX,4)}, {s(sOX)} offen offset:1024 lds"])
        g.append([f"s_add_u32 m0, {s(sSLI)}, {s(sM0W)}", f"s_add_u32 {s(sOX)}, {s(sOX)}, 128",
                  f"buffer_load_dwordx4 {v(vWO)}, {s(SW,4)}, {s(sOW)} offen lds"])
        for i in range(1, 4):
            g.append([f"buffer_load_dwordx4 {v(vWO+i)}, {s(SW,4)}, {s(sOW)} offen offset:{i*1024} lds"])
        g[-1] += [f"s_add_u32 {s(sOW)}, {s(sOW)}, 245760", f"s_add_u32 {s(sSLI)}, {s(sSLI)}, 49152",
                  f"s_cmp_eq_u32 {s(sSLI)}, 147456", f"s_cselect_b32 {s(sSLI)}, 0, {s(sSLI)}"]
        return g
    def issue():
        for g in issue_steps():
            for t in g: p(t)
    stamp(p, 1)
    for _ in range(3): issue()
    p("v_lshrrev_b32 v24, 3, v2")
    p("v_and_b32 v25, 7, v2")
    p("s_mul_i32 s34, s58, 56")
    p(f"s_mul_i32 s35, {s(sWV)}, 7")
    p("s_add_u32 s34, s34, s35")
    p("s_add_u32 s34, s34, 192")
    p("s_mul_i32 s34, s34, 3840")
    p(f"s_mul_i32 s35, {s(sHG)}, 160")
    p("s_add_u32 s34, s34, s35")
    p("v_lshrrev_b32 v26, 1, v25")
    p("v_mul_u32_u24 v26, 1280, v26")
    p("v_and_b32 v27, 1, v25")
    p("v_mul_u32_u24 v27, 156, v27")
    p("v_add_u32 v26, v26, v27")
    p("s_movk_i32 s35, 3840")
    p("v_mad_u32_u24 v26, v24, s35, v26")
    p("v_cmp_gt_u32 vcc, 6, v25")
    p("v_cndmask_b32 v26, v16, v26, vcc")
    p("v_cmp_gt_u32 vcc, 7, v24")
    p("v_cndmask_b32 v26, v16, v26, vcc")
    p(f"buffer_load_dword v28, v26, {s(SW,4)}, s34 offen")
    p(f"s_cmp_gt_u32 {s(sWV)}, 3")
    p("s_cbranch_scc1 K1_pf_other")
    p(f"s_lshl_b32 s34, {s(sRT)}, 7")
    p("s_lshl_b32 s35, s59, 5")
    p("s_add_u32 s34, s34, s35")
    p(f"s_lshl_b32 s35, {s(sWV)}, 3")
    p("s_add_u32 s34, s34, s35")
    p("s_mul_i32 s34, s34, 1280")
    p("v_lshlrev_b32 v26, 7, v25")
    p("v_mad_u32_u24 v26, v24, s40, v26")
    p(f"buffer_load_dword v29, v26, {s(SX,4)}, s34 offen offset:256")
    p("s_branch K1_pf_done")
    p.label("K1_pf_other")
    p("s_getpc_b64 s[60:61]")
    p.label("K1_pc")
    p(f"s_sub_u32 s34, {s(sWV)}, 4")
    p("s_lshl_b32 s34, s34, 13")
    p("v_lshlrev_b32 v26, 7, v2")
    p("v_add_u32 v26, s34, v26")
    p("v_min_u32 v26, CODE_END-K1_pc-4, v26")
    p("global_load_dword v29, v26, s[60:61]")
    p.label("K1_pf_done")
    stamp(p, 2)
    vXS, vWS, vXA, vWA = 10, 12, 16, 18
    vG, vM = 22, 23
    p(f"v_lshrrev_b32 {v(vG)}, 4, v2")
    p(f"v_and_b32 {v(vM)}, 15, v2")
    p("v_and_b32 v3, 7, v2")
    p(f"v_xor_b32 v3, v3, {v(vG)}")
    p("v_lshlrev_b32 v3, 4, v3")
    p(f"v_lshl_add_u32 v3, {v(vM)}, 7, v3")
    p(f"s_lshl_b32 s34, {s(sMH)}, 13")
    p(f"v_add_u32 {v(vXS)}, s34, v3")
    p(f"v_xor_b32 {v(vXS+1)}, 64, {v(vXS)}")
    p("v_bfe_u32 v3, v2, 2, 2")
    p(f"v_and_b32 v24, 1, {v(vG)}")
    p("v_lshl_or_b32 v24, v24, 2, v3")
    p(f"v_lshl_add_u32 v25, {v(vG)}, 3, v3")
    p("v_lshlrev_b32 v25, 9, v25")
    p("v_and_b32 v26, 3, v2")
    p("v_lshl_add_u32 v25, v26, 3, v25")
    p("v_add_u32 v25, 16384, v25")
    p(f"s_lshl_b32 s34, {s(sNG)}, 2")
    for jj in range(4):
        p(f"s_add_u32 s35, s34, {jj}")
        p(f"v_xor_b32 v26, s35, v24")
        p(f"v_lshl_add_u32 {v(vWS+jj)}, v26, 5, v25")
        p("s_sub_u32 s36, s35, 5")
        p("s_cmp_lt_u32 s36, 5")
        p(f"s_cselect_b32 {s(sFLG+jj)}, {s(sBR)}, 0")
        p(f"s_mul_i32 {s(sINIT+jj)}, {s(sFLG+jj)}, {f32(EPS)}")
        p("s_cmp_lt_u32 s35, 5")
        p("s_cselect_b32 s36, 1, 0")
        p(f"s_andn2_b32 s36, s36, {s(sBR)}")
        p("s_cmp_eq_u32 s36, 1")
        p(f"s_cselect_b32 {s(sSCL+jj)}, {f32(QSCALE)}, 1.0")
    ACC = 32
    FX = [96, 128]
    FW = [112, 144]
    for jj in range(4):
        for k in range(16):
            p(f"v_mov_b32 {v(ACC+jj*16+k)}, {s(sINIT+jj)}")
    p(f"s_mov_b32 {s(sST)}, 0")
    p(f"s_mov_b32 {s(sSLC)}, 0")
    X_NOLDS = os.environ.get('K1_NOLDS'); X_NOMFMA = os.environ.get('K1_NOMFMA')
    def rdx(ks, i):
        if not X_NOLDS or X_NOLDS == 'w': p(f"ds_read_b128 {v(FX[ks]+4*i,4)}, {v(vXA+ks)} offset:{i*2048}")
    def rdw(ks, jj, h):
        if not X_NOLDS or X_NOLDS == 'x': p(f"ds_read_b64_tr_b16 {v(FW[ks]+4*jj+2*h,2)}, {v(vWA+jj)} offset:{ks*16384+h*2048}")
    def mm(ks, jj, i):
        A = ACC + (jj*4+i)*4
        p(f"v_mfma_f32_16x16x32_bf16 {v(A,4)}, {v(FW[ks]+4*jj,4)}, {v(FX[ks]+4*i,4)}, {v(A,4)}")
    def reads(ks):
        rdw(ks,0,0); rdw(ks,0,1)
        for i in range(4): rdx(ks,i)
        for jj in range(1,4): rdw(ks,jj,0); rdw(ks,jj,1)
    def setaddr():
        for k in range(2): p(f"v_add_u32 {v(vXA+k)}, {s(sSLC)}, {v(vXS+k)}")
        for k in range(4): p(f"v_add_u32 {v(vWA+k)}, {s(sSLC)}, {v(vWS+k)}")
    setaddr()
    p("s_waitcnt vmcnt(14)")
    p("s_barrier")
    stamp(p, 3)
    stampc(p, 30)
    p.forget()
    reads(0)
    p.label("K1_loop")
    stamp(p, 8, sST)
    reads(1)
    for jj in range(4):
        for i in range(4): mm(0,jj,i)
    p(f"s_add_u32 {s(sSLC)}, {s(sSLC)}, 49152")
    p(f"s_cmp_eq_u32 {s(sSLC)}, 147456")
    p(f"s_cselect_b32 {s(sSLC)}, 0, {s(sSLC)}")
    p(f"s_cmp_gt_u32 {s(sST)}, 6")
    p(f"s_cselect_b32 {s(sOX)}, 0x40000000, {s(sOX)}")
    p(f"s_cselect_b32 {s(sOW)}, 0x40000000, {s(sOW)}")
    p(f"s_cmp_lt_u32 {s(sST)}, 2")
    p("s_waitcnt lgkmcnt(0)")
    setaddr()
    p("s_cbranch_scc1 K1_w8")
    p("s_waitcnt vmcnt(6)")
    p.label("K1_w8")
    p("s_waitcnt vmcnt(8)")
    p("s_barrier")
    reads(0)
    steps = issue_steps()
    if os.environ.get('K1_NODMA'): steps = []
    n = 0
    for jj in range(4):
        for i in range(4):
            mm(1,jj,i)
            n += 1
            if n % 2 == 1 and steps:
                for t in steps.pop(0): p(t)
    p(f"s_add_u32 {s(sST)}, {s(sST)}, 1")
    p(f"s_cmp_lt_u32 {s(sST)}, 10")
    p("s_cbranch_scc1 K1_loop")
    p("s_waitcnt vmcnt(0) lgkmcnt(0)")
    p("s_barrier")
    stamp(p, 4)
    stampc(p, 31)
    vIM = 4
    p(f"s_lshl_b32 s34, {s(sMH)}, 6")
    p(f"v_add_u32 v3, s34, {v(vM)}")
    p("v_mul_u32_u24 v3, 48, v3")
    p(f"s_lshl_b32 s34, {s(sNG)}, 4")
    p("s_movk_i32 s36, 6144")
    for jj in range(4):
        p(f"s_add_u32 s35, s34, {4*jj}")
        p(f"v_add_u32 v8, s35, {v(vG)}")
        p("v_mul_u32_u24 v9, 52, v8")
        p("v_lshrrev_b32 v9, 8, v9")
        p("v_mul_u32_u24 v10, 5, v9")
        p("v_sub_u32 v10, v8, v10")
        p("v_lshl_add_u32 v10, v10, 3, v3")
        p(f"v_mad_u32_u24 {v(vIM+jj)}, v9, s36, v10")
    p("v_lshrrev_b32 v8, 7, v0")
    p("v_and_b32 v9, 127, v0")
    p("v_mul_u32_u24 v9, 48, v9")
    p("v_mad_u32_u24 v8, v8, s36, v9")
    p("v_mov_b32 v10, 0x3f80")
    p("v_mov_b32 v11, 0")
    p("v_mov_b32 v12, 0")
    p("v_mov_b32 v13, 0")
    p("ds_write_b64 v8, v[10:11] offset:40")
    p(f"ds_write_b64 v8, v[12:13] offset:{40+24576}")
    p(f"ds_write_b64 v8, v[10:11] offset:{40+49152}")
    p(f"s_mov_b32 s37, {f32(LOG2E)}")
    p(f"s_mov_b32 s38, {f32(EPS)}")
    T = 96
    for jj in range(4):
        A = ACC + jj*16
        p(f"s_cmp_eq_u32 {s(sFLG+jj)}, 0")
        p(f"s_cbranch_scc1 K1_nophi{jj}")
        for k in range(16): p(f"v_mul_f32 {v(T+k)}, s37, {v(A+k)}")
        for k in range(16): p(f"v_min_f32 {v(T+k)}, 0, {v(T+k)}")
        for k in range(16): p(f"v_exp_f32 {v(T+k)}, {v(T+k)}")
        for k in range(16): p(f"v_max_f32 {v(A+k)}, s38, {v(A+k)}")
        for k in range(16): p(f"v_add_f32 {v(A+k)}, {v(A+k)}, {v(T+k)}")
        p.label(f"K1_nophi{jj}")
        for k in range(16): p(f"v_mul_f32 {v(A+k)}, {s(sSCL+jj)}, {v(A+k)}")
        P = 112 + jj*8
        for k in range(8): p(f"v_cvt_pk_bf16_f32 {v(P+k)}, {v(A+2*k)}, {v(A+2*k+1)}")
        for i in range(4): p(f"ds_write_b64 {v(vIM+jj)}, {v(P+2*i,2)} offset:{i*768}")
    p("s_waitcnt lgkmcnt(0)")
    p("s_barrier")
    stamp(p, 5)
    p(f"s_mul_i32 s34, {s(sWV)}, 768")
    p("v_lshlrev_b32 v3, 4, v2")
    p("v_add_u32 v3, s34, v3")
    p(f"v_add_u32 v4, {6*6144}, v3")
    p(f"s_mul_i32 s34, {s(sHG)}, {4*98304}")
    p(f"s_mul_i32 s35, {s(sRT)}, 6144")
    p("s_add_u32 s34, s34, s35")
    p(f"s_mul_i32 s35, {s(sBR)}, {3*0x300000}")
    p("s_add_u32 s34, s34, s35")
    p("s_mov_b32 exec_hi, 0xffff")
    D = 32
    def rdblk(b):
        if b < 6: p(f"ds_read_b128 {v(D+4*b,4)}, v3 offset:{b*6144}")
        else: p(f"ds_read_b128 {v(D+4*b,4)}, v4 offset:{(b-6)*6144}")
    def stblk(b):
        off = (b//4)*0x300000 + (b%4)*98304
        p(f"s_add_u32 s35, s34, {off}")
        p(f"buffer_store_dwordx4 {v(D+4*b,4)}, v3, {s(SWS,4)}, s35 offen")
    for b in range(4): rdblk(b)
    p(f"s_cmp_eq_u32 {s(sBR)}, 0")
    p("s_cbranch_scc0 K1_bpath")
    p.begin_cond()
    for b in range(4,12): rdblk(b)
    for b in range(12): stblk(b)
    stamp(p, 6)
    if STAMP: p("s_waitcnt vmcnt(0)")
    stamp(p, 7)
    stamp_flush(p, 0, SWS, 8, sWV)
    p("s_endpgm")
    p.end_cond()
    p.label("K1_bpath")
    p("s_waitcnt lgkmcnt(0)")
    for b in range(4): stblk(b)
    p("s_mov_b32 exec_hi, -1")
    p(f"s_cmp_gt_u32 {s(sWV)}, 3")
    p("s_cbranch_scc1 K1_end")
    p("v_lshrrev_b32 v5, 5, v2")
    p("v_bfe_u32 v6, v2, 2, 2")
    p("v_lshl_add_u32 v5, v5, 3, v6")
    p("v_mul_u32_u24 v5, 48, v5")
    p("v_bfe_u32 v6, v2, 4, 1")
    p("v_lshl_add_u32 v5, v6, 5, v5")
    p("v_and_b32 v6, 3, v2")
    p("v_lshl_add_u32 v5, v6, 3, v5")
    p(f"s_add_u32 s35, {s(sWV)}, 4")
    p("s_mul_i32 s35, s35, 6144")
    p("v_add_u32 v5, s35, v5")
    KV = 96
    F = 112
    for t in range(8):
        for h in range(2): p(f"ds_read_b64_tr_b16 {v(F+8*t+2*h,2)}, v5 offset:{t*768+h*192}")
        for h in range(2): p(f"ds_read_b64_tr_b16 {v(F+8*t+4+2*h,2)}, v5 offset:{24576+t*768+h*192}")
        if t >= 2:
            tt = t-2
            p(f"v_mfma_f32_32x32x16_bf16 {v(KV,16)}, {v(F+8*tt,4)}, {v(F+8*tt+4,4)}, {'0' if tt==0 else v(KV,16)}")
    for tt in (6,7):
        p(f"v_mfma_f32_32x32x16_bf16 {v(KV,16)}, {v(F+8*tt,4)}, {v(F+8*tt+4,4)}, {v(KV,16)}")
    p(f"s_lshl_b32 s34, {s(sHG)}, 2")
    p(f"s_add_u32 s34, s34, {s(sWV)}")
    p("s_lshl_b32 s34, s34, 4")
    p(f"s_add_u32 s34, s34, {s(sRT)}")
    p("s_mul_i32 s34, s34, 3072")
    p(f"s_add_u32 s34, s34, {WS_KVP}")
    p("v_lshlrev_b32 v3, 4, v2")
    for q in range(3):
        p(f"buffer_store_dwordx4 {v(KV+4*q,4)}, v3, {s(SWS,4)}, s34 offen offset:{q*1024}")
    stamp(p, 6)
    if STAMP: p("s_waitcnt vmcnt(0)")
    stamp(p, 7)
    stamp_flush(p, 0, SWS, 8, sWV)
    p.label("K1_end")
    p("s_endpgm")
    p.pad()
    return p.text(), dict(name="k1_kernel", vgpr=177, sgpr=100, grid=256, block=512, lds=147456)

def descriptor(k):
    acc = (k.get('arch', k['vgpr']) + 3)//4*4
    return f""".p2align 6
.amdhsa_kernel {k['name']}
  .amdhsa_next_free_vgpr {k['vgpr']}
  .amdhsa_next_free_sgpr {k['sgpr']}
  .amdhsa_accum_offset {acc}
  .amdhsa_group_segment_fixed_size 0
  .amdhsa_kernarg_size 80
  .amdhsa_user_sgpr_count 2
  .amdhsa_user_sgpr_kernarg_segment_ptr 1
  .amdhsa_system_sgpr_workgroup_id_x 1
.end_amdhsa_kernel
"""

def build(kernels, path):
    ref = open(f"cdna_kernels/{NAME}.s.ref").read().splitlines()
    head = [l for l in ref if l.startswith(';') and '@launch' not in l and 'Override' not in l and 'grid=ceil' not in l]
    out = head[:]
    for _, k in kernels:
        out.append(f"; @launch kernel={k['name']} grid=({k['grid']},1,1) block=({k['block']},1,1) lds={k['lds']}")
    out.append('.amdgcn_target "amdgcn-amd-amdhsa--gfx950"')
    out.append('.text')
    txt = '\n'.join(out) + '\n'
    for t, _ in kernels: txt += t
    txt += "CODE_END:\n"
    txt += '.section .rodata,"a"\n'
    for _, k in kernels: txt += descriptor(k)
    open(path, 'w').write(txt)

if __name__ == '__main__':
    ks = [gen_k1()]
    try:
        from gen23 import gen_k2, gen_k3
        ks += [gen_k2(), gen_k3()]
    except ImportError:
        pass
    for i in range(int(os.environ.get('EMPTY', '0'))):
        ks.append((f".globl e{i}_kernel\n.p2align 8\n.type e{i}_kernel,@function\ne{i}_kernel:\n    s_endpgm\n", dict(name=f"e{i}_kernel", vgpr=8, sgpr=16, grid=256, block=256, lds=0)))
    out = sys.argv[1] if len(sys.argv) > 1 else f"cdna_kernels/{NAME}.s"
    build(ks, out)
    print("wrote", out)
```

```python
import re

def v(i, n=1):
    return f"v{i}" if n == 1 else f"v[{i}:{i+n-1}]"
def a(i, n=1):
    return f"a{i}" if n == 1 else f"a[{i}:{i+n-1}]"
def s(i, n=1):
    return f"s{i}" if n == 1 else f"s[{i}:{i+n-1}]"

_REG = re.compile(r"^(-|abs\()?([vas])(?:(\d+)|\[(\d+):(\d+)\])\)?$")
def regs_of(op):
    op = op.strip()
    if op == 'vcc': return {('s', 106), ('s', 107)}
    if op == 'vcc_lo': return {('s', 106)}
    if op == 'vcc_hi': return {('s', 107)}
    if op == 'exec': return {('s', 126), ('s', 127)}
    if op == 'exec_lo': return {('s', 126)}
    if op == 'exec_hi': return {('s', 127)}
    if op == 'm0': return {('s', 124)}
    m = _REG.match(op)
    if not m: return set()
    k = m.group(2)
    if m.group(3) is not None:
        return {(k, int(m.group(3)))}
    return {(k, i) for i in range(int(m.group(4)), int(m.group(5)) + 1)}

TRANS = ('v_exp_f32', 'v_log_f32', 'v_rcp_f32', 'v_rsq_f32', 'v_sqrt_f32', 'v_sin_f32', 'v_cos_f32')

class Ins:
    def __init__(self, text, cond=0):
        self.text = text
        self.cond = cond
        t = text.split(';')[0].strip()
        self.label = None
        self.op = None
        self.w = set(); self.r = set()
        self.kind = 'other'
        self.srcC = set(); self.srcAB = set()
        self.passes = 0
        self.target = None
        self.nops = 1
        if t.endswith(':'):
            self.label = t[:-1]; self.kind = 'label'; self.nops = 0
            return
        if t.startswith('.') or not t:
            self.kind = 'dir'; self.nops = 0
            return
        parts = t.split(None, 1)
        op = parts[0]; self.op = op
        rest = parts[1] if len(parts) > 1 else ''
        ops = [o.strip() for o in re.split(r",(?![^\[]*\])", rest)] if rest else []
        clean = []
        for o in ops:
            clean.append(o.split()[0] if o else o)
        self.ops = clean
        self.mods = rest
        R = regs_of
        if op.startswith('v_mfma'):
            self.kind = 'mfma'
            self.w = R(clean[0]); self.srcAB = R(clean[1]) | R(clean[2]); self.srcC = R(clean[3])
            self.r = self.srcAB | self.srcC
            self.passes = 8 if '32x32' in op else 4
        elif op.startswith('v_cmp'):
            self.kind = 'valu'
            self.w = R(clean[0]); self.r = set().union(*[R(o) for o in clean[1:]])
            if op.startswith('v_cmpx'): self.w |= R('exec')
        elif op.startswith('v_permlane'):
            self.kind = 'valu'; self.perm = True
            self.w = R(clean[0]) | R(clean[1]); self.r = set(self.w)
        elif op.startswith('v_add_co') or op.startswith('v_sub_co') or op.startswith('v_addc_co'):
            self.kind = 'valu'
            self.w = R(clean[0]) | R(clean[1]); self.r = set().union(*[R(o) for o in clean[2:]])
        elif op.startswith('v_'):
            self.kind = 'valu'
            self.w = R(clean[0]); self.r = set().union(*[R(o) for o in clean[1:]]) if len(clean) > 1 else set()
            if op.startswith('v_fmac') or op.startswith('v_dot2c') or op.startswith('v_writelane'):
                self.r |= self.w
            if op.startswith('v_cndmask') and len(clean) == 3: self.r |= R('vcc')
            if 'dpp' in op or 'row_' in rest or 'quad_perm' in rest:
                self.dpp = True
                self.r |= self.w
        elif op.startswith('ds_read') or op.startswith('ds_bpermute') or op.startswith('ds_swizzle'):
            self.kind = 'dsr'
            self.w = R(clean[0]); self.r = set().union(*[R(o) for o in clean[1:]])
        elif op.startswith('ds_'):
            self.kind = 'dsw'
            self.r = set().union(*[R(o) for o in clean])
        elif op.startswith('buffer_load') or op.startswith('global_load'):
            if re.search(r"\blds\b", rest) or '_lds_' in op:
                self.kind = 'dma'
                self.r = set().union(*[R(o) for o in clean]) | R('m0')
            else:
                self.kind = 'vld'
                self.w = R(clean[0]); self.r = set().union(*[R(o) for o in clean[1:]])

        elif op.startswith('buffer_store') or op.startswith('global_store') or op.startswith('buffer_atomic') or op.startswith('global_atomic'):
            self.kind = 'vst'
            self.r = set().union(*[R(o) for o in clean])
            self.data = R(clean[0]) if op.startswith('buffer') else R(clean[1])
            self.wide = ('x3' in op or 'x4' in op)
        elif op.startswith('buffer_wbl2') or op.startswith('buffer_inv'):
            self.kind = 'vmisc'
        elif op == 's_nop':
            self.kind = 'nop'; self.nops = int(clean[0], 0) + 1
        elif op.startswith('s_cbranch') or op == 's_branch':
            self.kind = 'branch'; self.target = clean[0]
        elif op == 's_waitcnt':
            self.kind = 'wait'
        elif op.startswith('s_load') or op.startswith('s_buffer_load') or op.startswith('s_memtime') or op.startswith('s_memrealtime'):
            self.kind = 'smem'
            self.w = R(clean[0]); self.r = set().union(*[R(o) for o in clean[1:]]) if len(clean) > 1 else set()
        elif op.startswith('s_cmp') or op in ('s_barrier', 's_endpgm', 's_setprio', 's_sleep'):
            self.kind = 'salu'
            self.r = set().union(*[R(o) for o in clean]) if clean else set()
        elif op.startswith('s_'):
            self.kind = 'salu'
            self.w = R(clean[0]) if clean else set()
            self.r = set().union(*[R(o) for o in clean[1:]]) if len(clean) > 1 else set()
            if 'saveexec' in op:
                self.w |= R('exec'); self.r |= R('exec')
        else:
            raise ValueError("unknown instruction: " + text)

def need_states(p, c):
    n = 0
    isv = lambda st: {x for x in st if x[0] in 'va'}
    iss = lambda st: {x for x in st if x[0] == 's'}
    vmem = c.kind in ('vld', 'vst', 'dma')
    if p.kind == 'valu':
        pw_v = isv(p.w); pw_s = iss(p.w)
        if c.kind == 'mfma' and (pw_v & c.r): n = max(n, 2)
        if c.kind == 'mfma' and (pw_s & regs_of('exec')): n = max(n, 4)
        if c.kind == 'valu':
            if getattr(c, 'perm', False) and (pw_v & c.r): n = max(n, 2)
            if getattr(c, 'dpp', False) and (pw_v & c.r): n = max(n, 2)
            if getattr(c, 'dpp', False) and (pw_s & regs_of('exec')): n = max(n, 5)
            if c.op.startswith('v_readfirstlane') or c.op.startswith('v_readlane'):
                if pw_v & c.r: n = max(n, 1)
                if pw_s & c.r: n = max(n, 4)
                if pw_s & regs_of('exec'): n = max(n, 4)
            if pw_s & iss(c.r): n = max(n, 2)
            if p.op.split('_e')[0] in TRANS and c.op.split('_e')[0] not in TRANS and (pw_v & c.r): n = max(n, 1)
        if vmem and (pw_s & iss(c.r)): n = max(n, 5)
        if c.kind == 'salu' and (pw_s & c.r): n = max(n, 1)
    if p.kind == 'mfma':
        big = 12 if p.passes == 8 else 8
        if c.kind == 'mfma':
            if p.w & c.srcAB: n = max(n, big)
            if p.w & c.srcC:
                if p.w == c.srcC and p.passes == c.passes: pass
                else: n = max(n, 10 if p.passes == 8 else 6)
            if (p.w & c.w) and not (p.w == c.srcC and p.passes == c.passes): n = max(n, 10 if p.passes == 8 else 6)
        elif c.kind in ('valu', 'dsr', 'dsw', 'vld', 'vst', 'dma'):
            if p.w & (c.r | c.w): n = max(n, big)
            if c.kind == 'valu' and (p.srcC & c.w): n = max(n, 7 if p.passes == 8 else 3)
            if c.kind in ('dsr', 'vld') and (p.srcC & c.w): n = max(n, 7 if p.passes == 8 else 3)
    if p.kind == 'vst' and getattr(p, 'wide', False):
        if c.kind in ('valu',) and (p.data & c.w): n = max(n, 2)
        elif c.kind in ('dsr', 'vld', 'mfma') and (p.data & c.w): n = max(n, 1)
    if p.kind == 'salu' and (p.w & regs_of('m0')) and c.kind == 'dma': n = max(n, 1)
    return n

class Prog:
    def __init__(self):
        self.ins = []
        self.cond = 0
        self._condid = 0
        self.lg = []
        self.vm = []
        self.vmcount = 0
    def vmtag(self):
        return self.vmcount
    def wait_vm_tag(self, tag, extra=''):
        n = self.vmcount - tag
        self(f"s_waitcnt vmcnt({min(n, 63)}){extra}")
    def raw(self, text):
        self.ins.append(Ins(text, self.cond))
    def label(self, name):
        self.raw(name + ':')
    def _count_after(self, lst, idx):
        n = 0
        for (_, c) in lst[idx + 1:]:
            if c == 0 or c == self.cond: n += 1
        return n
    def _autowait(self, ins):
        touched = ins.r | ins.w
        lgn = None; vmn = None
        for idx in range(len(self.lg) - 1, -1, -1):
            if self.lg[idx][0] & touched:
                lgn = self._count_after(self.lg, idx); self.lg = self.lg[idx + 1:]; break
        for idx in range(len(self.vm) - 1, -1, -1):
            if self.vm[idx][0] & touched:
                vmn = self._count_after(self.vm, idx); self.vm = self.vm[idx + 1:]; break
        if lgn is not None or vmn is not None:
            t = 's_waitcnt'
            if vmn is not None: t += f" vmcnt({min(vmn, 63)})"
            if lgn is not None: t += f" lgkmcnt({min(lgn, 15)})"
            self.ins.append(Ins(t, self.cond))
    def __call__(self, text):
        ins = Ins(text, self.cond)
        if ins.kind not in ('label', 'dir', 'wait', 'nop', 'branch'):
            self._autowait(ins)
        if ins.kind == 'wait':
            m = re.search(r"vmcnt\((\d+)\)", text)
            if m:
                n = int(m.group(1)); self.vm = self.vm[len(self.vm) - n:] if n else []
            m = re.search(r"lgkmcnt\((\d+)\)", text)
            if m:
                n = int(m.group(1)); self.lg = self.lg[len(self.lg) - n:] if n else []
        self.ins.append(ins)
        if ins.kind == 'dsr': self.lg.append((set(ins.w), self.cond))
        elif ins.kind == 'dsw': self.lg.append((set(), self.cond))
        elif ins.kind == 'vld': self.vm.append((set(ins.w), self.cond)); self.vmcount += 1
        elif ins.kind in ('vst', 'dma', 'vmisc'): self.vm.append((set(), self.cond)); self.vmcount += 1
        return ins
    def begin_cond(self):
        self._condid += 1; self.cond = self._condid
    def end_cond(self):
        self.cond = 0
    def forget(self):
        self.lg = []; self.vm = []
    def pad(self):
        ins = self.ins
        for rnd in range(6):
            changed = False
            i = 0
            def maps():
                labels = {x.label: k for k, x in enumerate(ins) if x.kind == 'label'}
                preds = {}
                for k, x in enumerate(ins):
                    if x.kind == 'branch': preds.setdefault(labels[x.target], []).append(k)
                return preds
            preds = maps()
            while i < len(ins):
                c = ins[i]
                if c.kind in ('label', 'dir', 'nop', 'wait', 'branch'):
                    i += 1; continue
                need = 0
                stack = [(i - 1, 0)]
                seen = set()
                while stack:
                    j, dist = stack.pop()
                    while j >= 0 and dist < 20:
                        if (j, dist) in seen: break
                        seen.add((j, dist))
                        p = ins[j]
                        if p.kind == 'label':
                            for b in preds.get(j, []): stack.append((b, dist))
                            k = j - 1
                            while k >= 0 and ins[k].kind in ('dir',): k -= 1
                            if k >= 0 and (ins[k].op == 's_branch' or ins[k].op == 's_endpgm'): break
                            j -= 1; continue
                        if p.kind == 'dir': j -= 1; continue
                        ns = need_states(p, c)
                        if ns > dist: need = max(need, ns - dist)
                        dist += p.nops
                        j -= 1
                if need > 0:
                    k = need
                    new = []
                    while k > 0:
                        t = min(k, 16); new.append(Ins(f"s_nop {t-1}", c.cond)); k -= t
                    ins[i:i] = new
                    preds = maps()
                    i += len(new)
                    changed = True
                i += 1
            if not changed: return
        raise RuntimeError("hazard padding did not converge")
    def text(self):
        out = []
        for x in self.ins:
            if x.kind in ('label', 'dir'): out.append(x.text)
            else: out.append('    ' + x.text)
        return '\n'.join(out) + '\n'
```

```python
from asmlib import *
from gen import *
import os

KVP_STRIDE = 2304

def gen_k1():
    p = Prog()
    header(p, "k1_kernel")
    p.stv = 206
    SX, SW, SWS, SWO, SGW = 12, 16, 20, 68, 72
    sRT, sHG, sBR, sKC, sOX, sOW, sWV = 24, 25, 26, 28, 29, 30, 33
    sMH, sNG = 41, 42
    sINIT, sSCL, sFLG = 44, 48, 52
    sM0X, sM0W = 56, 57
    IMG = 49152
    p("s_cmp_ge_u32 s2, 256")
    p("s_cbranch_scc1 K1_end")
    stamp(p, 0)
    p("s_load_dwordx4 s[4:7], s[0:1], 0")
    p("s_load_dwordx2 s[8:9], s[0:1], 32")
    p("s_load_dwordx2 s[10:11], s[0:1], 72")
    p("s_load_dwordx2 s[76:77], s[0:1], 16")
    p("s_load_dwordx4 s[80:83], s[0:1], 40")
    p("v_lshrrev_b32 v1, 6, v0")
    p("v_and_b32 v2, 63, v0")
    p(f"v_readfirstlane_b32 {s(sWV)}, v1")
    p("s_and_b32 s34, s2, 7")
    p("s_lshr_b32 s35, s2, 3")
    p("s_lshr_b32 s36, s34, 2")
    p("s_and_b32 s37, s34, 3")
    p("s_lshr_b32 s58, s35, 2")
    p("s_and_b32 s59, s35, 3")
    p(f"s_lshl_b32 {s(sRT)}, s36, 3")
    p(f"s_add_u32 {s(sRT)}, {s(sRT)}, s58")
    p(f"s_lshr_b32 {s(sBR)}, s59, 1")
    p(f"s_and_b32 {s(sHG)}, s59, 1")
    p("s_lshl_b32 s40, s37, 1")
    p(f"s_add_u32 {s(sHG)}, {s(sHG)}, s40")
    p("s_lshl_b32 s43, s37, 2")
    p("s_add_u32 s43, s43, s59")
    vXO, vWO = 4, 6
    p("v_lshrrev_b32 v3, 3, v2")
    p("v_and_b32 v10, 7, v2")
    p("v_xor_b32 v10, v10, v3")
    p("v_lshlrev_b32 v10, 4, v10")
    p("s_movk_i32 s40, 1280")
    p(f"v_mad_u32_u24 {v(vXO)}, v3, s40, v10")
    p(f"s_lshl_b32 s34, {s(sRT)}, 7")
    p(f"s_lshl_b32 s35, {s(sWV)}, 4")
    p("s_add_u32 s34, s34, s35")
    p("s_mul_i32 s34, s34, 1280")
    p(f"v_add_u32 {v(vXO)}, s34, {v(vXO)}")
    p(f"v_add_u32 {v(vXO+1)}, 9216, {v(vXO)}")
    p("v_lshrrev_b32 v3, 5, v2")
    p("v_bfe_u32 v10, v2, 1, 4")
    p("v_and_b32 v11, 1, v2")
    p("v_lshlrev_b32 v11, 4, v11")
    p("s_movk_i32 s35, 3840")
    p("v_mad_u32_u24 v11, v3, s35, v11")
    p(f"s_and_b32 s36, {s(sWV)}, 1")
    p("s_lshl_b32 s36, s36, 2")
    p(f"s_mul_i32 s37, {s(sWV)}, {8*3840}")
    p(f"s_mul_i32 s38, {s(sHG)}, 160")
    p("s_add_u32 s37, s37, s38")
    p("v_mov_b32 v16, 0x40000000")
    for i in range(2):
        p(f"v_or_b32 v12, s36, v3")
        if i: p("v_or_b32 v12, 2, v12")
        p("v_xor_b32 v12, v12, v10")
        p("v_mul_u32_u24 v13, 52, v12")
        p("v_lshrrev_b32 v13, 8, v13")
        p("v_mul_u32_u24 v14, 5, v13")
        p("v_sub_u32 v14, v12, v14")
        p("v_lshl_add_u32 v14, v14, 5, v11")
        p("v_mad_u32_u24 v14, v13, s40, v14")
        p(f"v_add_u32 v14, s37, v14")
        if i: p(f"v_add_u32 v14, {2*3840-1024}, v14")
        p("v_cmp_eq_u32 vcc, 15, v12")
        p(f"v_cndmask_b32 {v(vWO+i)}, v14, v16, vcc")
        p(f"v_add_u32 {v(vWO+2+i)}, 13312, {v(vWO+i)}")
    p(f"s_lshl_b32 {s(sM0X)}, {s(sWV)}, 11")
    p(f"s_lshl_b32 {s(sM0W)}, {s(sWV)}, 12")
    p(f"s_add_u32 {s(sM0W)}, {s(sM0W)}, 16384")
    ROTG = int(os.environ.get('ROTG', '3'))
    mg = {3: 86, 4: 64, 5: 52, 2: 128}[ROTG]
    p("s_add_u32 s34, s58, s59")
    p(f"s_mul_i32 s35, s34, {mg}")
    p("s_lshr_b32 s35, s35, 8")
    p(f"s_mul_i32 s35, s35, {ROTG}")
    p("s_sub_u32 s34, s34, s35")
    p("s_mul_i32 s34, s34, 10")
    p(f"s_mul_i32 s34, s34, {mg}")
    p(f"s_lshr_b32 {s(sKC)}, s34, 8")
    p(f"s_lshl_b32 {s(sOX)}, {s(sKC)}, 7")
    p(f"s_mul_i32 {s(sOW)}, {s(sKC)}, 245760")
    p(f"s_mov_b32 m0, {s(sM0X)}")
    p("s_waitcnt lgkmcnt(0)")
    srd(p, SX, 4, 2048*1280)
    p(f"s_cmp_eq_u32 {s(sBR)}, 0")
    p("s_cselect_b32 s6, s6, s8")
    p("s_cselect_b32 s7, s7, s9")
    srd(p, SW, 6, 640*3840)
    tags = {}
    def issue_steps(st):
        slot = (st % 3) * 49152
        g = []
        first = [] if st == 0 else [f"s_add_u32 m0, {s(sM0X)}, {slot}", "s_nop 0"]
        g.append(first + [f"buffer_load_dwordx4 {v(vXO)}, {s(SX,4)}, {s(sOX)} offen lds"])
        g.append([f"buffer_load_dwordx4 {v(vXO+1)}, {s(SX,4)}, {s(sOX)} offen offset:1024 lds"])
        g.append([f"s_add_u32 m0, {s(sM0W)}, {slot}", f"s_add_u32 {s(sOX)}, {s(sOX)}, 128",
                  f"buffer_load_dwordx4 {v(vWO)}, {s(SW,4)}, {s(sOW)} offen lds"])
        for i in range(1, 4):
            g.append([f"buffer_load_dwordx4 {v(vWO+i)}, {s(SW,4)}, {s(sOW)} offen offset:{i*1024} lds"])
        g[-1] += [('tag', st)]
        if st < 9:
            g[-1] += [f"s_add_u32 {s(sOW)}, {s(sOW)}, 245760", f"s_add_u32 {s(sKC)}, {s(sKC)}, 1", f"s_cmp_eq_u32 {s(sKC)}, 10",
                      f"s_cselect_b32 {s(sOX)}, 0, {s(sOX)}", f"s_cselect_b32 {s(sOW)}, 0, {s(sOW)}"]
        return g
    def emit(t):
        if isinstance(t, tuple): tags[t[1]] = p.vmtag()
        elif isinstance(t, list):
            for x in t: emit(x)
        else: p(t)
    def issue(st):
        for g in issue_steps(st): emit(g)
    stamp(p, 1)
    issue(0)
    srd(p, SWS, 10, WS_SIZE)
    p("s_getpc_b64 s[60:61]")
    p.label("K1_pc")
    p(f"s_lshl_b32 s34, {s(sWV)}, 13")
    p("v_lshlrev_b32 v26, 7, v2")
    p("v_add_u32 v26, s34, v26")
    p("v_min_u32 v26, CODE_END-K1_pc-4, v26")
    p("global_load_dword v31, v26, s[60:61]")
    stamp(p, 2)
    p(f"s_lshr_b32 {s(sMH)}, {s(sWV)}, 2")
    p(f"s_and_b32 {s(sNG)}, {s(sWV)}, 3")
    vXA = [10, 12, 14]; vWA = [16, 20, 24]
    vG, vM = 28, 29
    p(f"v_lshrrev_b32 {v(vG)}, 4, v2")
    p(f"v_and_b32 {v(vM)}, 15, v2")
    p("v_and_b32 v3, 7, v2")
    p(f"v_xor_b32 v3, v3, {v(vG)}")
    p("v_lshlrev_b32 v3, 4, v3")
    p(f"v_lshl_add_u32 v3, {v(vM)}, 7, v3")
    p(f"s_lshl_b32 s34, {s(sMH)}, 13")
    p(f"v_add_u32 {v(vXA[0])}, s34, v3")
    p(f"v_xor_b32 {v(vXA[0]+1)}, 64, {v(vXA[0])}")
    p("v_bfe_u32 v3, v2, 2, 2")
    p(f"v_and_b32 v1, 1, {v(vG)}")
    p("v_lshl_or_b32 v1, v1, 2, v3")
    p(f"v_lshl_add_u32 v30, {v(vG)}, 3, v3")
    p("v_lshlrev_b32 v30, 9, v30")
    p("v_and_b32 v3, 3, v2")
    p("v_lshl_add_u32 v30, v3, 3, v30")
    p("v_add_u32 v30, 16384, v30")
    for jj in range(4):
        p(f"s_add_u32 s35, {s(sNG)}, {4*jj}")
        p(f"v_xor_b32 v3, s35, v1")
        p(f"v_lshl_add_u32 {v(vWA[0]+jj)}, v3, 5, v30")
        p("s_sub_u32 s36, s35, 5")
        p("s_cmp_lt_u32 s36, 5")
        p(f"s_cselect_b32 {s(sFLG+jj)}, {s(sBR)}, 0")
        p(f"s_mul_i32 {s(sINIT+jj)}, {s(sFLG+jj)}, {f32(EPS)}")
        p("s_cmp_lt_u32 s35, 5")
        p("s_cselect_b32 s36, 1, 0")
        p(f"s_andn2_b32 {s(sSCL+jj)}, s36, {s(sBR)}")
    for sl in (1, 2):
        for k in range(2): p(f"v_add_u32 {v(vXA[sl]+k)}, {sl*49152}, {v(vXA[0]+k)}")
        for k in range(4): p(f"v_add_u32 {v(vWA[sl]+k)}, {sl*49152}, {v(vWA[0]+k)}")
    ACC = 32
    FX = [96, 128]; FW = [112, 144]
    for jj in range(4):
        for k in range(16):
            p(f"v_mov_b32 {v(ACC+jj*16+k)}, {s(sINIT+jj) if jj in (1,2) else 0}")
    issue(1)
    def rdx(st, ks, i): return f"ds_read_b128 {v(FX[ks]+4*i,4)}, {v(vXA[st%3]+ks)} offset:{i*2048}"
    def rdw(st, ks, jj, h): return f"ds_read_b64_tr_b16 {v(FW[ks]+4*jj+2*h,2)}, {v(vWA[st%3]+jj)} offset:{ks*16384+h*2048}"
    def mm(ks, jj, i):
        A = ACC + (jj*4+i)*4
        p(f"v_mfma_f32_16x16x32_bf16 {v(A,4)}, {v(FW[ks]+4*jj,4)}, {v(FX[ks]+4*i,4)}, {v(A,4)}")
    def readlist(st, ks, order=(0,1,2,3)):
        L = [rdw(st,ks,order[0],0), rdw(st,ks,order[0],1)]
        for i in range(4): L.append(rdx(st,ks,i))
        for jj in order[1:]:
            L.append(rdw(st,ks,jj,0)); L.append(rdw(st,ks,jj,1))
        return L
    GX, GWt, A0, WOR, WOH, vW0, vW1, vT0, vT1, vL16 = 160, 166, 172, 192, 196, 200, 201, 202, 203, 204
    sGR, sJOB, sWFo = 84, 85, 86
    F = {k: [] for k in range(20)}
    f = F[1]
    f += [f"v_lshlrev_b32 {v(vL16)}, 4, v2",
          f"s_lshl_b32 {s(sJOB)}, s2, 3", f"s_add_u32 {s(sJOB)}, {s(sJOB)}, {s(sWV)}",
          [f"s_cmp_ge_u32 {s(sJOB)}, 800", "s_cselect_b32 s76, s80, s76", "s_cselect_b32 s77, s81, s77",
           "s_cselect_b32 s87, 800, 0", "s_cselect_b32 s88, 20, 0"],
          f"s_mov_b32 {s(SWO)}, s76", f"s_and_b32 {s(SWO+1)}, s77, 0xffff", f"s_mov_b32 {s(SWO+2)}, {640*1280}", f"s_mov_b32 {s(SWO+3)}, 0x20000",
          f"s_mov_b32 {s(SGW)}, s82", f"s_and_b32 {s(SGW+1)}, s83, 0xffff", f"s_mov_b32 {s(SGW+2)}, 1280", f"s_mov_b32 {s(SGW+3)}, 0x20000",
          f"s_sub_u32 s87, {s(sJOB)}, s87", "s_mul_i32 s89, s87, 1639", "s_lshr_b32 s89, s89, 16",
          "s_mul_i32 s90, s89, 40", "s_sub_u32 s90, s87, s90", "s_lshl_b32 s91, s89, 2"]
    f = F[2]
    f += [f"v_add_u32 {v(vT0)}, s91, {v(vG)}",
          f"v_mul_u32_u24 {v(vT1)}, 205, {v(vT0)}", f"v_lshrrev_b32 {v(vT1)}, 10, {v(vT1)}",
          f"v_mul_u32_u24 {v(vW0)}, 5, {v(vT1)}", f"v_sub_u32 {v(vW0)}, {v(vT0)}, {v(vW0)}",
          f"v_lshrrev_b32 {v(vW1)}, 1, {v(vW0)}", f"v_mul_u32_u24 {v(vW1)}, 20, {v(vW1)}",
          f"v_and_b32 {v(vT0)}, 1, {v(vW0)}", f"v_lshl_add_u32 {v(vW1)}, {v(vT0)}, 2, {v(vW1)}",
          f"v_cmp_gt_u32 vcc, 4, {v(vW0)}", f"v_mov_b32 {v(vT0)}, 20", f"v_mul_u32_u24 {v(vT1)}, 40, {v(vT1)}",
          f"v_cndmask_b32 {v(vW1)}, 16, {v(vW1)}, vcc", f"v_cndmask_b32_e64 {v(vT0)}, {v(vT0)}, 8, vcc",
          f"v_add_u32 {v(vW1)}, {v(vT1)}, {v(vW1)}",
          f"v_lshlrev_b32 {v(vT1)}, 1, {v(vM)}",
          f"v_mad_u32_u24 {v(vW0)}, {v(vW1)}, s40, {v(vT1)}",
          f"v_mad_u32_u24 {v(vW1)}, {v(vT0)}, s40, {v(vW0)}"]
    f = F[3]
    f += ["s_lshl_b32 s91, s90, 5", "s_mul_i32 s90, s90, 40", "s_add_u32 s90, s90, s88", "s_add_u32 s90, s90, s89",
          "s_lshl_b32 s90, s90, 10", f"s_add_u32 s90, s90, {WS_WF}",
          [f"s_cmp_ge_u32 {s(sJOB)}, 1600", "s_cselect_b32 s91, 0x40000000, s91", f"s_cselect_b32 {s(sWFo)}, 0x40000000, s90"],
          f"s_lshl_b32 {s(sGR)}, {s(sRT)}, 4", f"s_add_u32 {s(sGR)}, {s(sGR)}, s43", f"s_lshl_b32 {s(sGR)}, {s(sGR)}, 3",
          f"s_add_u32 {s(sGR)}, {s(sGR)}, {s(sWV)}", f"s_mul_i32 s92, {s(sGR)}, 1280", f"v_lshlrev_b32 {v(vT0)}, 2, v2"]
    f = F[6]
    for k in range(2):
        for q in range(2):
            f.append(f"buffer_load_ushort {v(WOR+2*k+q)}, {v(vW0+k)}, {s(SWO,4)}, s91 offen offset:{2560*q}")
            f.append(f"buffer_load_ushort {v(WOH+2*k+q)}, {v(vW0+k)}, {s(SWO,4)}, s91 offen offset:{2560*q+1280}")
    f += [f"buffer_load_dwordx4 {v(GX,4)}, {v(vL16)}, {s(SX,4)}, s92 offen",
          f"buffer_load_dword {v(GX+4)}, {v(vT0)}, {s(SX,4)}, s92 offen offset:1024",
          f"buffer_load_dwordx4 {v(GWt,4)}, {v(vL16)}, {s(SGW,4)}, 0 offen",
          f"buffer_load_dword {v(GWt+4)}, {v(vT0)}, {s(SGW,4)}, 0 offen offset:1024"]
    f = F[12]
    for k in range(4): f.append(f"v_lshl_or_b32 {v(WOR+k)}, {v(WOH+k)}, 16, {v(WOR+k)}")
    f.append(f"buffer_store_dwordx4 {v(WOR,4)}, {v(vL16)}, {s(SWS,4)}, {s(sWFo)} offen {SC}")
    for k in range(5):
        f += [f"v_lshlrev_b32 {v(A0+4*k)}, 16, {v(GX+k)}", f"v_and_b32 {v(A0+4*k+1)}, 0xffff0000, {v(GX+k)}",
              f"v_lshlrev_b32 {v(A0+4*k+2)}, 16, {v(GWt+k)}", f"v_and_b32 {v(A0+4*k+3)}, 0xffff0000, {v(GWt+k)}"]
    f = F[13]
    for k in range(5):
        f += [f"v_mul_f32 {v(A0+4*k)}, {v(A0+4*k)}, {v(A0+4*k+2)}", f"v_mul_f32 {v(A0+4*k+1)}, {v(A0+4*k+1)}, {v(A0+4*k+3)}"]
    for k in range(5): f.append(f"v_cvt_pk_bf16_f32 {v(A0+4*k+2)}, {v(A0+4*k)}, {v(A0+4*k+1)}")
    f = F[14]
    for k in range(5):
        f += [f"v_lshlrev_b32 {v(A0+4*k)}, 16, {v(A0+4*k+2)}", f"v_and_b32 {v(A0+4*k+1)}, 0xffff0000, {v(A0+4*k+2)}"]
    for k in range(5): f.append(f"v_add_f32 {v(A0+4*k)}, {v(A0+4*k)}, {v(A0+4*k+1)}")
    G = A0
    f += [f"v_add_f32 {v(A0)}, {v(A0)}, {v(A0+4)}", f"v_add_f32 {v(A0+8)}, {v(A0+8)}, {v(A0+12)}",
          f"v_add_f32 {v(A0)}, {v(A0)}, {v(A0+16)}", f"v_add_f32 {v(A0)}, {v(A0)}, {v(A0+8)}"]
    f = F[15]
    for sh in (1, 2, 4, 8): f += [f"v_add_f32_dpp {v(G)}, {v(G)}, {v(G)} row_shr:{sh} row_mask:0xf bank_mask:0xf", None]
    f += [f"v_add_f32_dpp {v(G)}, {v(G)}, {v(G)} row_bcast:15 row_mask:0xa bank_mask:0xf", None,
          f"v_add_f32_dpp {v(G)}, {v(G)}, {v(G)} row_bcast:31 row_mask:0xc bank_mask:0xf",
          f"s_mov_b32 s62, {f32(LOG2E)}", f"s_mov_b32 s63, {f32(LOG2E)}",
          f"v_cvt_pk_bf16_f32 {v(G)}, {v(G)}, {v(G)}", f"v_lshlrev_b32 {v(G)}, 16, {v(G)}",
          f"v_mul_f32 {v(G)}, s62, {v(G)}", f"v_exp_f32 {v(G)}, -{v(G)}", None, f"v_add_f32 {v(G)}, 1.0, {v(G)}",
          f"v_rcp_f32 {v(G)}, {v(G)}", None, f"v_cvt_pk_bf16_f32 {v(G)}, {v(G)}, {v(G)}"]
    f = F[16]
    f += [f"v_lshlrev_b32 {v(G)}, 16, {v(G)}", f"v_sub_f32 {v(G+1)}, 1.0, {v(G)}",
          f"v_cvt_pk_bf16_f32 {v(G+1)}, {v(G+1)}, {v(G+1)}", f"v_lshlrev_b32 {v(G+1)}, 16, {v(G+1)}",
          f"s_lshl_b32 s92, {s(sGR)}, 3", f"s_add_u32 s92, s92, {WS_G}", f"v_mov_b32 {v(vT0)}, 0",
          ["s_mov_b32 exec_lo, 0", "s_mov_b32 exec_hi, 0x80000000",
           f"buffer_store_dwordx2 {v(G,2)}, {v(vT0)}, {s(SWS,4)}, s92 offen {SC}", "s_mov_b32 exec_lo, -1", "s_mov_b32 exec_hi, -1"]]
    vIM = 4
    f += [f"s_lshl_b32 s34, {s(sMH)}, 6", f"v_add_u32 v3, s34, {v(vM)}", "v_mul_u32_u24 v3, 48, v3", f"v_add_u32 v3, {IMG}, v3",
          f"s_lshl_b32 s34, {s(sNG)}, 2", "s_movk_i32 s36, 6144"]
    f = F[17]
    for jj in range(4):
        f += [f"s_add_u32 s35, s34, {16*jj}", f"v_add_u32 v8, s35, {v(vG)}", "v_mul_u32_u24 v9, 52, v8", "v_lshrrev_b32 v9, 8, v9",
              "v_mul_u32_u24 v1, 5, v9", "v_sub_u32 v1, v8, v1", "v_lshl_add_u32 v1, v1, 3, v3", f"v_mad_u32_u24 {v(vIM+jj)}, v9, s36, v1"]
    f = F[18]
    f += ["v_lshrrev_b32 v8, 7, v0", "v_and_b32 v9, 127, v0", "v_mul_u32_u24 v9, 48, v9", "v_mad_u32_u24 v8, v8, s36, v9",
          f"v_mov_b32 {v(vT0)}, 0x3f80", f"v_mov_b32 {v(vT1)}, 0", f"v_mov_b32 {v(vW0)}, 0", f"v_mov_b32 {v(vW1)}, 0",
          f"v_add_u32 v8, {IMG}, v8",
          f"ds_write_b64 v8, {v(vT0,2)} offset:40", f"ds_write_b64 v8, {v(vW0,2)} offset:{40+24576}", f"ds_write_b64 v8, {v(vT0,2)} offset:{40+49152}",
          f"s_mov_b32 s38, {f32(EPS)}", f"s_mov_b32 s64, {f32(QSCALE)}", f"s_mov_b32 s65, {f32(QSCALE)}",
          f"s_mul_i32 s93, {s(sWV)}, 768", f"v_add_u32 v30, s93, {v(vL16)}", f"v_add_u32 v31, {IMG}, v30", f"v_add_u32 v9, {IMG+6*6144}, v30",
          f"s_mul_i32 s93, {s(sHG)}, {4*98304}", f"s_mul_i32 s35, {s(sRT)}, 6144", "s_add_u32 s93, s93, s35",
          f"s_mul_i32 s35, {s(sBR)}, {3*0x300000}", "s_add_u32 s93, s93, s35"]
    def block(ks, L, steps, fill, order=(0,1,2,3), after=None):
        n = 0
        fill = list(fill)
        per = 2
        for jj in order:
            for i in range(4):
                mm(ks, jj, i)
                n += 1
                did = 0
                if L: p(L.pop(0)); did += 1
                if n % 2 == 0 and n >= 4 and steps: emit(steps.pop(0)); did += 1
                k = per - did if (L or steps) else per + 1
                left = 16 - n
                while fill and (k > 0 or len(fill) > left * (per + 1)):
                    t = fill.pop(0)
                    if t is None: break
                    emit(t); k -= 1
            if after: after(jj)
        for t in fill:
            if t is not None: emit(t)
        assert not L and not steps
    T = 160
    def epi(jj):
        A = ACC + jj*16
        if jj in (1, 2):
            p(f"s_cmp_eq_u32 {s(sFLG+jj)}, 0")
            p(f"s_cbranch_scc1 K1_nophi{jj}")
            for k in range(8): p(f"v_pk_mul_f32 {v(T+2*k,2)}, {v(A+2*k,2)}, s[62:63]")
            for k in range(16): p(f"v_exp_f32 {v(T+k)}, {v(T+k)} clamp")
            for k in range(16): p(f"v_max_f32 {v(A+k)}, s38, {v(A+k)}")
            for k in range(8): p(f"v_pk_add_f32 {v(A+2*k,2)}, {v(A+2*k,2)}, {v(T+2*k,2)}")
            p.label(f"K1_nophi{jj}")
        if jj in (0, 1):
            p(f"s_cmp_eq_u32 {s(sSCL+jj)}, 0")
            p(f"s_cbranch_scc1 K1_noscl{jj}")
            for k in range(8): p(f"v_pk_mul_f32 {v(A+2*k,2)}, {v(A+2*k,2)}, s[64:65]")
            p.label(f"K1_noscl{jj}")
        P = 96 + jj*8
        for k in range(8): p(f"v_cvt_pk_bf16_f32 {v(P+k)}, {v(A+2*k)}, {v(A+2*k+1)}")
        for i in range(4): p(f"ds_write_b64 {v(vIM+jj)}, {v(P+2*i,2)} offset:{i*768}")
    p.wait_vm_tag(tags[0])
    p("s_barrier")
    stamp(p, 3)
    stampc(p, 30)
    for t in readlist(0, 0): p(t)
    issue(2)
    LAST = (1, 2, 0, 3)
    for st in range(10):
        block(0, readlist(st, 1, LAST if st == 9 else (0,1,2,3)), [], F[2*st])
        if st < 9:
            p.wait_vm_tag(tags[st+1], " lgkmcnt(0)")
            p("s_barrier")
            block(1, readlist(st+1, 0), issue_steps(st+3) if st+3 <= 9 else [], F[2*st+1])
        else:
            def after(jj):
                k = LAST.index(jj)
                if k >= 1: epi(LAST[k-1])
            block(1, [], [], F[19], LAST, after)
            stamp(p, 4)
            stampc(p, 31)
            epi(LAST[3])
    p("s_waitcnt lgkmcnt(0)")
    p("s_barrier")
    stamp(p, 5)
    p("s_mov_b32 exec_hi, 0xffff")
    D = 32
    def rdblk(b):
        if b < 6: p(f"ds_read_b128 {v(D+4*b,4)}, v31 offset:{b*6144}")
        else: p(f"ds_read_b128 {v(D+4*b,4)}, v9 offset:{(b-6)*6144}")
    def stblk(b):
        off = (b//4)*0x300000 + (b%4)*98304
        p(f"s_add_u32 s35, s93, {off}")
        p(f"buffer_store_dwordx4 {v(D+4*b,4)}, v30, {s(SWS,4)}, s35 offen {SC}")
    for b in range(4): rdblk(b)
    p(f"s_cmp_eq_u32 {s(sBR)}, 0")
    p("s_cbranch_scc0 K1_bpath")
    p.begin_cond()
    for b in range(4,12): rdblk(b)
    for b in range(12): stblk(b)
    stamp(p, 6)
    if STAMP: p("s_waitcnt vmcnt(0)")
    stamp(p, 7)
    stamp_flush(p, 0, SWS, 8, sWV)
    p("s_endpgm")
    p.end_cond()
    p.label("K1_bpath")
    p("s_waitcnt lgkmcnt(0)")
    for b in range(4): stblk(b)
    p("s_mov_b32 exec_hi, -1")
    p(f"s_cmp_gt_u32 {s(sWV)}, 3")
    p("s_cbranch_scc1 K1_end")
    p("v_lshrrev_b32 v7, 5, v2")
    p("v_bfe_u32 v6, v2, 2, 2")
    p("v_lshl_add_u32 v5, v7, 3, v6")
    p("v_mul_u32_u24 v5, 48, v5")
    p("v_bfe_u32 v6, v2, 4, 1")
    p("v_lshl_add_u32 v5, v6, 5, v5")
    p("v_and_b32 v6, 3, v2")
    p("v_lshl_add_u32 v5, v6, 3, v5")
    p(f"s_add_u32 s35, {s(sWV)}, 4")
    p("s_mul_i32 s35, s35, 6144")
    p(f"s_add_u32 s35, s35, {IMG}")
    p("v_add_u32 v5, s35, v5")
    KV = 96
    Fr = 112
    for t in range(8):
        for h in range(2): p(f"ds_read_b64_tr_b16 {v(Fr+8*t+2*h,2)}, v5 offset:{t*768+h*192}")
        for h in range(2): p(f"ds_read_b64_tr_b16 {v(Fr+8*t+4+2*h,2)}, v5 offset:{24576+t*768+h*192}")
        if t >= 2:
            tt = t-2
            p(f"v_mfma_f32_32x32x16_bf16 {v(KV,16)}, {v(Fr+8*tt,4)}, {v(Fr+8*tt+4,4)}, {'0' if tt==0 else v(KV,16)}")
    for tt in (6,7):
        p(f"v_mfma_f32_32x32x16_bf16 {v(KV,16)}, {v(Fr+8*tt,4)}, {v(Fr+8*tt+4,4)}, {v(KV,16)}")
    p(f"s_lshl_b32 s34, {s(sHG)}, 2")
    p(f"s_add_u32 s34, s34, {s(sWV)}")
    p("s_lshl_b32 s34, s34, 4")
    p(f"s_add_u32 s34, s34, {s(sRT)}")
    p(f"s_mul_i32 s34, s34, {KVP_STRIDE}")
    p(f"s_add_u32 s34, s34, {WS_KVP}")
    p("v_and_b32 v3, 31, v2")
    p("v_lshlrev_b32 v3, 4, v3")
    p("v_mul_u32_u24 v7, 384, v7")
    p("v_add_u32 v3, v3, v7")
    p("s_mov_b32 exec_lo, 0xffffff")
    p("s_mov_b32 exec_hi, 0xffffff")
    for q in range(3):
        p(f"buffer_store_dwordx4 {v(KV+4*q,4)}, v3, {s(SWS,4)}, s34 offen offset:{q*768} {SC}")
    stamp(p, 6)
    if STAMP: p("s_waitcnt vmcnt(0)")
    stamp(p, 7)
    stamp_flush(p, 0, SWS, 8, sWV)
    p.label("K1_end")
    p("s_endpgm")
    p.pad()
    return p.text(), dict(name="k1_kernel", vgpr=207, sgpr=100, grid=256, block=512, lds=147456)
```

```python
from asmlib import *
from gen import *

def gen_k2():
    p = Prog()
    header(p, "k2_kernel")
    p.stv = 228
    SWS, SX, SWO, SGW = 16, 20, 24, 28
    sH, sR, sWV = 32, 33, 34
    LDS_V = 24576; LDS_RED = 49216
    p("s_cmp_ge_u32 s2, 256")
    p("s_cbranch_scc1 K2_end")
    stamp(p, 0)
    p("s_load_dwordx2 s[12:13], s[0:1], 72")
    p("v_lshrrev_b32 v1, 6, v0")
    p("v_and_b32 v2, 63, v0")
    p(f"v_readfirstlane_b32 {s(sWV)}, v1")
    p("s_and_b32 s36, s2, 7")
    p("s_lshr_b32 s37, s2, 3")
    p("s_and_b32 s38, s36, 3")
    p("s_lshl_b32 s38, s38, 3")
    p("s_and_b32 s39, s37, 7")
    p(f"s_add_u32 {s(sH)}, s38, s39")
    p("s_lshr_b32 s38, s36, 2")
    p("s_lshl_b32 s38, s38, 2")
    p("s_lshr_b32 s39, s37, 3")
    p(f"s_add_u32 {s(sR)}, s38, s39")
    Q0, Q1 = 16, 20
    PQR = 24
    MU, ML = 32, 48
    SB = [64, 80]
    KF = [96, 104]
    VF = [112, 120]
    PB = [128, 136]
    O = 144
    CM = 160
    PAR = 176
    WOR = 200
    WOH = 204
    PQ = 208
    GX, GWt = 64, 70
    vL16, vQA, vHH = 3, 4, 5
    vQo, vPQo, vK0, vK1, vV, vM = 6, 7, 8, 9, 10, 11
    vDM, vW0, vW1, vOo, vOt = 216, 217, 218, 219, 220
    p(f"v_lshlrev_b32 {v(vL16)}, 4, v2")
    p(f"v_and_b32 {v(vQA)}, 31, v2")
    p(f"v_lshrrev_b32 {v(vHH)}, 5, v2")
    sRow = 35
    p(f"s_lshl_b32 {s(sRow)}, {s(sH)}, 11")
    p(f"s_lshl_b32 s36, {s(sR)}, 8")
    p(f"s_add_u32 {s(sRow)}, {s(sRow)}, s36")
    p(f"s_mul_i32 s40, {s(sWV)}, 3072")
    p(f"v_add_u32 {v(vDM)}, s40, {v(vL16)}")
    p(f"s_mul_i32 s41, {s(sRow)}, 48")
    p(f"s_add_u32 s42, s41, {WS_KA - 12288}")
    p(f"s_add_u32 s43, s41, {WS_VA - 12288}")
    sFILL = 55
    p(f"s_lshr_b32 {s(sFILL)}, {s(sWV)}, 2")
    p(f"s_or_b32 {s(sFILL)}, {s(sFILL)}, {s(sR)}")
    p(f"s_cmp_eq_u32 {s(sFILL)}, 0")
    p("s_cselect_b32 s42, 0x40000000, s42")
    p("s_cselect_b32 s43, 0x40000000, s43")
    p(f"s_lshl_b32 s36, {s(sWV)}, 5")
    p(f"v_add_u32 v12, s36, {v(vQA)}")
    p("v_mul_u32_u24 v12, 48, v12")
    p(f"v_lshl_add_u32 {v(vQo)}, {v(vHH)}, 4, v12")
    p(f"v_lshl_add_u32 {v(vPQo)}, {v(vHH)}, 3, v12")
    p(f"s_add_u32 s44, s41, {WS_QB}")
    for k in range(4): p(f"v_mov_b32 {v(Q1+k)}, 0")
    p("s_mov_b32 m0, s40")
    p("s_waitcnt lgkmcnt(0)")
    srd(p, SWS, 12, WS_SIZE)
    stamp(p, 1)
    for i in range(3): p(f"buffer_load_dwordx4 {v(vDM)}, {s(SWS,4)}, s42 offen offset:{i*1024} lds")
    p(f"s_add_u32 m0, s40, {LDS_V}")
    p(f"buffer_load_dwordx4 {v(Q0,4)}, {v(vQo)}, {s(SWS,4)}, s41 offen")
    p("s_mov_b32 exec_hi, 0")
    p(f"buffer_load_dwordx4 {v(Q1,4)}, {v(vQo)}, {s(SWS,4)}, s41 offen offset:32")
    p("s_mov_b32 exec_hi, -1")
    tagK = p.vmtag()
    for i in range(3): p(f"buffer_load_dwordx4 {v(vDM)}, {s(SWS,4)}, s43 offen offset:{i*1024} lds")
    tagV = p.vmtag()
    p(f"s_lshl_b32 s66, {s(sH)}, 4")
    p(f"s_lshl_b32 s37, {s(sWV)}, 1")
    p("s_add_u32 s66, s66, s37")
    p("s_mul_i32 s66, s66, 2304")
    p(f"s_add_u32 s66, s66, {WS_KVP}")
    p("s_add_u32 s67, s66, 2304")
    p(f"v_mul_u32_u24 v12, 384, {v(vHH)}")
    p(f"v_lshl_add_u32 {v(vW0)}, {v(vQA)}, 4, v12")
    p(f"v_cmp_gt_u32 vcc, 24, {v(vQA)}")
    p("v_mov_b32 v12, 0x40000000")
    p(f"v_cndmask_b32 {v(vW0)}, v12, {v(vW0)}, vcc")
    p("s_lshr_b32 s46, s2, 3")
    p("s_lshl_b32 s46, s46, 3")
    p(f"s_add_u32 s46, s46, {s(sWV)}")
    p("s_mul_i32 s46, s46, 6400")
    p(f"s_add_u32 s46, s46, {WS_WF}")
    p(f"v_min_u32 {v(vW1)}, 49, v2")
    p(f"v_lshlrev_b32 {v(vW1)}, 7, {v(vW1)}")
    p(f"s_mul_i32 s36, {s(sWV)}, 1536")
    p(f"v_mul_u32_u24 v12, 48, {v(vQA)}")
    p("v_add_u32 v12, s36, v12")
    p(f"v_lshl_add_u32 {v(vK0)}, {v(vHH)}, 4, v12")
    p(f"v_add_u32 {v(vK1)}, 32, v12")
    p("v_bfe_u32 v12, v2, 2, 2")
    p(f"v_lshl_add_u32 v12, {v(vHH)}, 2, v12")
    p("v_mul_u32_u24 v12, 48, v12")
    p("v_bfe_u32 v13, v2, 4, 1")
    p("v_lshl_add_u32 v12, v13, 5, v12")
    p("v_and_b32 v14, 3, v2")
    p("v_lshl_add_u32 v12, v14, 3, v12")
    p(f"s_add_u32 s36, s36, {LDS_V}")
    p(f"v_add_u32 {v(vV)}, s36, v12")
    sOM, sOT = 68, 69
    p(f"s_lshl_b32 s36, {s(sR)}, 4")
    p(f"s_lshl_b32 s37, {s(sWV)}, 1")
    p("s_add_u32 s36, s36, s37")
    p("s_mul_i32 s36, s36, 40960")
    p(f"s_add_u32 s36, s36, {WS_OF}")
    p(f"s_lshr_b32 s37, {s(sH)}, 1")
    p("s_mul_i32 s37, s37, 5")
    p(f"s_and_b32 s38, {s(sH)}, 1")
    p("s_lshl_b32 s39, s38, 1")
    p("s_add_u32 s39, s39, s37")
    p("s_lshl_b32 s39, s39, 8")
    p(f"s_add_u32 {s(sOM)}, s39, s36")
    p("s_add_u32 s37, s37, 4")
    p("s_lshl_b32 s37, s37, 8")
    p("s_lshl_b32 s38, s38, 3")
    p("s_add_u32 s37, s37, s38")
    p(f"s_add_u32 {s(sOT)}, s37, s36")
    p("s_mov_b32 s38, 40960")
    p("v_and_b32 v14, 15, v2")
    p("v_lshlrev_b32 v14, 4, v14")
    p(f"v_mad_u32_u24 {v(vOt)}, v13, s38, v14")
    p(f"v_lshl_add_u32 {v(vOo)}, {v(vHH)}, 8, {v(vOt)}")
    p(f"v_lshlrev_b32 v12, 2, {v(vHH)}")
    p(f"v_sub_u32 v12, {v(vQA)}, v12")
    p(f"v_mov_b32 v13, {f32(NEG)}")
    for r0 in range(0, 16, 4):
        for r in range(r0, r0+4):
            kb = 8*(r >> 2) + (r & 3)
            p(f"v_cmp_le_i32 {s(56+2*(r&3),2)}, {kb}, v12")
        for r in range(r0, r0+4):
            p(f"v_cndmask_b32 {v(ML+r)}, v13, 0, {s(56+2*(r&3),2)}")
            p(f"v_cndmask_b32 {v(MU+r)}, 0, v13, {s(56+2*(r&3),2)}")
    p(f"v_mov_b32 {v(vM)}, {f32(-3e38)}")
    stamp(p, 2)
    p.wait_vm_tag(tagK)
    p(f"s_cmp_lg_u32 {s(sFILL)}, 0")
    p("s_cbranch_scc1 K2_nofill")
    p("v_mul_u32_u24 v12, 48, v0")
    p("v_mov_b32 v13, 0xf149")
    p("ds_write_b32 v12, v13 offset:40")
    p("s_waitcnt lgkmcnt(0)")
    p.label("K2_nofill")
    p("s_barrier")
    stamp(p, 3)
    def rdK(t):
        b = KF[t & 1]
        p(f"ds_read_b128 {v(b,4)}, {v(vK0)} offset:{t*1536}")
        p(f"ds_read_b128 {v(b+4,4)}, {v(vK1)} offset:{t*1536}")
    def rdV(t):
        b = VF[t & 1]
        for c in range(2):
            for hsel in range(2):
                p(f"ds_read_b64_tr_b16 {v(b+4*c+2*hsel,2)}, {v(vV)} offset:{t*1536 + c*768 + hsel*384}")
    def qk(t, half, C):
        S = SB[t & 1]; b = KF[t & 1]
        if half == 0: p(f"v_mfma_f32_32x32x16_bf16 {v(S,16)}, {v(b,4)}, {v(Q0,4)}, {C}")
        else: p(f"v_mfma_f32_32x32x16_bf16 {v(S,16)}, {v(b+4,4)}, {v(Q1,4)}, {v(S,16)}")
    sec = []
    for k in range(3): sec.append(f"buffer_load_dwordx2 {v(PQR+2*k,2)}, {v(vPQo)}, {s(SWS,4)}, s44 offen offset:{16*k}")
    for k in range(3): sec.append(f"buffer_load_dwordx4 {v(PAR+4*k,4)}, {v(vW0)}, {s(SWS,4)}, s66 offen offset:{768*k}")
    for k in range(3): sec.append(f"buffer_load_dwordx4 {v(PAR+12+4*k,4)}, {v(vW0)}, {s(SWS,4)}, s67 offen offset:{768*k}")
    sec.append(f"buffer_load_dword {v(WOR)}, {v(vW1)}, {s(SWS,4)}, s46 offen")
    def C1(t): return v(MU,16) if t == 0 else (v(ML,16) if t == 8 else '0')
    rdK(0); rdK(1)
    qk(0,0,C1(0)); qk(0,1,None)
    for t in range(9):
        if t+1 <= 8:
            qk(t+1,0,C1(t+1))
            if sec: p(sec.pop(0))
            qk(t+1,1,None)
            if sec: p(sec.pop(0))
        if t+2 <= 8: rdK(t+2)
        S = SB[t & 1]
        for k in range(8): p(f"v_max3_f32 {v(vM)}, {v(vM)}, {v(S+2*k)}, {v(S+2*k+1)}")
    assert not sec
    rdK(0); rdK(1)
    p(f"v_mov_b32 v12, {v(vM)}")
    p(f"v_permlane32_swap_b32 {v(vM)}, v12")
    p(f"v_max_f32 {v(vM)}, {v(vM)}, v12")
    p(f"v_sub_f32 {v(CM)}, 0, {v(vM)}")
    p(f"v_sub_f32 {v(CM+1)}, 0, {v(vM)}")
    for k in range(8): p(f"v_pk_add_f32 {v(MU+2*k,2)}, {v(MU+2*k,2)}, {v(CM,2)}")
    for k in range(2, 16): p(f"v_mov_b32 {v(CM+k)}, {v(CM)}")
    for k in range(8): p(f"v_pk_add_f32 {v(ML+2*k,2)}, {v(ML+2*k,2)}, {v(CM,2)}")
    stamp(p, 4)
    p.wait_vm_tag(tagV)
    p("s_barrier")
    def C2(t): return v(MU,16) if t == 0 else (v(ML,16) if t == 8 else v(CM,16))
    def pv(t, c):
        p(f"v_mfma_f32_32x32x16_bf16 {v(O,16)}, {v(VF[t&1]+4*c,4)}, {v(PB[t&1]+4*c,4)}, {'0' if (t==0 and c==0) else v(O,16)}")
    qk(0,0,C2(0)); qk(0,1,None)
    for t in range(9):
        S = SB[t & 1]
        rdV(t)
        for k in range(16):
            p(f"v_exp_f32 {v(S+k)}, {v(S+k)}")
            if k == 0 and t+1 <= 8: qk(t+1,0,C2(t+1))
            if k == 4 and t+1 <= 8: qk(t+1,1,None)
            if k == 5 and t+2 <= 8: rdK(t+2)
            if k == 8 and t >= 1: pv(t-1,0)
            if k == 12 and t >= 1: pv(t-1,1)
        for k in range(8): p(f"v_cvt_pk_bf16_f32 {v(PB[t&1]+k)}, {v(S+2*k)}, {v(S+2*k+1)}")
        if t == 4:
            for k in range(6): p(f"v_pk_add_f32 {v(PAR+2*k,2)}, {v(PAR+2*k,2)}, {v(PAR+12+2*k,2)}")
            p(f"v_add_u32 v12, {LDS_RED}, {v(vDM)}")
            for k in range(3): p(f"ds_write_b128 v12, {v(PAR+4*k,4)} offset:{1024*k}")
        if t == 6:
            T = 176; U = 188
            p(f"s_mov_b32 s53, {f32(LOG2E)}")
            p(f"s_mov_b32 s54, {f32(EPS)}")
            for k in range(6):
                p(f"v_lshlrev_b32 {v(T+2*k)}, 16, {v(PQR+k)}")
                p(f"v_and_b32 {v(T+2*k+1)}, 0xffff0000, {v(PQR+k)}")
            for k in range(12): p(f"v_mul_f32 {v(U+k)}, s53, {v(T+k)}")
            for k in range(12): p(f"v_exp_f32 {v(U+k)}, {v(U+k)} clamp")
            for k in range(12): p(f"v_max_f32 {v(T+k)}, 0, {v(T+k)}")
            for k in range(12): p(f"v_add_f32 {v(T+k)}, {v(T+k)}, {v(U+k)}")
            for k in range(12): p(f"v_add_f32 {v(T+k)}, s54, {v(T+k)}")
            for k in range(6): p(f"v_cvt_pk_bf16_f32 {v(PQ+k)}, {v(T+2*k)}, {v(T+2*k+1)}")
            p(f"v_mov_b32 {v(PQ+6)}, 0"); p(f"v_mov_b32 {v(PQ+7)}, 0")
    pv(8,0); pv(8,1)
    p("s_waitcnt lgkmcnt(0)")
    stamp(p, 5)
    p("s_barrier")
    stamp(p, 8)
    p(f"v_add_u32 v12, {LDS_RED}, {v(vL16)}")
    RB = 32
    for w2 in range(8):
        for k in range(3): p(f"ds_read_b128 {v(RB+12*w2+4*k,4)}, v12 offset:{w2*3072+1024*k}")
    def oepi(A, s_main, s_tail, eps, E):
        p(f"v_mov_b32 v13, {v(A+8)}")
        p(f"v_mov_b32 v14, {v(A+8)}")
        p("v_permlane32_swap_b32 v13, v14")
        if eps: p(f"v_add_f32 v14, {f32(EPS)}, v14")
        p("v_rcp_f32 v14, v14")
        p("s_nop 0")
        p("v_mov_b32 v15, v14")
        for k in range(6): p(f"v_pk_mul_f32 {v(A+2*k,2)}, {v(A+2*k,2)}, v[14:15]")
        for k in range(6): p(f"v_cvt_pk_bf16_f32 {v(E+k)}, {v(A+2*k)}, {v(A+2*k+1)}")
        p(f"buffer_store_dwordx4 {v(E,4)}, {v(vOo)}, {s(SWS,4)}, {s(s_main)} offen {SC}")
        p("s_mov_b32 exec_hi, 0")
        p(f"buffer_store_dwordx2 {v(E+4,2)}, {v(vOt)}, {s(SWS,4)}, {s(s_tail)} offen {SC}")
        p("s_mov_b32 exec_hi, -1")
    oepi(O, sOM, sOT, False, 128)
    stamp(p, 9)
    for st_ in (1, 2, 4):
        for w2 in range(0, 8, 2*st_):
            for k in range(6): p(f"v_pk_add_f32 {v(RB+12*w2+2*k,2)}, {v(RB+12*w2+2*k,2)}, {v(RB+12*(w2+st_)+2*k,2)}")
    KVF = 136
    for k in range(6): p(f"v_cvt_pk_bf16_f32 {v(KVF+k)}, {v(RB+2*k)}, {v(RB+2*k+1)}")
    p(f"v_mov_b32 {v(KVF+6)}, 0"); p(f"v_mov_b32 {v(KVF+7)}, 0")
    N = 160
    p(f"v_mfma_f32_32x32x16_bf16 {v(N,16)}, {v(KVF,4)}, {v(PQ,4)}, 0")
    p(f"v_mfma_f32_32x32x16_bf16 {v(N,16)}, {v(KVF+4,4)}, {v(PQ+4,4)}, {v(N,16)}")
    stamp(p, 10)
    p(f"s_add_u32 {s(sOM)}, {s(sOM)}, 20480")
    p(f"s_add_u32 {s(sOT)}, {s(sOT)}, 20480")
    oepi(N, sOM, sOT, True, 176)
    stamp(p, 6)
    if STAMP: p("s_waitcnt vmcnt(0)")
    stamp(p, 7)
    stamp_flush(p, 1, SWS, 8, sWV)
    p.label("K2_end")
    p("s_endpgm")
    p.pad()
    return p.text(), dict(name="k2_kernel", vgpr=229, sgpr=100, grid=256, block=512, lds=LDS_RED + 8*3072)

def gen_k3():
    p = Prog()
    header(p, "k3_kernel")
    p.stv = 227
    SWS, SO = 8, 12
    sWV, sRT, sCT = 16, 17, 18
    p("s_cmp_ge_u32 s2, 256")
    p("s_cbranch_scc1 K3_end")
    stamp(p, 0)
    p("s_load_dwordx2 s[4:5], s[0:1], 56")
    p("s_load_dwordx2 s[6:7], s[0:1], 72")
    p("v_lshrrev_b32 v1, 6, v0")
    p("v_and_b32 v2, 63, v0")
    p(f"v_readfirstlane_b32 {s(sWV)}, v1")
    p("s_and_b32 s20, s2, 7")
    p("s_lshr_b32 s21, s2, 3")
    p("s_lshl_b32 s22, s20, 2")
    p("s_lshr_b32 s23, s21, 3")
    p(f"s_add_u32 {s(sRT)}, s22, s23")
    p(f"s_and_b32 {s(sCT)}, s21, 7")
    p(f"s_mul_i32 s20, {s(sWV)}, 10240")
    p("v_lshlrev_b32 v3, 4, v2")
    p("v_add_u32 v3, s20, v3")
    p("v_add_u32 v4, 4096, v3")
    p("v_add_u32 v5, 8192, v3")
    sA, sB = 24, 28
    p(f"s_mul_i32 s20, {s(sRT)}, {4*40960}")
    for i in range(4): p(f"s_add_u32 {s(sA+i)}, s20, {WS_OF + i*40960}")
    p(f"s_mul_i32 s20, {s(sCT)}, {5*40960}")
    for j in range(5): p(f"s_add_u32 {s(sB+j)}, s20, {WS_WF + j*40960}")
    p("s_waitcnt lgkmcnt(0)")
    srd(p, SWS, 6, WS_SIZE)
    NB = 6
    FB = 8
    def ld(ks):
        b = FB + 36*(ks % NB)
        vo = v(3 + ks // 4); im = (ks % 4) * 1024
        for j in range(5):
            if j < 4: p(f"buffer_load_dwordx4 {v(b+4*j,4)}, {vo}, {s(SWS,4)}, {s(sA+j)} offen offset:{im}")
            p(f"buffer_load_dwordx4 {v(b+16+4*j,4)}, {vo}, {s(SWS,4)}, {s(sB+j)} offen offset:{im}")
    stamp(p, 1)
    for ks in range(NB): ld(ks)
    stamp(p, 2)
    srd(p, SO, 4, 2048*1280)
    vGT = 6
    p("v_lshrrev_b32 v1, 2, v0")
    p("v_lshlrev_b32 v224, 3, v1") if False else None
    p(f"s_lshl_b32 s20, {s(sRT)}, 9")
    p(f"s_add_u32 s20, s20, {WS_G}")
    GV = FB + 36*NB
    p(f"v_lshlrev_b32 {v(GV+2)}, 3, v1")
    p(f"buffer_load_dwordx2 {v(GV,2)}, {v(GV+2)}, {s(SWS,4)}, s20 offen")
    for ks in range(10):
        b = FB + 36*(ks % NB)
        for j in range(5):
            for i in range(4):
                A = (j*4+i)*4
                p(f"v_mfma_f32_16x16x32_bf16 {a(A,4)}, {v(b+16+4*j,4)}, {v(b+4*i,4)}, {'0' if ks==0 else a(A,4)}")
        if ks + NB < 10: ld(ks + NB)
        if ks == 0: stamp(p, 3)
    stamp(p, 4)
    RS = 336
    p("v_and_b32 v3, 15, v2")
    p(f"v_mul_u32_u24 v3, {RS}, v3")
    p("v_lshrrev_b32 v4, 4, v2")
    p("v_lshl_add_u32 v3, v4, 4, v3")
    p(f"s_mul_i32 s20, {s(sWV)}, {64*RS}")
    p("v_add_u32 v3, s20, v3")
    for j in range(5):
        for i in range(4):
            A = (j*4+i)*4
            p(f"ds_write_b128 v3, {a(A,4)} offset:{i*16*RS + j*64}")
    p(f"v_mul_u32_u24 v4, {RS}, v1")
    p("v_and_b32 v5, 3, v0")
    p("v_mul_u32_u24 v7, 80, v5")
    p("v_add_u32 v4, v4, v7")
    p(f"v_add_u32 v7, {2*64*RS}, v4")
    p("s_waitcnt lgkmcnt(0)")
    p("s_barrier")
    stamp(p, 5)
    R = 8
    for w in range(4):
        for c in range(5):
            p(f"ds_read_b128 {v(R+20*w+4*c,4)}, {v(4 if w < 2 else 7)} offset:{(w&1)*64*RS + 16*c}")
    p("s_movk_i32 s20, 1280")
    p("v_mul_u32_u24 v5, 40, v5")
    p("v_mad_u32_u24 v5, v1, s20, v5")
    p(f"s_mul_i32 s21, {s(sRT)}, {64*1280}")
    p(f"s_mul_i32 s22, {s(sCT)}, 160")
    p("s_add_u32 s21, s21, s22")
    for k in range(20): p(f"v_add_f32 {v(R+k)}, {v(R+k)}, {v(R+20+k)}")
    for k in range(20): p(f"v_mul_f32 {v(R+k)}, {v(GV)}, {v(R+k)}")
    for k in range(20): p(f"v_add_f32 {v(R+40+k)}, {v(R+40+k)}, {v(R+60+k)}")
    for k in range(20): p(f"v_fmac_f32 {v(R+k)}, {v(GV+1)}, {v(R+40+k)}")
    E = 96
    for k in range(10): p(f"v_cvt_pk_bf16_f32 {v(E+k)}, {v(R+2*k)}, {v(R+2*k+1)}")
    p(f"buffer_store_dwordx4 {v(E,4)}, v5, {s(SO,4)}, s21 offen")
    p(f"buffer_store_dwordx4 {v(E+4,4)}, v5, {s(SO,4)}, s21 offen offset:16")
    p(f"buffer_store_dwordx2 {v(E+8,2)}, v5, {s(SO,4)}, s21 offen offset:32")
    stamp(p, 6)
    if STAMP: p("s_waitcnt vmcnt(0)")
    stamp(p, 7)
    stamp_flush(p, 2, SWS, 8, sWV)
    p.label("K3_end")
    p("s_endpgm")
    p.pad()
    return p.text(), dict(name="k3_kernel", vgpr=228+80, arch=228, sgpr=100, grid=256, block=256, lds=4*64*RS)
```

```python
import math, struct, sys
from asmlib import *

NAME = "gated_mix__sliding_block__linear_attn_block__prompt"
WS_QA=0x000000; WS_KA=0x300000; WS_VA=0x600000; WS_QB=0x900000; WS_KVP=0xC00000
WS_OF=0xE00000; WS_WF=0x1300000; WS_G=0x1500000; WS_SIZE=0x1600000

def f32(x): return "0x%08x" % struct.unpack('<I', struct.pack('<f', x))[0]
LOG2E = math.log2(math.e)
QSCALE = (20 ** -0.5) * LOG2E
EPS = 1e-6
NEG = -1e30

def srd(p, d, base, nbytes):
    p(f"s_mov_b32 {s(d)}, {s(base)}")
    p(f"s_and_b32 {s(d+1)}, {s(base+1)}, 0xffff")
    p(f"s_mov_b32 {s(d+2)}, {nbytes}")
    p(f"s_mov_b32 {s(d+3)}, 0x20000")

import os
STAMP = int(os.environ.get('STAMP', '0'))
WS_DBG = 0x1580000
STV = {}
SC = os.environ.get('SC', 'sc1')
def stamp(p, i, sreg=None):
    if not STAMP: return
    p("s_memrealtime s[98:99]")
    p("s_waitcnt lgkmcnt(0)")
    if sreg is None:
        p(f"v_writelane_b32 {v(p.stv)}, s98, {i}")
    else:
        p(f"s_mov_b32 s99, m0")
        p(f"s_add_u32 m0, {s(sreg)}, {i}")
        p("s_nop 1")
        p(f"v_writelane_b32 {v(p.stv)}, s98, m0")
        p(f"s_mov_b32 m0, s99")
def stampc(p, i):
    if not STAMP: return
    p("s_memtime s[98:99]")
    p("s_waitcnt lgkmcnt(0)")
    p(f"v_writelane_b32 {v(p.stv)}, s98, {i}")
def stamp_flush(p, kidx, srdreg, n, wavereg):
    if not STAMP: return
    lab = f"STK{kidx}_{len(p.ins)}"
    p("s_getreg_b32 s98, hwreg(HW_REG_XCC_ID)")
    p(f"v_writelane_b32 {v(p.stv)}, s98, 29")
    p("s_getreg_b32 s98, hwreg(HW_REG_HW_ID)")
    p(f"v_writelane_b32 {v(p.stv)}, s98, 28")
    p(f"s_cmp_lg_u32 {s(wavereg)}, 0")
    p(f"s_cbranch_scc1 {lab}")
    p("s_mov_b32 exec_lo, -1")
    p("s_mov_b32 exec_hi, 0")
    p("s_lshl_b32 s98, s2, 7")
    p(f"s_add_u32 s98, s98, {WS_DBG + kidx*0x8000}")
    p("v_mbcnt_lo_u32_b32 v1, -1, 0")
    p("v_lshlrev_b32 v1, 2, v1")
    p(f"buffer_store_dword {v(p.stv)}, v1, {s(srdreg,4)}, s98 offen")
    p.label(lab)

def header(p, name):
    p.raw(f".globl {name}")
    p.raw(".p2align 8")
    p.raw(f".type {name},@function")
    p.label(name)

def gen_k1():
    p = Prog()
    header(p, "k1_kernel")
    p.stv = 176
    SX, SW, SWS = 12, 16, 20
    sRT, sHG, sBR, sST, sKC, sOX, sOW, sSLI, sSLC, sWV = 24, 25, 26, 27, 28, 29, 30, 31, 32, 33
    sMH, sNG = 41, 42
    sINIT, sSCL, sFLG = 44, 48, 52
    sM0X, sM0W = 56, 57
    p("s_cmp_ge_u32 s2, 256")
    p("s_cbranch_scc1 K1_end")
    stamp(p, 0)
    p("s_load_dwordx4 s[4:7], s[0:1], 0")
    p("s_load_dwordx2 s[8:9], s[0:1], 32")
    p("s_load_dwordx2 s[10:11], s[0:1], 72")
    p("v_lshrrev_b32 v1, 6, v0")
    p("v_and_b32 v2, 63, v0")
    p(f"v_readfirstlane_b32 {s(sWV)}, v1")
    p("s_and_b32 s34, s2, 7")
    p("s_lshr_b32 s35, s2, 3")
    p("s_lshr_b32 s36, s34, 2")
    p("s_and_b32 s37, s34, 3")
    p("s_lshr_b32 s38, s35, 2")
    p("s_and_b32 s39, s35, 3")
    p(f"s_lshl_b32 {s(sRT)}, s36, 3")
    p(f"s_add_u32 {s(sRT)}, {s(sRT)}, s38")
    p(f"s_lshr_b32 {s(sBR)}, s39, 1")
    p(f"s_and_b32 {s(sHG)}, s39, 1")
    p("s_lshl_b32 s40, s37, 1")
    p(f"s_add_u32 {s(sHG)}, {s(sHG)}, s40")
    p("s_mov_b32 s58, s38")
    p("s_mov_b32 s59, s39")
    p(f"s_lshr_b32 {s(sMH)}, {s(sWV)}, 2")
    p(f"s_and_b32 {s(sNG)}, {s(sWV)}, 3")
    vXO, vWO = 4, 6
    p("v_lshrrev_b32 v3, 3, v2")
    p("v_and_b32 v10, 7, v2")
    p("v_xor_b32 v10, v10, v3")
    p("v_lshlrev_b32 v10, 4, v10")
    p("s_movk_i32 s40, 1280")
    p(f"v_mad_u32_u24 {v(vXO)}, v3, s40, v10")
    p(f"s_lshl_b32 s34, {s(sRT)}, 7")
    p(f"s_lshl_b32 s35, {s(sWV)}, 4")
    p("s_add_u32 s34, s34, s35")
    p("s_mul_i32 s34, s34, 1280")
    p(f"v_add_u32 {v(vXO)}, s34, {v(vXO)}")
    p(f"v_add_u32 {v(vXO+1)}, 9216, {v(vXO)}")
    p("v_lshrrev_b32 v3, 5, v2")
    p("v_bfe_u32 v10, v2, 1, 4")
    p("v_and_b32 v11, 1, v2")
    p("v_lshlrev_b32 v11, 4, v11")
    p("s_movk_i32 s35, 3840")
    p("v_mad_u32_u24 v11, v3, s35, v11")
    p(f"s_and_b32 s36, {s(sWV)}, 1")
    p("s_lshl_b32 s36, s36, 2")
    p(f"s_mul_i32 s37, {s(sWV)}, {8*3840}")
    p(f"s_mul_i32 s38, {s(sHG)}, 160")
    p("s_add_u32 s37, s37, s38")
    p("v_mov_b32 v16, 0x40000000")
    for i in range(2):
        p(f"v_or_b32 v12, s36, v3")
        if i: p("v_or_b32 v12, 2, v12")
        p("v_xor_b32 v12, v12, v10")
        p("v_mul_u32_u24 v13, 52, v12")
        p("v_lshrrev_b32 v13, 8, v13")
        p("v_mul_u32_u24 v14, 5, v13")
        p("v_sub_u32 v14, v12, v14")
        p("v_lshl_add_u32 v14, v14, 5, v11")
        p("v_mad_u32_u24 v14, v13, s40, v14")
        p(f"v_add_u32 v14, s37, v14")
        if i: p(f"v_add_u32 v14, {2*3840-1024}, v14")
        p("v_cmp_eq_u32 vcc, 15, v12")
        p(f"v_cndmask_b32 {v(vWO+i)}, v14, v16, vcc")
        p(f"v_add_u32 {v(vWO+2+i)}, 13312, {v(vWO+i)}")
    p("s_waitcnt lgkmcnt(0)")
    srd(p, SX, 4, 2048*1280)
    p(f"s_cmp_eq_u32 {s(sBR)}, 0")
    p("s_cselect_b32 s6, s6, s8")
    p("s_cselect_b32 s7, s7, s9")
    srd(p, SW, 6, 640*3840)
    srd(p, SWS, 10, WS_SIZE)
    p(f"s_lshl_b32 {s(sM0X)}, {s(sWV)}, 11")
    p(f"s_lshl_b32 {s(sM0W)}, {s(sWV)}, 12")
    p(f"s_add_u32 {s(sM0W)}, {s(sM0W)}, 16384")
    p(f"s_mov_b32 {s(sSLI)}, 0")
    ROTG = int(os.environ.get('ROTG', '3'))
    if ROTG == 10:
        p(f"s_mul_i32 {s(sKC)}, s59, 3")
        p(f"s_add_u32 {s(sKC)}, {s(sKC)}, s58")
        p(f"s_sub_u32 s34, {s(sKC)}, 10")
        p(f"s_cmp_ge_u32 {s(sKC)}, 10")
        p(f"s_cselect_b32 {s(sKC)}, s34, {s(sKC)}")
    elif ROTG == 1:
        p(f"s_mov_b32 {s(sKC)}, 0")
    else:
        mg = {3: 86, 4: 64, 5: 52, 2: 128}[ROTG]
        p("s_add_u32 s34, s58, s59")
        p(f"s_mul_i32 s35, s34, {mg}")
        p("s_lshr_b32 s35, s35, 8")
        p(f"s_mul_i32 s35, s35, {ROTG}")
        p("s_sub_u32 s34, s34, s35")
        p("s_mul_i32 s34, s34, 10")
        p(f"s_mul_i32 s34, s34, {mg}")
        p(f"s_lshr_b32 {s(sKC)}, s34, 8")
    p(f"s_lshl_b32 {s(sOX)}, {s(sKC)}, 7")
    p(f"s_mul_i32 {s(sOW)}, {s(sKC)}, 245760")
    def issue_steps():
        g = []
        g.append([f"s_add_u32 m0, {s(sSLI)}, {s(sM0X)}", "s_nop 0",
                  f"buffer_load_dwordx4 {v(vXO)}, {s(SX,4)}, {s(sOX)} offen lds"])
        g.append([f"buffer_load_dwordx4 {v(vXO+1)}, {s(SX,4)}, {s(sOX)} offen offset:1024 lds"])
        g.append([f"s_add_u32 m0, {s(sSLI)}, {s(sM0W)}", f"s_add_u32 {s(sOX)}, {s(sOX)}, 128",
                  f"buffer_load_dwordx4 {v(vWO)}, {s(SW,4)}, {s(sOW)} offen lds"])
        for i in range(1, 4):
            g.append([f"buffer_load_dwordx4 {v(vWO+i)}, {s(SW,4)}, {s(sOW)} offen offset:{i*1024} lds"])
        g[-1] += [f"s_add_u32 {s(sOW)}, {s(sOW)}, 245760", f"s_add_u32 {s(sKC)}, {s(sKC)}, 1", f"s_cmp_eq_u32 {s(sKC)}, 10",
                  f"s_cselect_b32 {s(sOX)}, 0, {s(sOX)}", f"s_cselect_b32 {s(sOW)}, 0, {s(sOW)}",
                  f"s_add_u32 {s(sSLI)}, {s(sSLI)}, 49152",
                  f"s_cmp_eq_u32 {s(sSLI)}, 147456", f"s_cselect_b32 {s(sSLI)}, 0, {s(sSLI)}"]
        return g
    def issue():
        for g in issue_steps():
            for t in g: p(t)
    stamp(p, 1)
    PRO = os.environ.get('PRO', '1')
    issue()
    p("s_getpc_b64 s[60:61]")
    p.label("K1_pc")
    p(f"s_lshl_b32 s34, {s(sWV)}, 13")
    p("v_lshlrev_b32 v26, 7, v2")
    p("v_add_u32 v26, s34, v26")
    p("v_min_u32 v26, CODE_END-K1_pc-4, v26")
    p("global_load_dword v29, v26, s[60:61]")
    if PRO == '0':
        issue(); issue()
    stamp(p, 2)
    vXS, vWS, vXA, vWA = 10, 12, 16, 18
    vG, vM = 22, 23
    p(f"v_lshrrev_b32 {v(vG)}, 4, v2")
    p(f"v_and_b32 {v(vM)}, 15, v2")
    p("v_and_b32 v3, 7, v2")
    p(f"v_xor_b32 v3, v3, {v(vG)}")
    p("v_lshlrev_b32 v3, 4, v3")
    p(f"v_lshl_add_u32 v3, {v(vM)}, 7, v3")
    p(f"s_lshl_b32 s34, {s(sMH)}, 13")
    p(f"v_add_u32 {v(vXS)}, s34, v3")
    p(f"v_xor_b32 {v(vXS+1)}, 64, {v(vXS)}")
    p("v_bfe_u32 v3, v2, 2, 2")
    p(f"v_and_b32 v24, 1, {v(vG)}")
    p("v_lshl_or_b32 v24, v24, 2, v3")
    p(f"v_lshl_add_u32 v25, {v(vG)}, 3, v3")
    p("v_lshlrev_b32 v25, 9, v25")
    p("v_and_b32 v26, 3, v2")
    p("v_lshl_add_u32 v25, v26, 3, v25")
    p("v_add_u32 v25, 16384, v25")
    for jj in range(4):
        p(f"s_add_u32 s35, {s(sNG)}, {4*jj}")
        p(f"v_xor_b32 v26, s35, v24")
        p(f"v_lshl_add_u32 {v(vWS+jj)}, v26, 5, v25")
        p("s_sub_u32 s36, s35, 5")
        p("s_cmp_lt_u32 s36, 5")
        p(f"s_cselect_b32 {s(sFLG+jj)}, {s(sBR)}, 0")
        p(f"s_mul_i32 {s(sINIT+jj)}, {s(sFLG+jj)}, {f32(EPS)}")
        p("s_cmp_lt_u32 s35, 5")
        p("s_cselect_b32 s36, 1, 0")
        p(f"s_andn2_b32 s36, s36, {s(sBR)}")
        p("s_cmp_eq_u32 s36, 1")
        p(f"s_cselect_b32 {s(sSCL+jj)}, {f32(QSCALE)}, 1.0")
    ACC = 32
    FX = [96, 128]
    FW = [112, 144]
    for jj in range(4):
        for k in range(16):
            p(f"v_mov_b32 {v(ACC+jj*16+k)}, {s(sINIT+jj)}")
    p(f"s_mov_b32 {s(sST)}, 0")
    p(f"s_mov_b32 {s(sSLC)}, 0")
    X_NOLDS = os.environ.get('K1_NOLDS'); X_NOMFMA = os.environ.get('K1_NOMFMA')
    def rdx(ks, i):
        if not X_NOLDS or X_NOLDS == 'w': p(f"ds_read_b128 {v(FX[ks]+4*i,4)}, {v(vXA+ks)} offset:{i*2048}")
    def rdw(ks, jj, h):
        if not X_NOLDS or X_NOLDS == 'x': p(f"ds_read_b64_tr_b16 {v(FW[ks]+4*jj+2*h,2)}, {v(vWA+jj)} offset:{ks*16384+h*2048}")
    def mm(ks, jj, i):
        A = ACC + (jj*4+i)*4
        p(f"v_mfma_f32_16x16x32_bf16 {v(A,4)}, {v(FW[ks]+4*jj,4)}, {v(FX[ks]+4*i,4)}, {v(A,4)}")
    def readlist(ks):
        L = [lambda: rdw(ks,0,0), lambda: rdw(ks,0,1)]
        for i in range(4): L.append(lambda i=i: rdx(ks,i))
        for jj in range(1,4):
            L.append(lambda jj=jj: rdw(ks,jj,0)); L.append(lambda jj=jj: rdw(ks,jj,1))
        return L
    def reads(ks):
        for f in readlist(ks): f()
    def setaddr():
        for k in range(2): p(f"v_add_u32 {v(vXA+k)}, {s(sSLC)}, {v(vXS+k)}")
        for k in range(4): p(f"v_add_u32 {v(vWA+k)}, {s(sSLC)}, {v(vWS+k)}")
    setaddr()
    if PRO == '0':
        p("s_waitcnt vmcnt(13)")
        p("s_barrier")
    elif PRO == '1':
        issue()
        p("s_waitcnt vmcnt(7)")
        p("s_barrier")
        issue()
    elif PRO == '2':
        issue(); issue()
        p("s_waitcnt vmcnt(13)")
        p("s_barrier")
    stamp(p, 3)
    stampc(p, 30)
    p.forget()
    reads(0)
    p.label("K1_loop")
    if STAMP > 1: stamp(p, 8, sST)
    L = readlist(1)
    for jj in range(4):
        for i in range(4):
            mm(0,jj,i)
            if L: L.pop(0)()
    p(f"s_add_u32 {s(sSLC)}, {s(sSLC)}, 49152")
    p(f"s_cmp_eq_u32 {s(sSLC)}, 147456")
    p(f"s_cselect_b32 {s(sSLC)}, 0, {s(sSLC)}")
    p(f"s_cmp_gt_u32 {s(sST)}, 6")
    p(f"s_cselect_b32 {s(sOX)}, 0x40000000, {s(sOX)}")
    p(f"s_cselect_b32 {s(sOW)}, 0x40000000, {s(sOW)}")
    p("s_waitcnt lgkmcnt(0)")
    setaddr()
    p("s_waitcnt vmcnt(6)")
    p("s_barrier")
    L = readlist(0)
    steps = issue_steps()
    if os.environ.get('K1_NODMA'): steps = []
    n = 0
    for jj in range(4):
        for i in range(4):
            mm(1,jj,i)
            if L: L.pop(0)()
            n += 1
            if n % 2 == 0 and n >= 4 and steps:
                for t in steps.pop(0): p(t)
    assert not steps
    p(f"s_add_u32 {s(sST)}, {s(sST)}, 1")
    p(f"s_cmp_lt_u32 {s(sST)}, 10")
    p("s_cbranch_scc1 K1_loop")
    p("s_waitcnt vmcnt(0) lgkmcnt(0)")
    p("s_barrier")
    stamp(p, 4)
    stampc(p, 31)
    vIM = 4
    p(f"s_lshl_b32 s34, {s(sMH)}, 6")
    p(f"v_add_u32 v3, s34, {v(vM)}")
    p("v_mul_u32_u24 v3, 48, v3")
    p(f"s_lshl_b32 s34, {s(sNG)}, 2")
    p("s_movk_i32 s36, 6144")
    for jj in range(4):
        p(f"s_add_u32 s35, s34, {16*jj}")
        p(f"v_add_u32 v8, s35, {v(vG)}")
        p("v_mul_u32_u24 v9, 52, v8")
        p("v_lshrrev_b32 v9, 8, v9")
        p("v_mul_u32_u24 v10, 5, v9")
        p("v_sub_u32 v10, v8, v10")
        p("v_lshl_add_u32 v10, v10, 3, v3")
        p(f"v_mad_u32_u24 {v(vIM+jj)}, v9, s36, v10")
    p("v_lshrrev_b32 v8, 7, v0")
    p("v_and_b32 v9, 127, v0")
    p("v_mul_u32_u24 v9, 48, v9")
    p("v_mad_u32_u24 v8, v8, s36, v9")
    p("v_mov_b32 v10, 0x3f80")
    p("v_mov_b32 v11, 0")
    p("v_mov_b32 v12, 0")
    p("v_mov_b32 v13, 0")
    p("ds_write_b64 v8, v[10:11] offset:40")
    p(f"ds_write_b64 v8, v[12:13] offset:{40+24576}")
    p(f"ds_write_b64 v8, v[10:11] offset:{40+49152}")
    p(f"s_mov_b32 s62, {f32(LOG2E)}")
    p(f"s_mov_b32 s63, {f32(LOG2E)}")
    p(f"s_mov_b32 s38, {f32(EPS)}")
    p(f"s_mov_b32 s64, {f32(QSCALE)}")
    p(f"s_mov_b32 s65, {f32(QSCALE)}")
    T = 96
    for jj in (3, 0, 1, 2):
        A = ACC + jj*16
        if jj in (1, 2):
            p(f"s_cmp_eq_u32 {s(sFLG+jj)}, 0")
            p(f"s_cbranch_scc1 K1_nophi{jj}")
            for k in range(8): p(f"v_pk_mul_f32 {v(T+2*k,2)}, {v(A+2*k,2)}, s[62:63]")
            for k in range(16): p(f"v_exp_f32 {v(T+k)}, {v(T+k)} clamp")
            for k in range(16): p(f"v_max_f32 {v(A+k)}, s38, {v(A+k)}")
            for k in range(8): p(f"v_pk_add_f32 {v(A+2*k,2)}, {v(A+2*k,2)}, {v(T+2*k,2)}")
            p.label(f"K1_nophi{jj}")
        if jj in (0, 1):
            p(f"s_cmp_eq_u32 {s(sSCL+jj)}, 1.0")
            p(f"s_cbranch_scc1 K1_noscl{jj}")
            for k in range(8): p(f"v_pk_mul_f32 {v(A+2*k,2)}, {v(A+2*k,2)}, s[64:65]")
            p.label(f"K1_noscl{jj}")
        P = 112 + jj*8
        for k in range(8): p(f"v_cvt_pk_bf16_f32 {v(P+k)}, {v(A+2*k)}, {v(A+2*k+1)}")
        for i in range(4): p(f"ds_write_b64 {v(vIM+jj)}, {v(P+2*i,2)} offset:{i*768}")
    p("s_waitcnt lgkmcnt(0)")
    p("s_barrier")
    stamp(p, 5)
    p(f"s_mul_i32 s34, {s(sWV)}, 768")
    p("v_lshlrev_b32 v3, 4, v2")
    p("v_add_u32 v3, s34, v3")
    p(f"v_add_u32 v4, {6*6144}, v3")
    p(f"s_mul_i32 s34, {s(sHG)}, {4*98304}")
    p(f"s_mul_i32 s35, {s(sRT)}, 6144")
    p("s_add_u32 s34, s34, s35")
    p(f"s_mul_i32 s35, {s(sBR)}, {3*0x300000}")
    p("s_add_u32 s34, s34, s35")
    p("s_mov_b32 exec_hi, 0xffff")
    D = 32
    def rdblk(b):
        if b < 6: p(f"ds_read_b128 {v(D+4*b,4)}, v3 offset:{b*6144}")
        else: p(f"ds_read_b128 {v(D+4*b,4)}, v4 offset:{(b-6)*6144}")
    def stblk(b):
        off = (b//4)*0x300000 + (b%4)*98304
        p(f"s_add_u32 s35, s34, {off}")
        p(f"buffer_store_dwordx4 {v(D+4*b,4)}, v3, {s(SWS,4)}, s35 offen {SC}")
    for b in range(4): rdblk(b)
    p(f"s_cmp_eq_u32 {s(sBR)}, 0")
    p("s_cbranch_scc0 K1_bpath")
    p.begin_cond()
    for b in range(4,12): rdblk(b)
    for b in range(12): stblk(b)
    stamp(p, 6)
    if STAMP: p("s_waitcnt vmcnt(0)")
    stamp(p, 7)
    stamp_flush(p, 0, SWS, 8, sWV)
    p("s_endpgm")
    p.end_cond()
    p.label("K1_bpath")
    p("s_waitcnt lgkmcnt(0)")
    for b in range(4): stblk(b)
    p("s_mov_b32 exec_hi, -1")
    p(f"s_cmp_gt_u32 {s(sWV)}, 3")
    p("s_cbranch_scc1 K1_end")
    p("v_lshrrev_b32 v5, 5, v2")
    p("v_bfe_u32 v6, v2, 2, 2")
    p("v_lshl_add_u32 v5, v5, 3, v6")
    p("v_mul_u32_u24 v5, 48, v5")
    p("v_bfe_u32 v6, v2, 4, 1")
    p("v_lshl_add_u32 v5, v6, 5, v5")
    p("v_and_b32 v6, 3, v2")
    p("v_lshl_add_u32 v5, v6, 3, v5")
    p(f"s_add_u32 s35, {s(sWV)}, 4")
    p("s_mul_i32 s35, s35, 6144")
    p("v_add_u32 v5, s35, v5")
    KV = 96
    F = 112
    for t in range(8):
        for h in range(2): p(f"ds_read_b64_tr_b16 {v(F+8*t+2*h,2)}, v5 offset:{t*768+h*192}")
        for h in range(2): p(f"ds_read_b64_tr_b16 {v(F+8*t+4+2*h,2)}, v5 offset:{24576+t*768+h*192}")
        if t >= 2:
            tt = t-2
            p(f"v_mfma_f32_32x32x16_bf16 {v(KV,16)}, {v(F+8*tt,4)}, {v(F+8*tt+4,4)}, {'0' if tt==0 else v(KV,16)}")
    for tt in (6,7):
        p(f"v_mfma_f32_32x32x16_bf16 {v(KV,16)}, {v(F+8*tt,4)}, {v(F+8*tt+4,4)}, {v(KV,16)}")
    p(f"s_lshl_b32 s34, {s(sHG)}, 2")
    p(f"s_add_u32 s34, s34, {s(sWV)}")
    p("s_lshl_b32 s34, s34, 4")
    p(f"s_add_u32 s34, s34, {s(sRT)}")
    p("s_mul_i32 s34, s34, 3072")
    p(f"s_add_u32 s34, s34, {WS_KVP}")
    p("v_lshlrev_b32 v3, 4, v2")
    for q in range(3):
        p(f"buffer_store_dwordx4 {v(KV+4*q,4)}, v3, {s(SWS,4)}, s34 offen offset:{q*1024} {SC}")
    stamp(p, 6)
    if STAMP: p("s_waitcnt vmcnt(0)")
    stamp(p, 7)
    stamp_flush(p, 0, SWS, 8, sWV)
    p.label("K1_end")
    p("s_endpgm")
    p.pad()
    return p.text(), dict(name="k1_kernel", vgpr=177, sgpr=100, grid=256, block=512, lds=147456)

def descriptor(k):
    acc = (k.get('arch', k['vgpr']) + 3)//4*4
    return f""".p2align 6
.amdhsa_kernel {k['name']}
  .amdhsa_next_free_vgpr {k['vgpr']}
  .amdhsa_next_free_sgpr {k['sgpr']}
  .amdhsa_accum_offset {acc}
  .amdhsa_group_segment_fixed_size 0
  .amdhsa_kernarg_size 80
  .amdhsa_user_sgpr_count 2
  .amdhsa_user_sgpr_kernarg_segment_ptr 1
  .amdhsa_system_sgpr_workgroup_id_x 1
.end_amdhsa_kernel
"""

def build(kernels, path):
    ref = open(f"cdna_kernels/{NAME}.s.ref").read().splitlines()
    head = [l for l in ref if l.startswith(';') and '@launch' not in l and 'Override' not in l and 'grid=ceil' not in l]
    out = head[:]
    for _, k in kernels:
        out.append(f"; @launch kernel={k['name']} grid=({k['grid']},1,1) block=({k['block']},1,1) lds={k['lds']}")
    out.append('.amdgcn_target "amdgcn-amd-amdhsa--gfx950"')
    out.append('.text')
    txt = '\n'.join(out) + '\n'
    for t, _ in kernels: txt += t
    txt += "CODE_END:\n"
    txt += '.section .rodata,"a"\n'
    for _, k in kernels: txt += descriptor(k)
    open(path, 'w').write(txt)

if __name__ == '__main__':
    from gen1 import gen_k1
    from gen23 import gen_k2, gen_k3
    ks = [gen_k1(), gen_k2(), gen_k3()]
    for i in range(int(os.environ.get('EMPTY', '0'))):
        ks.append((f".globl e{i}_kernel\n.p2align 8\n.type e{i}_kernel,@function\ne{i}_kernel:\n    s_endpgm\n", dict(name=f"e{i}_kernel", vgpr=8, sgpr=16, grid=256, block=256, lds=0)))
    out = sys.argv[1] if len(sys.argv) > 1 else f"cdna_kernels/{NAME}.s"
    build(ks, out)
    print("wrote", out)
```

```python
from asmlib import *
from gen import *
import os

KVP_STRIDE = 2304

def gen_k1():
    p = Prog()
    header(p, "k1_kernel")
    p.stv = 206
    emit_p1(p, False)
    p.pad()
    return p.text(), dict(name="k1_kernel", vgpr=207, sgpr=100, grid=256, block=512, lds=147456)

def emit_p1(p, fused):
    SX, SW, SWS, SWO, SGW = 12, 16, 20, 68, 72
    sRT, sHG, sBR, sKC, sOX, sOW, sWV = 24, 25, 26, 28, 29, 30, 33
    sMH, sNG = 41, 42
    sINIT, sSCL, sFLG = 44, 48, 52
    sM0X, sM0W = 56, 57
    IMG = 49152
    p("s_cmp_ge_u32 s2, 256")
    p("s_cbranch_scc1 K1_end")
    stamp(p, 0)
    p("s_load_dwordx4 s[4:7], s[0:1], 0")
    p("s_load_dwordx2 s[8:9], s[0:1], 32")
    p("s_load_dwordx2 s[10:11], s[0:1], 72")
    p("s_load_dwordx2 s[76:77], s[0:1], 16")
    p("s_load_dwordx4 s[80:83], s[0:1], 40")
    if fused: p("s_load_dwordx2 s[96:97], s[0:1], 64")
    p("v_lshrrev_b32 v1, 6, v0")
    p("v_and_b32 v2, 63, v0")
    p(f"v_readfirstlane_b32 {s(sWV)}, v1")
    p("s_and_b32 s34, s2, 7")
    p("s_lshr_b32 s35, s2, 3")
    p("s_lshr_b32 s36, s34, 2")
    p("s_and_b32 s37, s34, 3")
    p("s_lshr_b32 s58, s35, 2")
    p("s_and_b32 s59, s35, 3")
    p(f"s_lshl_b32 {s(sRT)}, s36, 3")
    p(f"s_add_u32 {s(sRT)}, {s(sRT)}, s58")
    p(f"s_lshr_b32 {s(sBR)}, s59, 1")
    p(f"s_and_b32 {s(sHG)}, s59, 1")
    p("s_lshl_b32 s40, s37, 1")
    p(f"s_add_u32 {s(sHG)}, {s(sHG)}, s40")
    p("s_lshl_b32 s43, s37, 2")
    p("s_add_u32 s43, s43, s59")
    vXO, vWO = 4, 6
    p("v_lshrrev_b32 v3, 3, v2")
    p("v_and_b32 v10, 7, v2")
    p("v_xor_b32 v10, v10, v3")
    p("v_lshlrev_b32 v10, 4, v10")
    p("s_movk_i32 s40, 1280")
    p(f"v_mad_u32_u24 {v(vXO)}, v3, s40, v10")
    p(f"s_lshl_b32 s34, {s(sRT)}, 7")
    p(f"s_lshl_b32 s35, {s(sWV)}, 4")
    p("s_add_u32 s34, s34, s35")
    p("s_mul_i32 s34, s34, 1280")
    p(f"v_add_u32 {v(vXO)}, s34, {v(vXO)}")
    p(f"v_add_u32 {v(vXO+1)}, 9216, {v(vXO)}")
    p("v_lshrrev_b32 v3, 5, v2")
    p("v_bfe_u32 v10, v2, 1, 4")
    p("v_and_b32 v11, 1, v2")
    p("v_lshlrev_b32 v11, 4, v11")
    p("s_movk_i32 s35, 3840")
    p("v_mad_u32_u24 v11, v3, s35, v11")
    p(f"s_and_b32 s36, {s(sWV)}, 1")
    p("s_lshl_b32 s36, s36, 2")
    p(f"s_mul_i32 s37, {s(sWV)}, {8*3840}")
    p(f"s_mul_i32 s38, {s(sHG)}, 160")
    p("s_add_u32 s37, s37, s38")
    p("v_mov_b32 v16, 0x40000000")
    for i in range(2):
        p(f"v_or_b32 v12, s36, v3")
        if i: p("v_or_b32 v12, 2, v12")
        p("v_xor_b32 v12, v12, v10")
        p("v_mul_u32_u24 v13, 52, v12")
        p("v_lshrrev_b32 v13, 8, v13")
        p("v_mul_u32_u24 v14, 5, v13")
        p("v_sub_u32 v14, v12, v14")
        p("v_lshl_add_u32 v14, v14, 5, v11")
        p("v_mad_u32_u24 v14, v13, s40, v14")
        p(f"v_add_u32 v14, s37, v14")
        if i: p(f"v_add_u32 v14, {2*3840-1024}, v14")
        p("v_cmp_eq_u32 vcc, 15, v12")
        p(f"v_cndmask_b32 {v(vWO+i)}, v14, v16, vcc")
        p(f"v_add_u32 {v(vWO+2+i)}, 13312, {v(vWO+i)}")
    p(f"s_lshl_b32 {s(sM0X)}, {s(sWV)}, 11")
    p(f"s_lshl_b32 {s(sM0W)}, {s(sWV)}, 12")
    p(f"s_add_u32 {s(sM0W)}, {s(sM0W)}, 16384")
    ROTG = int(os.environ.get('ROTG', '3'))
    mg = {3: 86, 4: 64, 5: 52, 2: 128}[ROTG]
    p("s_add_u32 s34, s58, s59")
    p(f"s_mul_i32 s35, s34, {mg}")
    p("s_lshr_b32 s35, s35, 8")
    p(f"s_mul_i32 s35, s35, {ROTG}")
    p("s_sub_u32 s34, s34, s35")
    p("s_mul_i32 s34, s34, 10")
    p(f"s_mul_i32 s34, s34, {mg}")
    p(f"s_lshr_b32 {s(sKC)}, s34, 8")
    p(f"s_lshl_b32 {s(sOX)}, {s(sKC)}, 7")
    p(f"s_mul_i32 {s(sOW)}, {s(sKC)}, 245760")
    p(f"s_mov_b32 m0, {s(sM0X)}")
    p("s_waitcnt lgkmcnt(0)")
    srd(p, SX, 4, 2048*1280)
    p(f"s_cmp_eq_u32 {s(sBR)}, 0")
    p("s_cselect_b32 s6, s6, s8")
    p("s_cselect_b32 s7, s7, s9")
    srd(p, SW, 6, 640*3840)
    tags = {}
    def issue_steps(st):
        slot = (st % 3) * 49152
        g = []
        first = [] if st == 0 else [f"s_add_u32 m0, {s(sM0X)}, {slot}", "s_nop 0"]
        g.append(first + [f"buffer_load_dwordx4 {v(vXO)}, {s(SX,4)}, {s(sOX)} offen lds"])
        g.append([f"buffer_load_dwordx4 {v(vXO+1)}, {s(SX,4)}, {s(sOX)} offen offset:1024 lds"])
        g.append([f"s_add_u32 m0, {s(sM0W)}, {slot}", f"s_add_u32 {s(sOX)}, {s(sOX)}, 128",
                  f"buffer_load_dwordx4 {v(vWO)}, {s(SW,4)}, {s(sOW)} offen lds"])
        for i in range(1, 4):
            g.append([f"buffer_load_dwordx4 {v(vWO+i)}, {s(SW,4)}, {s(sOW)} offen offset:{i*1024} lds"])
        g[-1] += [('tag', st)]
        if st < 9:
            g[-1] += [f"s_add_u32 {s(sOW)}, {s(sOW)}, 245760", f"s_add_u32 {s(sKC)}, {s(sKC)}, 1", f"s_cmp_eq_u32 {s(sKC)}, 10",
                      f"s_cselect_b32 {s(sOX)}, 0, {s(sOX)}", f"s_cselect_b32 {s(sOW)}, 0, {s(sOW)}"]
        return g
    def emit(t):
        if isinstance(t, tuple): tags[t[1]] = p.vmtag()
        elif isinstance(t, list):
            for x in t: emit(x)
        else: p(t)
    def issue(st):
        for g in issue_steps(st): emit(g)
    stamp(p, 1)
    issue(0)
    srd(p, SWS, 10, WS_SIZE)
    p("s_getpc_b64 s[60:61]")
    p.label("K1_pc")
    p(f"s_lshl_b32 s34, {s(sWV)}, 13")
    p("v_lshlrev_b32 v26, 7, v2")
    p("v_add_u32 v26, s34, v26")
    p("v_min_u32 v26, CODE_END-K1_pc-4, v26")
    p("global_load_dword v31, v26, s[60:61]")
    if fused:
        p(f"s_or_b32 s34, s2, {s(sWV)}")
        p("s_cmp_lg_u32 s34, 0")
        p("s_cbranch_scc1 P1_notag")
        p("s_memrealtime s[94:95]")
        p("v_mov_b32 v30, 0")
        p("s_waitcnt lgkmcnt(0)")
        p("s_or_b32 s94, s94, 1")
        p("v_mov_b32 v1, s94")
        p("s_mov_b32 exec_lo, 1")
        p("s_mov_b32 exec_hi, 0")
        p.raw("    global_store_dword v30, v1, s[96:97] sc1")
        p("s_mov_b32 exec_lo, -1")
        p("s_mov_b32 exec_hi, -1")
        p.label("P1_notag")
    stamp(p, 2)
    p(f"s_lshr_b32 {s(sMH)}, {s(sWV)}, 2")
    p(f"s_and_b32 {s(sNG)}, {s(sWV)}, 3")
    vXA = [10, 12, 14]; vWA = [16, 20, 24]
    vG, vM = 28, 29
    p(f"v_lshrrev_b32 {v(vG)}, 4, v2")
    p(f"v_and_b32 {v(vM)}, 15, v2")
    p("v_and_b32 v3, 7, v2")
    p(f"v_xor_b32 v3, v3, {v(vG)}")
    p("v_lshlrev_b32 v3, 4, v3")
    p(f"v_lshl_add_u32 v3, {v(vM)}, 7, v3")
    p(f"s_lshl_b32 s34, {s(sMH)}, 13")
    p(f"v_add_u32 {v(vXA[0])}, s34, v3")
    p(f"v_xor_b32 {v(vXA[0]+1)}, 64, {v(vXA[0])}")
    p("v_bfe_u32 v3, v2, 2, 2")
    p(f"v_and_b32 v1, 1, {v(vG)}")
    p("v_lshl_or_b32 v1, v1, 2, v3")
    p(f"v_lshl_add_u32 v30, {v(vG)}, 3, v3")
    p("v_lshlrev_b32 v30, 9, v30")
    p("v_and_b32 v3, 3, v2")
    p("v_lshl_add_u32 v30, v3, 3, v30")
    p("v_add_u32 v30, 16384, v30")
    for jj in range(4):
        p(f"s_add_u32 s35, {s(sNG)}, {4*jj}")
        p(f"v_xor_b32 v3, s35, v1")
        p(f"v_lshl_add_u32 {v(vWA[0]+jj)}, v3, 5, v30")
        p("s_sub_u32 s36, s35, 5")
        p("s_cmp_lt_u32 s36, 5")
        p(f"s_cselect_b32 {s(sFLG+jj)}, {s(sBR)}, 0")
        p(f"s_mul_i32 {s(sINIT+jj)}, {s(sFLG+jj)}, {f32(EPS)}")
        p("s_cmp_lt_u32 s35, 5")
        p("s_cselect_b32 s36, 1, 0")
        p(f"s_andn2_b32 {s(sSCL+jj)}, s36, {s(sBR)}")
    for sl in (1, 2):
        for k in range(2): p(f"v_add_u32 {v(vXA[sl]+k)}, {sl*49152}, {v(vXA[0]+k)}")
        for k in range(4): p(f"v_add_u32 {v(vWA[sl]+k)}, {sl*49152}, {v(vWA[0]+k)}")
    ACC = 32
    FX = [96, 128]; FW = [112, 144]
    for jj in range(4):
        for k in range(16):
            p(f"v_mov_b32 {v(ACC+jj*16+k)}, {s(sINIT+jj) if jj in (1,2) else 0}")
    issue(1)
    def rdx(st, ks, i): return f"ds_read_b128 {v(FX[ks]+4*i,4)}, {v(vXA[st%3]+ks)} offset:{i*2048}"
    def rdw(st, ks, jj, h): return f"ds_read_b64_tr_b16 {v(FW[ks]+4*jj+2*h,2)}, {v(vWA[st%3]+jj)} offset:{ks*16384+h*2048}"
    def mm(ks, jj, i):
        A = ACC + (jj*4+i)*4
        p(f"v_mfma_f32_16x16x32_bf16 {v(A,4)}, {v(FW[ks]+4*jj,4)}, {v(FX[ks]+4*i,4)}, {v(A,4)}")
    def readlist(st, ks, order=(0,1,2,3)):
        L = [rdw(st,ks,order[0],0), rdw(st,ks,order[0],1)]
        for i in range(4): L.append(rdx(st,ks,i))
        for jj in order[1:]:
            L.append(rdw(st,ks,jj,0)); L.append(rdw(st,ks,jj,1))
        return L
    GX, GWt, A0, WOR, WOH, vW0, vW1, vT0, vT1, vL16 = 160, 166, 172, 192, 196, 200, 201, 202, 203, 204
    sGR, sJOB, sWFo = 84, 85, 86
    F = {k: [] for k in range(20)}
    f = F[1]
    f += [f"v_lshlrev_b32 {v(vL16)}, 4, v2",
          f"s_lshl_b32 {s(sJOB)}, s2, 3", f"s_add_u32 {s(sJOB)}, {s(sJOB)}, {s(sWV)}",
          [f"s_cmp_ge_u32 {s(sJOB)}, 800", "s_cselect_b32 s76, s80, s76", "s_cselect_b32 s77, s81, s77",
           "s_cselect_b32 s87, 800, 0", "s_cselect_b32 s88, 20, 0"],
          f"s_mov_b32 {s(SWO)}, s76", f"s_and_b32 {s(SWO+1)}, s77, 0xffff", f"s_mov_b32 {s(SWO+2)}, {640*1280}", f"s_mov_b32 {s(SWO+3)}, 0x20000",
          f"s_mov_b32 {s(SGW)}, s82", f"s_and_b32 {s(SGW+1)}, s83, 0xffff", f"s_mov_b32 {s(SGW+2)}, 1280", f"s_mov_b32 {s(SGW+3)}, 0x20000",
          f"s_sub_u32 s87, {s(sJOB)}, s87", "s_mul_i32 s89, s87, 1639", "s_lshr_b32 s89, s89, 16",
          "s_mul_i32 s90, s89, 40", "s_sub_u32 s90, s87, s90", "s_lshl_b32 s91, s89, 2"]
    f = F[2]
    f += [f"v_add_u32 {v(vT0)}, s91, {v(vG)}",
          f"v_mul_u32_u24 {v(vT1)}, 205, {v(vT0)}", f"v_lshrrev_b32 {v(vT1)}, 10, {v(vT1)}",
          f"v_mul_u32_u24 {v(vW0)}, 5, {v(vT1)}", f"v_sub_u32 {v(vW0)}, {v(vT0)}, {v(vW0)}",
          f"v_lshrrev_b32 {v(vW1)}, 1, {v(vW0)}", f"v_mul_u32_u24 {v(vW1)}, 20, {v(vW1)}",
          f"v_and_b32 {v(vT0)}, 1, {v(vW0)}", f"v_lshl_add_u32 {v(vW1)}, {v(vT0)}, 2, {v(vW1)}",
          f"v_cmp_gt_u32 vcc, 4, {v(vW0)}", f"v_mov_b32 {v(vT0)}, 20", f"v_mul_u32_u24 {v(vT1)}, 40, {v(vT1)}",
          f"v_cndmask_b32 {v(vW1)}, 16, {v(vW1)}, vcc", f"v_cndmask_b32_e64 {v(vT0)}, {v(vT0)}, 8, vcc",
          f"v_add_u32 {v(vW1)}, {v(vT1)}, {v(vW1)}",
          f"v_lshlrev_b32 {v(vT1)}, 1, {v(vM)}",
          f"v_mad_u32_u24 {v(vW0)}, {v(vW1)}, s40, {v(vT1)}",
          f"v_mad_u32_u24 {v(vW1)}, {v(vT0)}, s40, {v(vW0)}"]
    f = F[3]
    f += ["s_lshl_b32 s91, s90, 5", "s_mul_i32 s90, s90, 40", "s_add_u32 s90, s90, s88", "s_add_u32 s90, s90, s89",
          "s_lshl_b32 s90, s90, 10", f"s_add_u32 s90, s90, {WS_WF}",
          [f"s_cmp_ge_u32 {s(sJOB)}, 1600", "s_cselect_b32 s91, 0x40000000, s91", f"s_cselect_b32 {s(sWFo)}, 0x40000000, s90"],
          f"s_lshl_b32 {s(sGR)}, {s(sRT)}, 4", f"s_add_u32 {s(sGR)}, {s(sGR)}, s43", f"s_lshl_b32 {s(sGR)}, {s(sGR)}, 3",
          f"s_add_u32 {s(sGR)}, {s(sGR)}, {s(sWV)}", f"s_mul_i32 s92, {s(sGR)}, 1280", f"v_lshlrev_b32 {v(vT0)}, 2, v2"]
    f = F[6]
    for k in range(2):
        for q in range(2):
            f.append(f"buffer_load_ushort {v(WOR+2*k+q)}, {v(vW0+k)}, {s(SWO,4)}, s91 offen offset:{2560*q}")
            f.append(f"buffer_load_ushort {v(WOH+2*k+q)}, {v(vW0+k)}, {s(SWO,4)}, s91 offen offset:{2560*q+1280}")
    f += [f"buffer_load_dwordx4 {v(GX,4)}, {v(vL16)}, {s(SX,4)}, s92 offen",
          f"buffer_load_dword {v(GX+4)}, {v(vT0)}, {s(SX,4)}, s92 offen offset:1024",
          f"buffer_load_dwordx4 {v(GWt,4)}, {v(vL16)}, {s(SGW,4)}, 0 offen",
          f"buffer_load_dword {v(GWt+4)}, {v(vT0)}, {s(SGW,4)}, 0 offen offset:1024"]
    if fused:
        F[8] += ["v_mov_b32 v205, 0", "global_load_dword v205, v205, s[96:97] sc1"]
    f = F[12]
    for k in range(4): f.append(f"v_lshl_or_b32 {v(WOR+k)}, {v(WOH+k)}, 16, {v(WOR+k)}")
    f.append(f"buffer_store_dwordx4 {v(WOR,4)}, {v(vL16)}, {s(SWS,4)}, {s(sWFo)} offen {SC}")
    for k in range(5):
        f += [f"v_lshlrev_b32 {v(A0+4*k)}, 16, {v(GX+k)}", f"v_and_b32 {v(A0+4*k+1)}, 0xffff0000, {v(GX+k)}",
              f"v_lshlrev_b32 {v(A0+4*k+2)}, 16, {v(GWt+k)}", f"v_and_b32 {v(A0+4*k+3)}, 0xffff0000, {v(GWt+k)}"]
    f = F[13]
    for k in range(5):
        f += [f"v_mul_f32 {v(A0+4*k)}, {v(A0+4*k)}, {v(A0+4*k+2)}", f"v_mul_f32 {v(A0+4*k+1)}, {v(A0+4*k+1)}, {v(A0+4*k+3)}"]
    for k in range(5): f.append(f"v_cvt_pk_bf16_f32 {v(A0+4*k+2)}, {v(A0+4*k)}, {v(A0+4*k+1)}")
    f = F[14]
    for k in range(5):
        f += [f"v_lshlrev_b32 {v(A0+4*k)}, 16, {v(A0+4*k+2)}", f"v_and_b32 {v(A0+4*k+1)}, 0xffff0000, {v(A0+4*k+2)}"]
    for k in range(5): f.append(f"v_add_f32 {v(A0+4*k)}, {v(A0+4*k)}, {v(A0+4*k+1)}")
    G = A0
    f += [f"v_add_f32 {v(A0)}, {v(A0)}, {v(A0+4)}", f"v_add_f32 {v(A0+8)}, {v(A0+8)}, {v(A0+12)}",
          f"v_add_f32 {v(A0)}, {v(A0)}, {v(A0+16)}", f"v_add_f32 {v(A0)}, {v(A0)}, {v(A0+8)}"]
    f = F[15]
    for sh in (1, 2, 4, 8): f += [f"v_add_f32_dpp {v(G)}, {v(G)}, {v(G)} row_shr:{sh} row_mask:0xf bank_mask:0xf", None]
    f += [f"v_add_f32_dpp {v(G)}, {v(G)}, {v(G)} row_bcast:15 row_mask:0xa bank_mask:0xf", None,
          f"v_add_f32_dpp {v(G)}, {v(G)}, {v(G)} row_bcast:31 row_mask:0xc bank_mask:0xf",
          f"s_mov_b32 s62, {f32(LOG2E)}", f"s_mov_b32 s63, {f32(LOG2E)}",
          f"v_cvt_pk_bf16_f32 {v(G)}, {v(G)}, {v(G)}", f"v_lshlrev_b32 {v(G)}, 16, {v(G)}",
          f"v_mul_f32 {v(G)}, s62, {v(G)}", f"v_exp_f32 {v(G)}, -{v(G)}", None, f"v_add_f32 {v(G)}, 1.0, {v(G)}",
          f"v_rcp_f32 {v(G)}, {v(G)}", None, f"v_cvt_pk_bf16_f32 {v(G)}, {v(G)}, {v(G)}"]
    f = F[16]
    f += [f"v_lshlrev_b32 {v(G)}, 16, {v(G)}", f"v_sub_f32 {v(G+1)}, 1.0, {v(G)}",
          f"v_cvt_pk_bf16_f32 {v(G+1)}, {v(G+1)}, {v(G+1)}", f"v_lshlrev_b32 {v(G+1)}, 16, {v(G+1)}",
          f"s_lshl_b32 s92, {s(sGR)}, 3", f"s_add_u32 s92, s92, {WS_G}", f"v_mov_b32 {v(vT0)}, 0",
          ["s_mov_b32 exec_lo, 0", "s_mov_b32 exec_hi, 0x80000000",
           f"buffer_store_dwordx2 {v(G,2)}, {v(vT0)}, {s(SWS,4)}, s92 offen {SC}", "s_mov_b32 exec_lo, -1", "s_mov_b32 exec_hi, -1"]]
    vIM = 4
    f += [f"s_lshl_b32 s34, {s(sMH)}, 6", f"v_add_u32 v3, s34, {v(vM)}", "v_mul_u32_u24 v3, 48, v3", f"v_add_u32 v3, {IMG}, v3",
          f"s_lshl_b32 s34, {s(sNG)}, 2", "s_movk_i32 s36, 6144"]
    f = F[17]
    for jj in range(4):
        f += [f"s_add_u32 s35, s34, {16*jj}", f"v_add_u32 v8, s35, {v(vG)}", "v_mul_u32_u24 v9, 52, v8", "v_lshrrev_b32 v9, 8, v9",
              "v_mul_u32_u24 v1, 5, v9", "v_sub_u32 v1, v8, v1", "v_lshl_add_u32 v1, v1, 3, v3", f"v_mad_u32_u24 {v(vIM+jj)}, v9, s36, v1"]
    f = F[18]
    f += ["v_lshrrev_b32 v8, 7, v0", "v_and_b32 v9, 127, v0", "v_mul_u32_u24 v9, 48, v9", "v_mad_u32_u24 v8, v8, s36, v9",
          f"v_mov_b32 {v(vT0)}, 0x3f80", f"v_mov_b32 {v(vT1)}, 0", f"v_mov_b32 {v(vW0)}, 0", f"v_mov_b32 {v(vW1)}, 0",
          f"v_add_u32 v8, {IMG}, v8",
          f"ds_write_b64 v8, {v(vT0,2)} offset:40", f"ds_write_b64 v8, {v(vW0,2)} offset:{40+24576}", f"ds_write_b64 v8, {v(vT0,2)} offset:{40+49152}",
          f"s_mov_b32 s38, {f32(EPS)}", f"s_mov_b32 s64, {f32(QSCALE)}", f"s_mov_b32 s65, {f32(QSCALE)}",
          f"s_mul_i32 s93, {s(sWV)}, 768", f"v_add_u32 v30, s93, {v(vL16)}", f"v_add_u32 v31, {IMG}, v30", f"v_add_u32 v9, {IMG+6*6144}, v30",
          f"s_mul_i32 s93, {s(sHG)}, {4*98304}", f"s_mul_i32 s35, {s(sRT)}, 6144", "s_add_u32 s93, s93, s35",
          f"s_mul_i32 s35, {s(sBR)}, {3*0x300000}", "s_add_u32 s93, s93, s35"]
    def block(ks, L, steps, fill, order=(0,1,2,3), after=None):
        n = 0
        fill = list(fill)
        per = 2
        for jj in order:
            for i in range(4):
                mm(ks, jj, i)
                n += 1
                did = 0
                if L: p(L.pop(0)); did += 1
                if n % 2 == 0 and n >= 4 and steps: emit(steps.pop(0)); did += 1
                k = per - did if (L or steps) else per + 1
                left = 16 - n
                while fill and (k > 0 or len(fill) > left * (per + 1)):
                    t = fill.pop(0)
                    if t is None: break
                    emit(t); k -= 1
            if after: after(jj)
        for t in fill:
            if t is not None: emit(t)
        assert not L and not steps
    T = 160
    def epi(jj):
        A = ACC + jj*16
        if jj in (1, 2):
            p(f"s_cmp_eq_u32 {s(sFLG+jj)}, 0")
            p(f"s_cbranch_scc1 K1_nophi{jj}")
            for k in range(8): p(f"v_pk_mul_f32 {v(T+2*k,2)}, {v(A+2*k,2)}, s[62:63]")
            for k in range(16): p(f"v_exp_f32 {v(T+k)}, {v(T+k)} clamp")
            for k in range(16): p(f"v_max_f32 {v(A+k)}, s38, {v(A+k)}")
            for k in range(8): p(f"v_pk_add_f32 {v(A+2*k,2)}, {v(A+2*k,2)}, {v(T+2*k,2)}")
            p.label(f"K1_nophi{jj}")
        if jj in (0, 1):
            p(f"s_cmp_eq_u32 {s(sSCL+jj)}, 0")
            p(f"s_cbranch_scc1 K1_noscl{jj}")
            for k in range(8): p(f"v_pk_mul_f32 {v(A+2*k,2)}, {v(A+2*k,2)}, s[64:65]")
            p.label(f"K1_noscl{jj}")
        P = 96 + jj*8
        for k in range(8): p(f"v_cvt_pk_bf16_f32 {v(P+k)}, {v(A+2*k)}, {v(A+2*k+1)}")
        for i in range(4): p(f"ds_write_b64 {v(vIM+jj)}, {v(P+2*i,2)} offset:{i*768}")
    p.wait_vm_tag(tags[0])
    p("s_barrier")
    stamp(p, 3)
    stampc(p, 30)
    for t in readlist(0, 0): p(t)
    issue(2)
    LAST = (1, 2, 0, 3)
    for st in range(10):
        block(0, readlist(st, 1, LAST if st == 9 else (0,1,2,3)), [], F[2*st])
        if st < 9:
            p.wait_vm_tag(tags[st+1], " lgkmcnt(0)")
            p("s_barrier")
            block(1, readlist(st+1, 0), issue_steps(st+3) if st+3 <= 9 else [], F[2*st+1])
        else:
            def after(jj):
                k = LAST.index(jj)
                if k >= 1: epi(LAST[k-1])
            block(1, [], [], F[19], LAST, after)
            stamp(p, 4)
            stampc(p, 31)
            epi(LAST[3])
    p("s_waitcnt lgkmcnt(0)")
    p("s_barrier")
    stamp(p, 5)
    p("s_mov_b32 exec_hi, 0xffff")
    D = 32
    def rdblk(b):
        if b < 6: p(f"ds_read_b128 {v(D+4*b,4)}, v31 offset:{b*6144}")
        else: p(f"ds_read_b128 {v(D+4*b,4)}, v9 offset:{(b-6)*6144}")
    def stblk(b):
        off = (b//4)*0x300000 + (b%4)*98304
        p(f"s_add_u32 s35, s93, {off}")
        p(f"buffer_store_dwordx4 {v(D+4*b,4)}, v30, {s(SWS,4)}, s35 offen {SC}")
    for b in range(4): rdblk(b)
    p(f"s_cmp_eq_u32 {s(sBR)}, 0")
    p("s_cbranch_scc0 K1_bpath")
    p.begin_cond()
    for b in range(4,12): rdblk(b)
    for b in range(12): stblk(b)
    if fused:
        p("s_mov_b32 exec_hi, -1")
        p("s_branch P1_end")
    else:
        stamp(p, 6)
        if STAMP: p("s_waitcnt vmcnt(0)")
        stamp(p, 7)
        stamp_flush(p, 0, SWS, 8, sWV)
        p("s_endpgm")
    p.end_cond()
    p.label("K1_bpath")
    p("s_waitcnt lgkmcnt(0)")
    for b in range(4): stblk(b)
    p("s_mov_b32 exec_hi, -1")
    p(f"s_cmp_gt_u32 {s(sWV)}, 3")
    p("s_cbranch_scc1 P1_end" if fused else "s_cbranch_scc1 K1_end")
    p("v_lshrrev_b32 v7, 5, v2")
    p("v_bfe_u32 v6, v2, 2, 2")
    p("v_lshl_add_u32 v5, v7, 3, v6")
    p("v_mul_u32_u24 v5, 48, v5")
    p("v_bfe_u32 v6, v2, 4, 1")
    p("v_lshl_add_u32 v5, v6, 5, v5")
    p("v_and_b32 v6, 3, v2")
    p("v_lshl_add_u32 v5, v6, 3, v5")
    p(f"s_add_u32 s35, {s(sWV)}, 4")
    p("s_mul_i32 s35, s35, 6144")
    p(f"s_add_u32 s35, s35, {IMG}")
    p("v_add_u32 v5, s35, v5")
    KV = 96
    Fr = 112
    for t in range(8):
        for h in range(2): p(f"ds_read_b64_tr_b16 {v(Fr+8*t+2*h,2)}, v5 offset:{t*768+h*192}")
        for h in range(2): p(f"ds_read_b64_tr_b16 {v(Fr+8*t+4+2*h,2)}, v5 offset:{24576+t*768+h*192}")
        if t >= 2:
            tt = t-2
            p(f"v_mfma_f32_32x32x16_bf16 {v(KV,16)}, {v(Fr+8*tt,4)}, {v(Fr+8*tt+4,4)}, {'0' if tt==0 else v(KV,16)}")
    for tt in (6,7):
        p(f"v_mfma_f32_32x32x16_bf16 {v(KV,16)}, {v(Fr+8*tt,4)}, {v(Fr+8*tt+4,4)}, {v(KV,16)}")
    p(f"s_lshl_b32 s34, {s(sHG)}, 2")
    p(f"s_add_u32 s34, s34, {s(sWV)}")
    p("s_lshl_b32 s34, s34, 4")
    p(f"s_add_u32 s34, s34, {s(sRT)}")
    p(f"s_mul_i32 s34, s34, {KVP_STRIDE}")
    p(f"s_add_u32 s34, s34, {WS_KVP}")
    p("v_and_b32 v3, 31, v2")
    p("v_lshlrev_b32 v3, 4, v3")
    p("v_mul_u32_u24 v7, 384, v7")
    p("v_add_u32 v3, v3, v7")
    p("s_mov_b32 exec_lo, 0xffffff")
    p("s_mov_b32 exec_hi, 0xffffff")
    for q in range(3):
        p(f"buffer_store_dwordx4 {v(KV+4*q,4)}, v3, {s(SWS,4)}, s34 offen offset:{q*768} {SC}")
    if fused:
        p("s_mov_b32 exec_lo, -1")
        p("s_mov_b32 exec_hi, -1")
        p.label("P1_end")
        p.forget()
        stamp(p, 6)
        return
    stamp(p, 6)
    if STAMP: p("s_waitcnt vmcnt(0)")
    stamp(p, 7)
    stamp_flush(p, 0, SWS, 8, sWV)
    p.label("K1_end")
    p("s_endpgm")
```

```python
import re
from asmlib import *
from gen import *

LDS_V = 24576; LDS_RED = 49216
WS_FLG = 0x1520000
def gen_k2():
    p = Prog()
    header(p, "k2_kernel")
    p.stv = 230
    emit_p2(p, None)
    p.label("K2_end")
    p("s_endpgm")
    p.pad()
    return p.text(), dict(name="k2_kernel", vgpr=231, sgpr=100, grid=256, block=512, lds=LDS_RED + 8*3072)

def emit_p2(p, fused):
    SWS = 20
    sH, sR, sWV = 32, 31, 33
    LD = 'sc1' if fused else ''
    SO_ = 8 if fused else 0
    if not fused:
        p("s_cmp_ge_u32 s2, 256")
        p("s_cbranch_scc1 K2_end")
        stamp(p, 0)
        p("s_load_dwordx2 s[12:13], s[0:1], 72")
        p("v_lshrrev_b32 v1, 6, v0")
        p("v_and_b32 v2, 63, v0")
        p(f"v_readfirstlane_b32 {s(sWV)}, v1")
    p("s_and_b32 s36, s2, 7")
    p("s_lshr_b32 s37, s2, 3")
    p("s_and_b32 s38, s36, 3")
    p("s_lshl_b32 s38, s38, 3")
    p("s_and_b32 s39, s37, 7")
    p(f"s_add_u32 {s(sH)}, s38, s39")
    p("s_lshr_b32 s38, s36, 2")
    p("s_lshl_b32 s38, s38, 2")
    p("s_lshr_b32 s39, s37, 3")
    p(f"s_add_u32 {s(sR)}, s38, s39")
    Q0, Q1 = 16, 20
    PQR = 24
    MU, ML = 32, 48
    SB = [64, 80]
    KF = [96, 104]
    VF = [112, 120]
    PB = [128, 136]
    O = 144
    CM = 160
    PAR = 176
    WOR = 200
    WOH = 204
    PQ = 208
    GX, GWt = 64, 70
    vL16, vQA, vHH = 3, 4, 5
    vQo, vPQo, vK0, vK1, vV, vM = 6, 7, 8, 9, 10, 11
    vDM, vW0, vW1, vOo, vOt = 216, 217, 218, 219, 220
    p(f"v_lshlrev_b32 {v(vL16)}, 4, v2")
    p(f"v_and_b32 {v(vQA)}, 31, v2")
    p(f"v_lshrrev_b32 {v(vHH)}, 5, v2")
    sRow = 35
    p(f"s_lshl_b32 {s(sRow)}, {s(sH)}, 11")
    p(f"s_lshl_b32 s36, {s(sR)}, 8")
    p(f"s_add_u32 {s(sRow)}, {s(sRow)}, s36")
    p(f"s_mul_i32 s40, {s(sWV)}, 3072")
    p(f"v_add_u32 {v(vDM)}, s40, {v(vL16)}")
    p(f"s_mul_i32 s41, {s(sRow)}, 48")
    p(f"s_add_u32 s42, s41, {WS_KA - 12288}")
    p(f"s_add_u32 s43, s41, {WS_VA - 12288}")
    sFILL = 55
    p(f"s_lshr_b32 {s(sFILL)}, {s(sWV)}, 2")
    p(f"s_or_b32 {s(sFILL)}, {s(sFILL)}, {s(sR)}")
    p(f"s_cmp_eq_u32 {s(sFILL)}, 0")
    p("s_cselect_b32 s42, 0x40000000, s42")
    p("s_cselect_b32 s43, 0x40000000, s43")
    p(f"s_lshl_b32 s36, {s(sWV)}, 5")
    p(f"v_add_u32 v12, s36, {v(vQA)}")
    p("v_mul_u32_u24 v12, 48, v12")
    p(f"v_lshl_add_u32 {v(vQo)}, {v(vHH)}, 4, v12")
    p(f"v_lshl_add_u32 {v(vPQo)}, {v(vHH)}, 3, v12")
    p(f"s_add_u32 s44, s41, {WS_QB}")
    for k in range(4): p(f"v_mov_b32 {v(Q1+k)}, 0")
    tg = {}
    def loads():
        p("s_mov_b32 m0, s40")
        if not fused:
            p("s_waitcnt lgkmcnt(0)")
            srd(p, SWS, 12, WS_SIZE)
            stamp(p, 1)
        else:
            p("s_nop 0")
        for i in range(3): p(f"buffer_load_dwordx4 {v(vDM)}, {s(SWS,4)}, s42 offen offset:{i*1024} {LD} lds")
        p(f"s_add_u32 m0, s40, {LDS_V}")
        p(f"buffer_load_dwordx4 {v(Q0,4)}, {v(vQo)}, {s(SWS,4)}, s41 offen {LD}")
        p("s_mov_b32 exec_hi, 0")
        p(f"buffer_load_dwordx4 {v(Q1,4)}, {v(vQo)}, {s(SWS,4)}, s41 offen offset:32 {LD}")
        p("s_mov_b32 exec_hi, -1")
        tg['K'] = p.vmtag()
        for i in range(3): p(f"buffer_load_dwordx4 {v(vDM)}, {s(SWS,4)}, s43 offen offset:{i*1024} {LD} lds")
        tg['V'] = p.vmtag()
    if not fused: loads()
    p(f"s_lshl_b32 s66, {s(sH)}, 4")
    p(f"s_lshl_b32 s37, {s(sWV)}, 1")
    p("s_add_u32 s66, s66, s37")
    p("s_mul_i32 s66, s66, 2304")
    p(f"s_add_u32 s66, s66, {WS_KVP}")
    p("s_add_u32 s67, s66, 2304")
    p(f"v_mul_u32_u24 v12, 384, {v(vHH)}")
    p(f"v_lshl_add_u32 {v(vW0)}, {v(vQA)}, 4, v12")
    p(f"v_cmp_gt_u32 vcc, 24, {v(vQA)}")
    p("v_mov_b32 v12, 0x40000000")
    p(f"v_cndmask_b32 {v(vW0)}, v12, {v(vW0)}, vcc")
    p("s_lshr_b32 s46, s2, 3")
    p("s_lshl_b32 s46, s46, 3")
    p(f"s_add_u32 s46, s46, {s(sWV)}")
    p("s_mul_i32 s46, s46, 6400")
    p(f"s_add_u32 s46, s46, {WS_WF}")
    p(f"v_min_u32 {v(vW1)}, 49, v2")
    p(f"v_lshlrev_b32 {v(vW1)}, 7, {v(vW1)}")
    p(f"s_mul_i32 s36, {s(sWV)}, 1536")
    p(f"v_mul_u32_u24 v12, 48, {v(vQA)}")
    p("v_add_u32 v12, s36, v12")
    p(f"v_lshl_add_u32 {v(vK0)}, {v(vHH)}, 4, v12")
    p(f"v_add_u32 {v(vK1)}, 32, v12")
    p("v_bfe_u32 v12, v2, 2, 2")
    p(f"v_lshl_add_u32 v12, {v(vHH)}, 2, v12")
    p("v_mul_u32_u24 v12, 48, v12")
    p("v_bfe_u32 v13, v2, 4, 1")
    p("v_lshl_add_u32 v12, v13, 5, v12")
    p("v_and_b32 v14, 3, v2")
    p("v_lshl_add_u32 v12, v14, 3, v12")
    p(f"s_add_u32 s36, s36, {LDS_V}")
    p(f"v_add_u32 {v(vV)}, s36, v12")
    sOM, sOT = 68, 69
    p(f"s_lshl_b32 s36, {s(sR)}, 4")
    p(f"s_lshl_b32 s37, {s(sWV)}, 1")
    p("s_add_u32 s36, s36, s37")
    p("s_mul_i32 s36, s36, 40960")
    p(f"s_add_u32 s36, s36, {WS_OF}")
    p(f"s_lshr_b32 s37, {s(sH)}, 1")
    p("s_mul_i32 s37, s37, 5")
    p(f"s_and_b32 s38, {s(sH)}, 1")
    p("s_lshl_b32 s39, s38, 1")
    p("s_add_u32 s39, s39, s37")
    p("s_lshl_b32 s39, s39, 8")
    p(f"s_add_u32 {s(sOM)}, s39, s36")
    p("s_add_u32 s37, s37, 4")
    p("s_lshl_b32 s37, s37, 8")
    p("s_lshl_b32 s38, s38, 3")
    p("s_add_u32 s37, s37, s38")
    p(f"s_add_u32 {s(sOT)}, s37, s36")
    p("s_mov_b32 s38, 40960")
    p("v_and_b32 v14, 15, v2")
    p("v_lshlrev_b32 v14, 4, v14")
    p(f"v_mad_u32_u24 {v(vOt)}, v13, s38, v14")
    p(f"v_lshl_add_u32 {v(vOo)}, {v(vHH)}, 8, {v(vOt)}")
    p(f"v_lshlrev_b32 v12, 2, {v(vHH)}")
    p(f"v_sub_u32 v12, {v(vQA)}, v12")
    p(f"v_mov_b32 v13, {f32(NEG)}")
    for r0 in range(0, 16, 4):
        for r in range(r0, r0+4):
            kb = 8*(r >> 2) + (r & 3)
            p(f"v_cmp_le_i32 {s(56+2*(r&3),2)}, {kb}, v12")
        for r in range(r0, r0+4):
            p(f"v_cndmask_b32 {v(ML+r)}, v13, 0, {s(56+2*(r&3),2)}")
            p(f"v_cndmask_b32 {v(MU+r)}, 0, v13, {s(56+2*(r&3),2)}")
    LB = 221
    p("v_mov_b32 v14, 0xffff")
    p("v_mov_b32 v15, 0xffff0000")
    for k0 in range(0, 8, 2):
        for k in (k0, k0+1):
            for hb in range(2):
                r = 2*k + hb
                kb = 8*(r >> 2) + (r & 3)
                p(f"v_cmp_le_i32 {s(56+2*(r&3),2)}, {kb}, v12")
        for k in (k0, k0+1):
            p(f"v_cndmask_b32 {v(LB+k)}, 0, v14, {s(56+2*((2*k)&3),2)}")
            p(f"v_cndmask_b32 v13, 0, v15, {s(56+2*((2*k+1)&3),2)}")
            p(f"v_or_b32 {v(LB+k)}, {v(LB+k)}, v13")
    MX = [vM, 13, 14, 15]
    for r in MX: p(f"v_mov_b32 {v(r)}, {f32(-3e38)}")
    if fused:
        fused['sync1'](sH, sR)
        loads()
    stamp(p, 2 + SO_*0 if not fused else 9)
    p.wait_vm_tag(tg['K'])
    p(f"s_cmp_lg_u32 {s(sFILL)}, 0")
    p("s_cbranch_scc1 K2_nofill")
    p(f"v_mul_u32_u24 {v(CM)}, 48, v0")
    p(f"v_mov_b32 {v(CM+1)}, 0xf149")
    p(f"ds_write_b32 {v(CM)}, {v(CM+1)} offset:40")
    p("s_waitcnt lgkmcnt(0)")
    p.label("K2_nofill")
    p("s_barrier")
    stamp(p, (10 if fused else 3)); stampc(p, 20)
    def rdK(t):
        b = KF[t & 1]
        p(f"ds_read_b128 {v(b,4)}, {v(vK0)} offset:{t*1536}")
        p(f"ds_read_b128 {v(b+4,4)}, {v(vK1)} offset:{t*1536}")
    def rdV(t):
        b = VF[t & 1]
        for c in range(2):
            for hsel in range(2):
                p(f"ds_read_b64_tr_b16 {v(b+4*c+2*hsel,2)}, {v(vV)} offset:{t*1536 + c*768 + hsel*384}")
    def qk(t, half, C):
        S = SB[t & 1]; b = KF[t & 1]
        if half == 0: p(f"v_mfma_f32_32x32x16_bf16 {v(S,16)}, {v(b,4)}, {v(Q0,4)}, {C}")
        else: p(f"v_mfma_f32_32x32x16_bf16 {v(S,16)}, {v(b+4,4)}, {v(Q1,4)}, {v(S,16)}")
    sec = []
    sec2 = []
    for k in range(3): sec2.append(f"buffer_load_dwordx4 {v(PAR+4*k,4)}, {v(vW0)}, {s(SWS,4)}, s66 offen offset:{768*k} {LD}")
    for k in range(3): sec2.append(f"buffer_load_dwordx4 {v(PAR+12+4*k,4)}, {v(vW0)}, {s(SWS,4)}, s67 offen offset:{768*k} {LD}")
    for k in range(3): sec2.append(f"buffer_load_dwordx2 {v(PQR+2*k,2)}, {v(vPQo)}, {s(SWS,4)}, s44 offen offset:{16*k} {LD}")
    sec2.append(f"buffer_load_dword {v(WOR)}, {v(vW1)}, {s(SWS,4)}, s46 offen")
    def C1(t): return v(MU,16) if t == 0 else (v(ML,16) if t == 8 else '0')
    rdK(0); rdK(1)
    qk(0,0,C1(0)); qk(0,1,None)
    for t in range(9):
        if t+1 <= 8:
            qk(t+1,0,C1(t+1))
            if sec: p(sec.pop(0))
            qk(t+1,1,None)
            if sec: p(sec.pop(0))
        if t+2 <= 8: rdK(t+2)
        S = SB[t & 1]
        for k in range(8): p(f"v_max3_f32 {v(MX[k&3])}, {v(MX[k&3])}, {v(S+2*k)}, {v(S+2*k+1)}")
        if t == 3:
            if fused: fused['sync_mid']()
            p.wait_vm_tag(tg['V'])
            p("s_barrier")
            stamp(p, 11); stampc(p, 21)
    assert not sec
    p(f"ds_read_b128 {v(KF[0],4)}, {v(vK0)} offset:0")
    p(f"ds_read_b128 {v(KF[0]+4,4)}, {v(vK1)} offset:0")
    p(f"ds_read_b128 {v(KF[1],4)}, {v(vK0)} offset:{8*1536}")
    p(f"ds_read_b128 {v(KF[1]+4,4)}, {v(vK1)} offset:{8*1536}")
    p(f"v_max3_f32 {v(vM)}, {v(vM)}, v13, v14")
    p(f"v_max_f32 {v(vM)}, {v(vM)}, v15")
    p(f"v_mov_b32 v12, {v(vM)}")
    p(f"v_permlane32_swap_b32 {v(vM)}, v12")
    p(f"v_max_f32 {v(vM)}, {v(vM)}, v12")
    p(f"v_sub_f32 {v(CM)}, 0, {v(vM)}")
    p(f"v_sub_f32 {v(CM+1)}, 0, {v(vM)}")
    for k in range(8): p(f"v_pk_add_f32 {v(MU+2*k,2)}, {v(MU+2*k,2)}, {v(CM,2)}")
    for k in range(2, 16): p(f"v_mov_b32 {v(CM+k)}, {v(CM)}")
    for k in range(8): p(f"v_pk_add_f32 {v(ML+2*k,2)}, {v(ML+2*k,2)}, {v(CM,2)}")
    stamp(p, (12 if fused else 4)); stampc(p, 22)
    def rdKb(t, b):
        p(f"ds_read_b128 {v(KF[b],4)}, {v(vK0)} offset:{t*1536}")
        p(f"ds_read_b128 {v(KF[b]+4,4)}, {v(vK1)} offset:{t*1536}")
    def rdVb(t, b):
        for c in range(2):
            for hsel in range(2):
                p(f"ds_read_b64_tr_b16 {v(VF[b]+4*c+2*hsel,2)}, {v(vV)} offset:{t*1536 + c*768 + hsel*384}")
    def qkb(kb, sb, half, C):
        if half == 0: p(f"v_mfma_f32_32x32x16_bf16 {v(SB[sb],16)}, {v(KF[kb],4)}, {v(Q0,4)}, {C}")
        else: p(f"v_mfma_f32_32x32x16_bf16 {v(SB[sb],16)}, {v(KF[kb]+4,4)}, {v(Q1,4)}, {v(SB[sb],16)}")
    first = [True]
    def pvb(vb, pb, c):
        p(f"v_mfma_f32_32x32x16_bf16 {v(O,16)}, {v(VF[vb]+4*c,4)}, {v(PB[pb]+4*c,4)}, {'0' if first[0] else v(O,16)}")
        first[0] = False
    qkb(0,0,0,v(MU,16)); qkb(0,0,1,None)
    qkb(1,1,0,v(ML,16)); qkb(1,1,1,None)
    rdKb(1,0); rdKb(2,1)
    rdVb(0,0); rdVb(8,1)
    for k in range(16): p(f"v_max_f32 {v(SB[0]+k)}, {v(SB[0]+k)}, {v(SB[1]+k)}")
    for k in range(16):
        p(f"v_exp_f32 {v(SB[0]+k)}, {v(SB[0]+k)}")
        if k == 0: qkb(0,1,0,v(CM,16))
        if k == 4: qkb(0,1,1,None)
        if k == 5: rdKb(3,0)
        if k in (2, 6, 8, 10, 12, 14) and sec2: p(sec2.pop(0))
    for k in range(8): p(f"v_cvt_pk_bf16_f32 {v(PB[0]+k)}, {v(SB[0]+2*k)}, {v(SB[0]+2*k+1)}")
    for k in range(8): p(f"v_and_b32 {v(PB[1]+k)}, {v(PB[0]+k)}, {v(LB+k)}")
    for k in range(8): p(f"v_xor_b32 {v(PB[0]+k)}, {v(PB[0]+k)}, {v(PB[1]+k)}")
    for t in range(1, 8):
        S = SB[t & 1]
        for k in range(16):
            p(f"v_exp_f32 {v(S+k)}, {v(S+k)}")
            if k == 0 and t+1 <= 7: qkb(t & 1, (t+1) & 1, 0, v(CM,16))
            if k == 3 and t+1 <= 7: qkb(t & 1, (t+1) & 1, 1, None)
            if k == 4 and t+3 <= 7: rdKb(t+3, t & 1)
            if k in (5, 7, 11, 14) and sec2: p(sec2.pop(0))
            if t == 1:
                if k == 6: pvb(0,0,0)
                if k == 9: pvb(0,0,1)
                if k == 10: rdVb(1, 0)
                if k == 12: pvb(1,1,0)
                if k == 15: pvb(1,1,1)
            else:
                if k == 1: rdVb(t, (t+1) & 1)
                if k == 8: pvb(t & 1, t & 1, 0)
                if k == 12: pvb(t & 1, t & 1, 1)
        for k in range(8): p(f"v_cvt_pk_bf16_f32 {v(PB[(t+1)&1]+k)}, {v(S+2*k)}, {v(S+2*k+1)}")
        if t == 5:
            for k in range(6): p(f"v_pk_add_f32 {v(PAR+2*k,2)}, {v(PAR+2*k,2)}, {v(PAR+12+2*k,2)}")
            p(f"v_add_u32 v12, {LDS_RED}, {v(vDM)}")
            for k in range(3): p(f"ds_write_b128 v12, {v(PAR+4*k,4)} offset:{1024*k}")
        if t == 7:
            T = 176; U = 188
            p(f"s_mov_b32 s53, {f32(LOG2E)}")
            p(f"s_mov_b32 s54, {f32(EPS)}")
            for k in range(6):
                p(f"v_lshlrev_b32 {v(T+2*k)}, 16, {v(PQR+k)}")
                p(f"v_and_b32 {v(T+2*k+1)}, 0xffff0000, {v(PQR+k)}")
            for k in range(12): p(f"v_mul_f32 {v(U+k)}, s53, {v(T+k)}")
            for k in range(12): p(f"v_exp_f32 {v(U+k)}, {v(U+k)} clamp")
            for k in range(12): p(f"v_max_f32 {v(T+k)}, 0, {v(T+k)}")
            for k in range(12): p(f"v_add_f32 {v(T+k)}, {v(T+k)}, {v(U+k)}")
            for k in range(12): p(f"v_add_f32 {v(T+k)}, s54, {v(T+k)}")
            for k in range(6): p(f"v_cvt_pk_bf16_f32 {v(PQ+k)}, {v(T+2*k)}, {v(T+2*k+1)}")
            p(f"v_mov_b32 {v(PQ+6)}, 0"); p(f"v_mov_b32 {v(PQ+7)}, 0")
    pvb(0,0,0); pvb(0,0,1)
    p("s_waitcnt lgkmcnt(0)")
    stamp(p, (13 if fused else 5)); stampc(p, 23)
    p("s_barrier")
    stamp(p, (14 if fused else 8)); stampc(p, 24)
    p(f"v_add_u32 v12, {LDS_RED}, {v(vL16)}")
    RB = 32
    for w2 in range(8):
        for k in range(3): p(f"ds_read_b128 {v(RB+12*w2+4*k,4)}, v12 offset:{w2*3072+1024*k}")
    def oepi(A, s_main, s_tail, eps, E):
        p(f"v_mov_b32 v13, {v(A+8)}")
        p(f"v_mov_b32 v14, {v(A+8)}")
        p("v_permlane32_swap_b32 v13, v14")
        if eps: p(f"v_add_f32 v14, {f32(EPS)}, v14")
        p("v_rcp_f32 v14, v14")
        p("s_nop 0")
        p("v_mov_b32 v15, v14")
        for k in range(6): p(f"v_pk_mul_f32 {v(A+2*k,2)}, {v(A+2*k,2)}, v[14:15]")
        for k in range(6): p(f"v_cvt_pk_bf16_f32 {v(E+k)}, {v(A+2*k)}, {v(A+2*k+1)}")
        p(f"buffer_store_dwordx4 {v(E,4)}, {v(vOo)}, {s(SWS,4)}, {s(s_main)} offen {SC}")
        p("s_mov_b32 exec_hi, 0")
        p(f"buffer_store_dwordx2 {v(E+4,2)}, {v(vOt)}, {s(SWS,4)}, {s(s_tail)} offen {SC}")
        p("s_mov_b32 exec_hi, -1")
    oepi(O, sOM, sOT, False, 128)
    stamp(p, (15 if fused else 9))
    for st_ in (1, 2, 4):
        for w2 in range(0, 8, 2*st_):
            for k in range(6): p(f"v_pk_add_f32 {v(RB+12*w2+2*k,2)}, {v(RB+12*w2+2*k,2)}, {v(RB+12*(w2+st_)+2*k,2)}")
    KVF = 136
    for k in range(6): p(f"v_cvt_pk_bf16_f32 {v(KVF+k)}, {v(RB+2*k)}, {v(RB+2*k+1)}")
    p(f"v_mov_b32 {v(KVF+6)}, 0"); p(f"v_mov_b32 {v(KVF+7)}, 0")
    N = 160
    p(f"v_mfma_f32_32x32x16_bf16 {v(N,16)}, {v(KVF,4)}, {v(PQ,4)}, 0")
    p(f"v_mfma_f32_32x32x16_bf16 {v(N,16)}, {v(KVF+4,4)}, {v(PQ+4,4)}, {v(N,16)}")
    stamp(p, (16 if fused else 10))
    p(f"s_add_u32 {s(sOM)}, {s(sOM)}, 20480")
    p(f"s_add_u32 {s(sOT)}, {s(sOT)}, 20480")
    oepi(N, sOM, sOT, True, 176)
    if fused:
        stamp(p, 17)
        return
    stamp(p, 6)
    if STAMP: p("s_waitcnt vmcnt(0)")
    stamp(p, 7)
    stamp_flush(p, 1, SWS, 8, sWV)

def gen_k3():
    p = Prog()
    header(p, "k3_kernel")
    p.stv = 227
    SWS, SO = 8, 12
    sWV, sRT, sCT = 16, 17, 18
    p("s_cmp_ge_u32 s2, 256")
    p("s_cbranch_scc1 K3_end")
    stamp(p, 0)
    p("s_load_dwordx2 s[4:5], s[0:1], 56")
    p("s_load_dwordx2 s[6:7], s[0:1], 72")
    p("v_lshrrev_b32 v1, 6, v0")
    p("v_and_b32 v2, 63, v0")
    p(f"v_readfirstlane_b32 {s(sWV)}, v1")
    p("s_and_b32 s20, s2, 7")
    p("s_lshr_b32 s21, s2, 3")
    p("s_lshl_b32 s22, s20, 2")
    p("s_lshr_b32 s23, s21, 3")
    p(f"s_add_u32 {s(sRT)}, s22, s23")
    p(f"s_and_b32 {s(sCT)}, s21, 7")
    p(f"s_mul_i32 s20, {s(sWV)}, 10240")
    p("v_lshlrev_b32 v3, 4, v2")
    p("v_add_u32 v3, s20, v3")
    p("v_add_u32 v4, 4096, v3")
    p("v_add_u32 v5, 8192, v3")
    sA, sB = 24, 28
    p(f"s_mul_i32 s20, {s(sRT)}, {4*40960}")
    for i in range(4): p(f"s_add_u32 {s(sA+i)}, s20, {WS_OF + i*40960}")
    p(f"s_mul_i32 s20, {s(sCT)}, {5*40960}")
    for j in range(5): p(f"s_add_u32 {s(sB+j)}, s20, {WS_WF + j*40960}")
    p("s_waitcnt lgkmcnt(0)")
    srd(p, SWS, 6, WS_SIZE)
    NB = 6
    FB = 8
    def ld(ks):
        b = FB + 36*(ks % NB)
        vo = v(3 + ks // 4); im = (ks % 4) * 1024
        for j in range(5):
            if j < 4: p(f"buffer_load_dwordx4 {v(b+4*j,4)}, {vo}, {s(SWS,4)}, {s(sA+j)} offen offset:{im}")
            p(f"buffer_load_dwordx4 {v(b+16+4*j,4)}, {vo}, {s(SWS,4)}, {s(sB+j)} offen offset:{im}")
    stamp(p, 1)
    for ks in range(NB): ld(ks)
    stamp(p, 2)
    srd(p, SO, 4, 2048*1280)
    vGT = 6
    p("v_lshrrev_b32 v1, 2, v0")
    p("v_lshlrev_b32 v224, 3, v1") if False else None
    p(f"s_lshl_b32 s20, {s(sRT)}, 9")
    p(f"s_add_u32 s20, s20, {WS_G}")
    GV = FB + 36*NB
    p(f"v_lshlrev_b32 {v(GV+2)}, 3, v1")
    p(f"buffer_load_dwordx2 {v(GV,2)}, {v(GV+2)}, {s(SWS,4)}, s20 offen")
    for ks in range(10):
        b = FB + 36*(ks % NB)
        for j in range(5):
            for i in range(4):
                A = (j*4+i)*4
                p(f"v_mfma_f32_16x16x32_bf16 {a(A,4)}, {v(b+16+4*j,4)}, {v(b+4*i,4)}, {'0' if ks==0 else a(A,4)}")
        if ks + NB < 10: ld(ks + NB)
        if ks == 0: stamp(p, 3)
    stamp(p, 4)
    RS = 336
    p("v_and_b32 v3, 15, v2")
    p(f"v_mul_u32_u24 v3, {RS}, v3")
    p("v_lshrrev_b32 v4, 4, v2")
    p("v_lshl_add_u32 v3, v4, 4, v3")
    p(f"s_mul_i32 s20, {s(sWV)}, {64*RS}")
    p("v_add_u32 v3, s20, v3")
    for j in range(5):
        for i in range(4):
            A = (j*4+i)*4
            p(f"ds_write_b128 v3, {a(A,4)} offset:{i*16*RS + j*64}")
    p(f"v_mul_u32_u24 v4, {RS}, v1")
    p("v_and_b32 v5, 3, v0")
    p("v_mul_u32_u24 v7, 80, v5")
    p("v_add_u32 v4, v4, v7")
    p(f"v_add_u32 v7, {2*64*RS}, v4")
    p("s_waitcnt lgkmcnt(0)")
    p("s_barrier")
    stamp(p, 5)
    R = 8
    for w in range(4):
        for c in range(5):
            p(f"ds_read_b128 {v(R+20*w+4*c,4)}, {v(4 if w < 2 else 7)} offset:{(w&1)*64*RS + 16*c}")
    p("s_movk_i32 s20, 1280")
    p("v_mul_u32_u24 v5, 40, v5")
    p("v_mad_u32_u24 v5, v1, s20, v5")
    p(f"s_mul_i32 s21, {s(sRT)}, {64*1280}")
    p(f"s_mul_i32 s22, {s(sCT)}, 160")
    p("s_add_u32 s21, s21, s22")
    for k in range(20): p(f"v_add_f32 {v(R+k)}, {v(R+k)}, {v(R+20+k)}")
    for k in range(20): p(f"v_mul_f32 {v(R+k)}, {v(GV)}, {v(R+k)}")
    for k in range(20): p(f"v_add_f32 {v(R+40+k)}, {v(R+40+k)}, {v(R+60+k)}")
    for k in range(20): p(f"v_fmac_f32 {v(R+k)}, {v(GV+1)}, {v(R+40+k)}")
    E = 96
    for k in range(10): p(f"v_cvt_pk_bf16_f32 {v(E+k)}, {v(R+2*k)}, {v(R+2*k+1)}")
    p(f"buffer_store_dwordx4 {v(E,4)}, v5, {s(SO,4)}, s21 offen")
    p(f"buffer_store_dwordx4 {v(E+4,4)}, v5, {s(SO,4)}, s21 offen offset:16")
    p(f"buffer_store_dwordx2 {v(E+8,2)}, v5, {s(SO,4)}, s21 offen offset:32")
    stamp(p, 6)
    if STAMP: p("s_waitcnt vmcnt(0)")
    stamp(p, 7)
    stamp_flush(p, 2, SWS, 8, sWV)
    p.label("K3_end")
    p("s_endpgm")
    p.pad()
    return p.text(), dict(name="k3_kernel", vgpr=228+80, arch=228, sgpr=100, grid=256, block=256, lds=4*64*RS)
```

```python
from asmlib import *
from gen import *

P3_ACC = 0 + 16
P3_W = 96
P3_O = 196
P3_G = 244
P3_V = 250

def p3_setup(p, sWV, S):
    sRT, sCT, sA, sB, t0, t1 = S['RT'], S['CT'], S['A'], S['B'], S['t0'], S['t1']
    p(f"s_and_b32 {s(t0)}, s2, 7")
    p(f"s_lshr_b32 {s(t1)}, s2, 3")
    p(f"s_lshl_b32 {s(t0)}, {s(t0)}, 2")
    p(f"s_lshr_b32 {s(sRT)}, {s(t1)}, 3")
    p(f"s_add_u32 {s(sRT)}, {s(sRT)}, {s(t0)}")
    p(f"s_and_b32 {s(sCT)}, {s(t1)}, 7")
    p(f"s_mul_i32 {s(t0)}, {s(sWV)}, 5120")
    p(f"v_and_b32 {v(P3_V+5)}, 63, v0")
    p(f"v_lshlrev_b32 {v(P3_V+4)}, 4, {v(P3_V+5)}")
    p(f"v_add_u32 {v(P3_V)}, {s(t0)}, {v(P3_V+4)}")
    p(f"v_add_u32 {v(P3_V+1)}, 4096, {v(P3_V)}")
    p(f"s_mul_i32 {s(t0)}, {s(sRT)}, {4*40960}")
    for i in range(4): p(f"s_add_u32 {s(sA+i)}, {s(t0)}, {WS_OF + i*40960}")
    p(f"s_mul_i32 {s(t0)}, {s(sCT)}, {5*40960}")
    for j in range(5): p(f"s_add_u32 {s(sB+j)}, {s(t0)}, {WS_WF + j*40960}")

def p3_loadW(p, SWS, S, LD=''):
    for ks in range(5):
        vo = v(P3_V + ks // 4); im = (ks % 4) * 1024
        for j in range(5):
            p(f"buffer_load_dwordx4 {v(P3_W+(ks*5+j)*4,4)}, {vo}, {s(SWS,4)}, {s(S['B']+j)} offen offset:{im} {LD}")

def p3_main(p, sWV, SWS, SO, S, LD=''):
    sRT, sCT, sA, t0, t1 = S['RT'], S['CT'], S['A'], S['t0'], S['t1']
    def ldo(ks):
        vo = v(P3_V + ks // 4); im = (ks % 4) * 1024
        for i in range(4):
            p(f"buffer_load_dwordx4 {v(P3_O+(ks%3)*16+4*i,4)}, {vo}, {s(SWS,4)}, {s(sA+i)} offen offset:{im} {LD}")
    for ks in range(3): ldo(ks)
    sT0 = S['T0']
    p(f"s_mul_i32 {s(t0)}, {s(sWV)}, 3")
    p(f"s_lshl_b32 {s(t1)}, {s(sWV)}, 1")
    p(f"s_add_u32 {s(t1)}, {s(t1)}, 4")
    p(f"s_cmp_lt_u32 {s(sWV)}, 4")
    p(f"s_cselect_b32 {s(sT0)}, {s(t0)}, {s(t1)}")
    p(f"v_and_b32 {v(P3_V+2)}, 15, {v(P3_V+5)}")
    p(f"v_lshlrev_b32 {v(P3_V+3)}, 3, {v(P3_V+2)}")
    for q in range(3):
        p(f"s_add_u32 {s(t0)}, {s(sT0)}, {q}")
        p(f"s_and_b32 {s(t0)}, {s(t0)}, 3")
        p(f"s_lshl_b32 {s(t0)}, {s(t0)}, 7")
        p(f"s_lshl_b32 {s(t1)}, {s(sRT)}, 9")
        p(f"s_add_u32 {s(t0)}, {s(t0)}, {s(t1)}")
        p(f"s_add_u32 {s(t0)}, {s(t0)}, {WS_G}")
        p(f"buffer_load_dwordx2 {v(P3_G+2*q,2)}, {v(P3_V+3)}, {s(SWS,4)}, {s(t0)} offen {LD}")
    stamp(p, 18)
    for ks in range(5):
        for i in range(4):
            for j in range(5):
                A = P3_ACC + (j*4+i)*4
                p(f"v_mfma_f32_16x16x32_bf16 {v(A,4)}, {v(P3_W+(ks*5+j)*4,4)}, {v(P3_O+(ks%3)*16+4*i,4)}, {'0' if ks==0 else v(A,4)}")
        if ks + 3 < 5: ldo(ks + 3)
        if ks == 0: stamp(p, 19)
    stamp(p, 24)
    p(f"s_mul_i32 {s(t0)}, {s(sWV)}, 20480")
    p(f"v_add_u32 {v(P3_V)}, {s(t0)}, {v(P3_V+4)}")
    for tl in range(20):
        p(f"ds_write_b128 {v(P3_V)}, {v(P3_ACC+4*tl,4)} offset:{tl*1024}")
    p(f"s_lshl_b32 {s(t0)}, {s(sT0)}, 10")
    p(f"v_add_u32 {v(P3_V)}, {s(t0)}, {v(P3_V+4)}")
    p(f"v_add_u32 {v(P3_V+1)}, {3*20480}, {v(P3_V)}")
    p(f"v_add_u32 {v(P3_V+3)}, {6*20480}, {v(P3_V)}")
    p(f"v_lshrrev_b32 {v(P3_V+4)}, 4, {v(P3_V+5)}")
    p(f"v_lshlrev_b32 {v(P3_V+4)}, 3, {v(P3_V+4)}")
    p(f"s_movk_i32 {s(t0)}, 1280")
    p(f"v_mad_u32_u24 {v(P3_V+4)}, {v(P3_V+2)}, {s(t0)}, {v(P3_V+4)}")
    sOB = S['OB']
    p(f"s_mul_i32 {s(sOB)}, {s(sRT)}, {64*1280}")
    p(f"s_mul_i32 {s(t1)}, {s(sCT)}, 160")
    p(f"s_add_u32 {s(sOB)}, {s(sOB)}, {s(t1)}")
    p("s_waitcnt lgkmcnt(0)")
    p("s_barrier")
    stamp(p, 25)
    R = 96
    def fin(q):
        B = R + q*32
        for w in range(8):
            base = P3_V + (0 if w < 3 else (1 if w < 6 else 3))
            p(f"ds_read_b128 {v(B+4*w,4)}, {v(base)} offset:{(w%3)*20480 + q*1024}")
    def comb(q):
        B = R + q*32
        for h in range(2):
            p(f"v_pk_add_f32 {v(B+2*h,2)}, {v(B+2*h,2)}, {v(B+4+2*h,2)}")
            p(f"v_pk_add_f32 {v(B+8+2*h,2)}, {v(B+8+2*h,2)}, {v(B+12+2*h,2)}")
            p(f"v_pk_add_f32 {v(B+16+2*h,2)}, {v(B+16+2*h,2)}, {v(B+20+2*h,2)}")
            p(f"v_pk_add_f32 {v(B+24+2*h,2)}, {v(B+24+2*h,2)}, {v(B+28+2*h,2)}")
        for h in range(2):
            p(f"v_pk_add_f32 {v(B+2*h,2)}, {v(B+2*h,2)}, {v(B+8+2*h,2)}")
            p(f"v_pk_add_f32 {v(B+16+2*h,2)}, {v(B+16+2*h,2)}, {v(B+24+2*h,2)}")
        for k in range(4): p(f"v_mul_f32 {v(B+k)}, {v(P3_G+2*q)}, {v(B+k)}")
        for k in range(4): p(f"v_fmac_f32 {v(B+k)}, {v(P3_G+2*q+1)}, {v(B+16+k)}")
        p(f"v_cvt_pk_bf16_f32 {v(B+4)}, {v(B)}, {v(B+1)}")
        p(f"v_cvt_pk_bf16_f32 {v(B+5)}, {v(B+2)}, {v(B+3)}")
        p(f"s_add_u32 {s(t0)}, {s(sT0)}, {q}")
        p(f"s_and_b32 {s(t1)}, {s(t0)}, 3")
        p(f"s_mul_i32 {s(t1)}, {s(t1)}, {16*1280}")
        p(f"s_lshr_b32 {s(t0)}, {s(t0)}, 2")
        p(f"s_lshl_b32 {s(t0)}, {s(t0)}, 5")
        p(f"s_add_u32 {s(t0)}, {s(t0)}, {s(t1)}")
        p(f"s_add_u32 {s(t0)}, {s(t0)}, {s(sOB)}")
        p(f"buffer_store_dwordx2 {v(B+4,2)}, {v(P3_V+4)}, {s(SO,4)}, {s(t0)} offen")
    fin(0); fin(1); fin(2)
    comb(0); comb(1)
    p(f"s_cmp_lt_u32 {s(sWV)}, 4")
    p("s_cbranch_scc0 P3_done")
    comb(2)
    p.label("P3_done")

def gen_k3():
    p = Prog()
    header(p, "k3_kernel")
    p.stv = 2
    SWS, SO = 8, 12
    sWV = 16
    S = dict(RT=17, CT=18, A=24, B=28, t0=20, t1=21, T0=22, OB=23)
    p("s_cmp_ge_u32 s2, 256")
    p("s_cbranch_scc1 K3_end")
    stamp(p, 0)
    p("s_load_dwordx2 s[4:5], s[0:1], 56")
    p("s_load_dwordx2 s[6:7], s[0:1], 72")
    p("v_lshrrev_b32 v1, 6, v0")
    p(f"v_readfirstlane_b32 {s(sWV)}, v1")
    p3_setup(p, sWV, S)
    p("s_waitcnt lgkmcnt(0)")
    srd(p, SWS, 6, WS_SIZE)
    srd(p, SO, 4, 2048*1280)
    stamp(p, 1)
    p3_loadW(p, SWS, S)
    p3_main(p, sWV, SWS, SO, S)
    stamp(p, 6)
    if STAMP: p("s_waitcnt vmcnt(0)")
    stamp(p, 7)
    stamp_flush(p, 2, SWS, 8, sWV)
    p.label("K3_end")
    p("s_endpgm")
    p.pad()
    return p.text(), dict(name="k3_kernel", vgpr=256, sgpr=100, grid=256, block=512, lds=163840)
```

```python
from asmlib import *
from gen import *
from gen1 import emit_p1
from gen23 import emit_p2, WS_FLG
from gen3 import *

def gen_fused(name):
    p = Prog()
    header(p, name)
    p.stv = 231
    SWS, sWV, sNON = 20, 33, 94
    SPIN = 200000
    cnt = [0]
    def poll(voffs, sbase, lo, hi=0, setexec=True):
        cnt[0] += 1
        L = f"POLL{cnt[0]}"
        if setexec:
            p(f"s_mov_b32 exec_lo, {lo}")
            p(f"s_mov_b32 exec_hi, {hi}")
        p(f"s_mov_b32 s95, {SPIN}")
        p.label(L)
        for k, vo in enumerate(voffs):
            p.raw(f"    buffer_load_dword {v(232+k)}, {v(vo)}, {s(SWS,4)}, {sbase} offen sc1")
        p.raw("    s_waitcnt vmcnt(0)")
        p(f"v_xor_b32 v232, {s(sNON)}, v232")
        for k in range(1, len(voffs)):
            p(f"v_xor_b32 {v(232+k)}, {s(sNON)}, {v(232+k)}")
            p(f"v_or_b32 v232, v232, {v(232+k)}")
        p("v_cmp_ne_u32 vcc, 0, v232")
        p("s_sub_u32 s95, s95, 1")
        p("s_cmp_eq_u32 s95, 0")
        p(f"s_cbranch_scc1 {L}_out")
        p("s_nop 2")
        p(f"s_cbranch_vccz {L}_out")
        p("s_sleep 1")
        p(f"s_branch {L}")
        p.label(f"{L}_out")
        p("s_mov_b32 exec_lo, -1")
        p("s_mov_b32 exec_hi, -1")
    def publish(which):
        pass
    emit_p1(p, True)
    def sync1(sH, sR):
        p(f"s_lshr_b32 s36, {s(sH)}, 2")
        p(f"s_lshl_b32 s37, {s(sR)}, 1")
        p("s_sub_u32 s37, s37, 2")
        p("v_add_u32 v236, s37, v2")
        p("v_and_b32 v237, 7, v236")
        p("v_lshlrev_b32 v237, 5, v237")
        p("v_bfe_u32 v236, v236, 3, 1")
        p("v_lshl_add_u32 v237, v236, 2, v237")
        p("s_and_b32 s38, s36, 1")
        p("s_lshl_b32 s38, s38, 3")
        p("s_lshr_b32 s36, s36, 1")
        p("s_add_u32 s38, s38, s36")
        p("v_add_u32 v237, s38, v237")
        p("v_lshlrev_b32 v237, 7, v237")
        p("v_lshlrev_b32 v238, 7, v2")
        p("v_add_u32 v239, 8192, v238")
        p("v_add_u32 v240, 16384, v238")
        p("v_add_u32 v241, 24576, v238")
        p(f"s_mov_b32 s70, {WS_FLG}")
        p(f"s_cmp_eq_u32 {s(sR)}, 0")
        p("s_cselect_b32 s71, 12, 15")
        p("s_waitcnt vmcnt(0)")
        p("s_barrier")
        stamp(p, 7)
        p(f"s_cmp_lg_u32 {s(sWV)}, 0")
        p("s_cbranch_scc1 S1_skip")
        p(f"v_readfirstlane_b32 {s(sNON)}, v205")
        p(f"s_mov_b32 s95, {SPIN}")
        p.label("S1_tag")
        p(f"s_cmp_lg_u32 {s(sNON)}, 0")
        p("s_cbranch_scc1 S1_havetag")
        p("s_sub_u32 s95, s95, 1")
        p("s_cmp_eq_u32 s95, 0")
        p("s_cbranch_scc1 S1_havetag")
        p("s_sleep 1")
        p("v_mov_b32 v232, 0")
        p.raw("    global_load_dword v205, v232, s[96:97] sc1")
        p.raw("    s_waitcnt vmcnt(0)")
        p(f"v_readfirstlane_b32 {s(sNON)}, v205")
        p("s_branch S1_tag")
        p.label("S1_havetag")
        p("s_lshl_b32 s72, s2, 7")
        p("s_add_u32 s72, s72, s70")
        p(f"v_mov_b32 v232, {s(sNON)}")
        p("v_mov_b32 v233, 0")
        p("s_mov_b32 exec_lo, 1")
        p("s_mov_b32 exec_hi, 0")
        p.raw(f"    buffer_store_dword v232, v233, {s(SWS,4)}, s72 offen sc1")
        poll([237], "s70", "s71")
        p.label("S1_skip")
        p("s_barrier")
        stamp(p, 8)
    def sync_mid():
        p(f"s_cmp_lg_u32 {s(sWV)}, 0")
        p("s_cbranch_scc1 SM_skip")
        poll([238, 239, 240, 241], "s70", "-1", "-1", setexec=False)
        p.label("SM_skip")
    emit_p2(p, dict(sync1=sync1, sync_mid=sync_mid))
    S = dict(RT=17, CT=18, A=24, B=28, t0=36, t1=37, T0=38, OB=39)
    p("s_load_dwordx2 s[4:5], s[0:1], 56")
    p3_setup(p, sWV, S)
    p("s_and_b32 s40, s2, 3")
    p("s_lshl_b32 s40, s40, 6")
    p("s_bfe_u32 s41, s2, 0x10002")
    p("s_lshl_b32 s41, s41, 2")
    p("s_add_u32 s40, s40, s41")
    p("v_and_b32 v1, 7, v2")
    p("v_lshlrev_b32 v1, 3, v1")
    p("v_bfe_u32 v3, v2, 3, 2")
    p("v_add3_u32 v1, v1, v3, s40")
    p("v_lshlrev_b32 v237, 7, v1")
    p(f"s_add_u32 s70, s70, 32768")
    p("s_lshl_b32 s72, s2, 7")
    p("s_add_u32 s72, s72, s70")
    p(f"v_mov_b32 v232, {s(sNON)}")
    p("v_mov_b32 v233, 0")
    p("s_waitcnt lgkmcnt(0)")
    srd(p, 12, 4, 2048*1280)
    p("s_waitcnt vmcnt(0)")
    p("s_barrier")
    stamp(p, 18)
    p(f"s_cmp_lg_u32 {s(sWV)}, 0")
    p("s_cbranch_scc1 S2_a")
    p("s_mov_b32 exec_lo, 1")
    p("s_mov_b32 exec_hi, 0")
    p.raw(f"    buffer_store_dword v232, v233, {s(SWS,4)}, s72 offen sc1")
    p("s_mov_b32 exec_lo, -1")
    p("s_mov_b32 exec_hi, -1")
    p.label("S2_a")
    p3_loadW(p, SWS, S, 'sc1')
    p(f"s_cmp_lg_u32 {s(sWV)}, 0")
    p("s_cbranch_scc1 S2_skip")
    poll([237], "s70", "-1", "0")
    p.label("S2_skip")
    p("s_barrier")
    stamp(p, 19)
    if STAMP:
        stamp_flush(p, 0, SWS, 8, sWV)
        p("s_mov_b32 exec_lo, -1"); p("s_mov_b32 exec_hi, -1")
        p.stv = 3
    p3_main(p, sWV, SWS, 12, S, 'sc1')
    stamp(p, 6)
    if STAMP: p("s_waitcnt vmcnt(0)")
    stamp(p, 7)
    stamp_flush(p, 2, SWS, 8, sWV)
    p.label("K1_end")
    p("s_endpgm")
    p.pad()
    return p.text(), dict(name=name, vgpr=256, sgpr=100, grid=256, block=512, lds=163840)
```

```python
import math, struct, sys
from asmlib import *

NAME = "gated_mix__sliding_block__linear_attn_block__prompt"
WS_QA=0x000000; WS_KA=0x300000; WS_VA=0x600000; WS_QB=0x900000; WS_KVP=0xC00000
WS_OF=0xE00000; WS_WF=0x1300000; WS_G=0x1500000; WS_SIZE=0x1600000

def f32(x): return "0x%08x" % struct.unpack('<I', struct.pack('<f', x))[0]
LOG2E = math.log2(math.e)
QSCALE = (20 ** -0.5) * LOG2E
EPS = 1e-6
NEG = -1e30

def srd(p, d, base, nbytes):
    p(f"s_mov_b32 {s(d)}, {s(base)}")
    p(f"s_and_b32 {s(d+1)}, {s(base+1)}, 0xffff")
    p(f"s_mov_b32 {s(d+2)}, {nbytes}")
    p(f"s_mov_b32 {s(d+3)}, 0x20000")

import os
STAMP = int(os.environ.get('STAMP', '0'))
WS_DBG = 0x1580000
STV = {}
SC = os.environ.get('SC', 'sc1')
def stamp(p, i, sreg=None):
    if not STAMP: return
    p("s_memrealtime s[98:99]")
    p("s_waitcnt lgkmcnt(0)")
    if sreg is None:
        p(f"v_writelane_b32 {v(p.stv)}, s98, {i}")
    else:
        p(f"s_mov_b32 s99, m0")
        p(f"s_add_u32 m0, {s(sreg)}, {i}")
        p("s_nop 1")
        p(f"v_writelane_b32 {v(p.stv)}, s98, m0")
        p(f"s_mov_b32 m0, s99")
def stampc(p, i):
    if not STAMP: return
    p("s_memtime s[98:99]")
    p("s_waitcnt lgkmcnt(0)")
    p(f"v_writelane_b32 {v(p.stv)}, s98, {i}")
def stamp_flush(p, kidx, srdreg, n, wavereg):
    if not STAMP: return
    lab = f"STK{kidx}_{len(p.ins)}"
    p("s_getreg_b32 s98, hwreg(HW_REG_XCC_ID)")
    p(f"v_writelane_b32 {v(p.stv)}, s98, 29")
    p("s_getreg_b32 s98, hwreg(HW_REG_HW_ID)")
    p(f"v_writelane_b32 {v(p.stv)}, s98, 28")
    p(f"s_and_b32 s99, {s(wavereg)}, 3")
    p("s_cmp_lg_u32 s99, 0")
    p(f"s_cbranch_scc1 {lab}")
    p("s_mov_b32 exec_lo, -1")
    p("s_mov_b32 exec_hi, 0")
    p(f"s_lshr_b32 s99, {s(wavereg)}, 2")
    p("s_mul_i32 s99, s99, 0x18000")
    p("s_lshl_b32 s98, s2, 7")
    p("s_add_u32 s98, s98, s99")
    p(f"s_add_u32 s98, s98, {WS_DBG + kidx*0x8000}")
    p("v_mbcnt_lo_u32_b32 v1, -1, 0")
    p("v_lshlrev_b32 v1, 2, v1")
    p(f"buffer_store_dword {v(p.stv)}, v1, {s(srdreg,4)}, s98 offen")
    p.label(lab)

def header(p, name):
    p.raw(f".globl {name}")
    p.raw(".p2align 8")
    p.raw(f".type {name},@function")
    p.label(name)

def gen_k1():
    p = Prog()
    header(p, "k1_kernel")
    p.stv = 176
    SX, SW, SWS = 12, 16, 20
    sRT, sHG, sBR, sST, sKC, sOX, sOW, sSLI, sSLC, sWV = 24, 25, 26, 27, 28, 29, 30, 31, 32, 33
    sMH, sNG = 41, 42
    sINIT, sSCL, sFLG = 44, 48, 52
    sM0X, sM0W = 56, 57
    p("s_cmp_ge_u32 s2, 256")
    p("s_cbranch_scc1 K1_end")
    stamp(p, 0)
    p("s_load_dwordx4 s[4:7], s[0:1], 0")
    p("s_load_dwordx2 s[8:9], s[0:1], 32")
    p("s_load_dwordx2 s[10:11], s[0:1], 72")
    p("v_lshrrev_b32 v1, 6, v0")
    p("v_and_b32 v2, 63, v0")
    p(f"v_readfirstlane_b32 {s(sWV)}, v1")
    p("s_and_b32 s34, s2, 7")
    p("s_lshr_b32 s35, s2, 3")
    p("s_lshr_b32 s36, s34, 2")
    p("s_and_b32 s37, s34, 3")
    p("s_lshr_b32 s38, s35, 2")
    p("s_and_b32 s39, s35, 3")
    p(f"s_lshl_b32 {s(sRT)}, s36, 3")
    p(f"s_add_u32 {s(sRT)}, {s(sRT)}, s38")
    p(f"s_lshr_b32 {s(sBR)}, s39, 1")
    p(f"s_and_b32 {s(sHG)}, s39, 1")
    p("s_lshl_b32 s40, s37, 1")
    p(f"s_add_u32 {s(sHG)}, {s(sHG)}, s40")
    p("s_mov_b32 s58, s38")
    p("s_mov_b32 s59, s39")
    p(f"s_lshr_b32 {s(sMH)}, {s(sWV)}, 2")
    p(f"s_and_b32 {s(sNG)}, {s(sWV)}, 3")
    vXO, vWO = 4, 6
    p("v_lshrrev_b32 v3, 3, v2")
    p("v_and_b32 v10, 7, v2")
    p("v_xor_b32 v10, v10, v3")
    p("v_lshlrev_b32 v10, 4, v10")
    p("s_movk_i32 s40, 1280")
    p(f"v_mad_u32_u24 {v(vXO)}, v3, s40, v10")
    p(f"s_lshl_b32 s34, {s(sRT)}, 7")
    p(f"s_lshl_b32 s35, {s(sWV)}, 4")
    p("s_add_u32 s34, s34, s35")
    p("s_mul_i32 s34, s34, 1280")
    p(f"v_add_u32 {v(vXO)}, s34, {v(vXO)}")
    p(f"v_add_u32 {v(vXO+1)}, 9216, {v(vXO)}")
    p("v_lshrrev_b32 v3, 5, v2")
    p("v_bfe_u32 v10, v2, 1, 4")
    p("v_and_b32 v11, 1, v2")
    p("v_lshlrev_b32 v11, 4, v11")
    p("s_movk_i32 s35, 3840")
    p("v_mad_u32_u24 v11, v3, s35, v11")
    p(f"s_and_b32 s36, {s(sWV)}, 1")
    p("s_lshl_b32 s36, s36, 2")
    p(f"s_mul_i32 s37, {s(sWV)}, {8*3840}")
    p(f"s_mul_i32 s38, {s(sHG)}, 160")
    p("s_add_u32 s37, s37, s38")
    p("v_mov_b32 v16, 0x40000000")
    for i in range(2):
        p(f"v_or_b32 v12, s36, v3")
        if i: p("v_or_b32 v12, 2, v12")
        p("v_xor_b32 v12, v12, v10")
        p("v_mul_u32_u24 v13, 52, v12")
        p("v_lshrrev_b32 v13, 8, v13")
        p("v_mul_u32_u24 v14, 5, v13")
        p("v_sub_u32 v14, v12, v14")
        p("v_lshl_add_u32 v14, v14, 5, v11")
        p("v_mad_u32_u24 v14, v13, s40, v14")
        p(f"v_add_u32 v14, s37, v14")
        if i: p(f"v_add_u32 v14, {2*3840-1024}, v14")
        p("v_cmp_eq_u32 vcc, 15, v12")
        p(f"v_cndmask_b32 {v(vWO+i)}, v14, v16, vcc")
        p(f"v_add_u32 {v(vWO+2+i)}, 13312, {v(vWO+i)}")
    p("s_waitcnt lgkmcnt(0)")
    srd(p, SX, 4, 2048*1280)
    p(f"s_cmp_eq_u32 {s(sBR)}, 0")
    p("s_cselect_b32 s6, s6, s8")
    p("s_cselect_b32 s7, s7, s9")
    srd(p, SW, 6, 640*3840)
    srd(p, SWS, 10, WS_SIZE)
    p(f"s_lshl_b32 {s(sM0X)}, {s(sWV)}, 11")
    p(f"s_lshl_b32 {s(sM0W)}, {s(sWV)}, 12")
    p(f"s_add_u32 {s(sM0W)}, {s(sM0W)}, 16384")
    p(f"s_mov_b32 {s(sSLI)}, 0")
    ROTG = int(os.environ.get('ROTG', '3'))
    if ROTG == 10:
        p(f"s_mul_i32 {s(sKC)}, s59, 3")
        p(f"s_add_u32 {s(sKC)}, {s(sKC)}, s58")
        p(f"s_sub_u32 s34, {s(sKC)}, 10")
        p(f"s_cmp_ge_u32 {s(sKC)}, 10")
        p(f"s_cselect_b32 {s(sKC)}, s34, {s(sKC)}")
    elif ROTG == 1:
        p(f"s_mov_b32 {s(sKC)}, 0")
    else:
        mg = {3: 86, 4: 64, 5: 52, 2: 128}[ROTG]
        p("s_add_u32 s34, s58, s59")
        p(f"s_mul_i32 s35, s34, {mg}")
        p("s_lshr_b32 s35, s35, 8")
        p(f"s_mul_i32 s35, s35, {ROTG}")
        p("s_sub_u32 s34, s34, s35")
        p("s_mul_i32 s34, s34, 10")
        p(f"s_mul_i32 s34, s34, {mg}")
        p(f"s_lshr_b32 {s(sKC)}, s34, 8")
    p(f"s_lshl_b32 {s(sOX)}, {s(sKC)}, 7")
    p(f"s_mul_i32 {s(sOW)}, {s(sKC)}, 245760")
    def issue_steps():
        g = []
        g.append([f"s_add_u32 m0, {s(sSLI)}, {s(sM0X)}", "s_nop 0",
                  f"buffer_load_dwordx4 {v(vXO)}, {s(SX,4)}, {s(sOX)} offen lds"])
        g.append([f"buffer_load_dwordx4 {v(vXO+1)}, {s(SX,4)}, {s(sOX)} offen offset:1024 lds"])
        g.append([f"s_add_u32 m0, {s(sSLI)}, {s(sM0W)}", f"s_add_u32 {s(sOX)}, {s(sOX)}, 128",
                  f"buffer_load_dwordx4 {v(vWO)}, {s(SW,4)}, {s(sOW)} offen lds"])
        for i in range(1, 4):
            g.append([f"buffer_load_dwordx4 {v(vWO+i)}, {s(SW,4)}, {s(sOW)} offen offset:{i*1024} lds"])
        g[-1] += [f"s_add_u32 {s(sOW)}, {s(sOW)}, 245760", f"s_add_u32 {s(sKC)}, {s(sKC)}, 1", f"s_cmp_eq_u32 {s(sKC)}, 10",
                  f"s_cselect_b32 {s(sOX)}, 0, {s(sOX)}", f"s_cselect_b32 {s(sOW)}, 0, {s(sOW)}",
                  f"s_add_u32 {s(sSLI)}, {s(sSLI)}, 49152",
                  f"s_cmp_eq_u32 {s(sSLI)}, 147456", f"s_cselect_b32 {s(sSLI)}, 0, {s(sSLI)}"]
        return g
    def issue():
        for g in issue_steps():
            for t in g: p(t)
    stamp(p, 1)
    PRO = os.environ.get('PRO', '1')
    issue()
    p("s_getpc_b64 s[60:61]")
    p.label("K1_pc")
    p(f"s_lshl_b32 s34, {s(sWV)}, 13")
    p("v_lshlrev_b32 v26, 7, v2")
    p("v_add_u32 v26, s34, v26")
    p("v_min_u32 v26, CODE_END-K1_pc-4, v26")
    p("global_load_dword v29, v26, s[60:61]")
    if PRO == '0':
        issue(); issue()
    stamp(p, 2)
    vXS, vWS, vXA, vWA = 10, 12, 16, 18
    vG, vM = 22, 23
    p(f"v_lshrrev_b32 {v(vG)}, 4, v2")
    p(f"v_and_b32 {v(vM)}, 15, v2")
    p("v_and_b32 v3, 7, v2")
    p(f"v_xor_b32 v3, v3, {v(vG)}")
    p("v_lshlrev_b32 v3, 4, v3")
    p(f"v_lshl_add_u32 v3, {v(vM)}, 7, v3")
    p(f"s_lshl_b32 s34, {s(sMH)}, 13")
    p(f"v_add_u32 {v(vXS)}, s34, v3")
    p(f"v_xor_b32 {v(vXS+1)}, 64, {v(vXS)}")
    p("v_bfe_u32 v3, v2, 2, 2")
    p(f"v_and_b32 v24, 1, {v(vG)}")
    p("v_lshl_or_b32 v24, v24, 2, v3")
    p(f"v_lshl_add_u32 v25, {v(vG)}, 3, v3")
    p("v_lshlrev_b32 v25, 9, v25")
    p("v_and_b32 v26, 3, v2")
    p("v_lshl_add_u32 v25, v26, 3, v25")
    p("v_add_u32 v25, 16384, v25")
    for jj in range(4):
        p(f"s_add_u32 s35, {s(sNG)}, {4*jj}")
        p(f"v_xor_b32 v26, s35, v24")
        p(f"v_lshl_add_u32 {v(vWS+jj)}, v26, 5, v25")
        p("s_sub_u32 s36, s35, 5")
        p("s_cmp_lt_u32 s36, 5")
        p(f"s_cselect_b32 {s(sFLG+jj)}, {s(sBR)}, 0")
        p(f"s_mul_i32 {s(sINIT+jj)}, {s(sFLG+jj)}, {f32(EPS)}")
        p("s_cmp_lt_u32 s35, 5")
        p("s_cselect_b32 s36, 1, 0")
        p(f"s_andn2_b32 s36, s36, {s(sBR)}")
        p("s_cmp_eq_u32 s36, 1")
        p(f"s_cselect_b32 {s(sSCL+jj)}, {f32(QSCALE)}, 1.0")
    ACC = 32
    FX = [96, 128]
    FW = [112, 144]
    for jj in range(4):
        for k in range(16):
            p(f"v_mov_b32 {v(ACC+jj*16+k)}, {s(sINIT+jj)}")
    p(f"s_mov_b32 {s(sST)}, 0")
    p(f"s_mov_b32 {s(sSLC)}, 0")
    X_NOLDS = os.environ.get('K1_NOLDS'); X_NOMFMA = os.environ.get('K1_NOMFMA')
    def rdx(ks, i):
        if not X_NOLDS or X_NOLDS == 'w': p(f"ds_read_b128 {v(FX[ks]+4*i,4)}, {v(vXA+ks)} offset:{i*2048}")
    def rdw(ks, jj, h):
        if not X_NOLDS or X_NOLDS == 'x': p(f"ds_read_b64_tr_b16 {v(FW[ks]+4*jj+2*h,2)}, {v(vWA+jj)} offset:{ks*16384+h*2048}")
    def mm(ks, jj, i):
        A = ACC + (jj*4+i)*4
        p(f"v_mfma_f32_16x16x32_bf16 {v(A,4)}, {v(FW[ks]+4*jj,4)}, {v(FX[ks]+4*i,4)}, {v(A,4)}")
    def readlist(ks):
        L = [lambda: rdw(ks,0,0), lambda: rdw(ks,0,1)]
        for i in range(4): L.append(lambda i=i: rdx(ks,i))
        for jj in range(1,4):
            L.append(lambda jj=jj: rdw(ks,jj,0)); L.append(lambda jj=jj: rdw(ks,jj,1))
        return L
    def reads(ks):
        for f in readlist(ks): f()
    def setaddr():
        for k in range(2): p(f"v_add_u32 {v(vXA+k)}, {s(sSLC)}, {v(vXS+k)}")
        for k in range(4): p(f"v_add_u32 {v(vWA+k)}, {s(sSLC)}, {v(vWS+k)}")
    setaddr()
    if PRO == '0':
        p("s_waitcnt vmcnt(13)")
        p("s_barrier")
    elif PRO == '1':
        issue()
        p("s_waitcnt vmcnt(7)")
        p("s_barrier")
        issue()
    elif PRO == '2':
        issue(); issue()
        p("s_waitcnt vmcnt(13)")
        p("s_barrier")
    stamp(p, 3)
    stampc(p, 30)
    p.forget()
    reads(0)
    p.label("K1_loop")
    if STAMP > 1: stamp(p, 8, sST)
    L = readlist(1)
    for jj in range(4):
        for i in range(4):
            mm(0,jj,i)
            if L: L.pop(0)()
    p(f"s_add_u32 {s(sSLC)}, {s(sSLC)}, 49152")
    p(f"s_cmp_eq_u32 {s(sSLC)}, 147456")
    p(f"s_cselect_b32 {s(sSLC)}, 0, {s(sSLC)}")
    p(f"s_cmp_gt_u32 {s(sST)}, 6")
    p(f"s_cselect_b32 {s(sOX)}, 0x40000000, {s(sOX)}")
    p(f"s_cselect_b32 {s(sOW)}, 0x40000000, {s(sOW)}")
    p("s_waitcnt lgkmcnt(0)")
    setaddr()
    p("s_waitcnt vmcnt(6)")
    p("s_barrier")
    L = readlist(0)
    steps = issue_steps()
    if os.environ.get('K1_NODMA'): steps = []
    n = 0
    for jj in range(4):
        for i in range(4):
            mm(1,jj,i)
            if L: L.pop(0)()
            n += 1
            if n % 2 == 0 and n >= 4 and steps:
                for t in steps.pop(0): p(t)
    assert not steps
    p(f"s_add_u32 {s(sST)}, {s(sST)}, 1")
    p(f"s_cmp_lt_u32 {s(sST)}, 10")
    p("s_cbranch_scc1 K1_loop")
    p("s_waitcnt vmcnt(0) lgkmcnt(0)")
    p("s_barrier")
    stamp(p, 4)
    stampc(p, 31)
    vIM = 4
    p(f"s_lshl_b32 s34, {s(sMH)}, 6")
    p(f"v_add_u32 v3, s34, {v(vM)}")
    p("v_mul_u32_u24 v3, 48, v3")
    p(f"s_lshl_b32 s34, {s(sNG)}, 2")
    p("s_movk_i32 s36, 6144")
    for jj in range(4):
        p(f"s_add_u32 s35, s34, {16*jj}")
        p(f"v_add_u32 v8, s35, {v(vG)}")
        p("v_mul_u32_u24 v9, 52, v8")
        p("v_lshrrev_b32 v9, 8, v9")
        p("v_mul_u32_u24 v10, 5, v9")
        p("v_sub_u32 v10, v8, v10")
        p("v_lshl_add_u32 v10, v10, 3, v3")
        p(f"v_mad_u32_u24 {v(vIM+jj)}, v9, s36, v10")
    p("v_lshrrev_b32 v8, 7, v0")
    p("v_and_b32 v9, 127, v0")
    p("v_mul_u32_u24 v9, 48, v9")
    p("v_mad_u32_u24 v8, v8, s36, v9")
    p("v_mov_b32 v10, 0x3f80")
    p("v_mov_b32 v11, 0")
    p("v_mov_b32 v12, 0")
    p("v_mov_b32 v13, 0")
    p("ds_write_b64 v8, v[10:11] offset:40")
    p(f"ds_write_b64 v8, v[12:13] offset:{40+24576}")
    p(f"ds_write_b64 v8, v[10:11] offset:{40+49152}")
    p(f"s_mov_b32 s62, {f32(LOG2E)}")
    p(f"s_mov_b32 s63, {f32(LOG2E)}")
    p(f"s_mov_b32 s38, {f32(EPS)}")
    p(f"s_mov_b32 s64, {f32(QSCALE)}")
    p(f"s_mov_b32 s65, {f32(QSCALE)}")
    T = 96
    for jj in (3, 0, 1, 2):
        A = ACC + jj*16
        if jj in (1, 2):
            p(f"s_cmp_eq_u32 {s(sFLG+jj)}, 0")
            p(f"s_cbranch_scc1 K1_nophi{jj}")
            for k in range(8): p(f"v_pk_mul_f32 {v(T+2*k,2)}, {v(A+2*k,2)}, s[62:63]")
            for k in range(16): p(f"v_exp_f32 {v(T+k)}, {v(T+k)} clamp")
            for k in range(16): p(f"v_max_f32 {v(A+k)}, s38, {v(A+k)}")
            for k in range(8): p(f"v_pk_add_f32 {v(A+2*k,2)}, {v(A+2*k,2)}, {v(T+2*k,2)}")
            p.label(f"K1_nophi{jj}")
        if jj in (0, 1):
            p(f"s_cmp_eq_u32 {s(sSCL+jj)}, 1.0")
            p(f"s_cbranch_scc1 K1_noscl{jj}")
            for k in range(8): p(f"v_pk_mul_f32 {v(A+2*k,2)}, {v(A+2*k,2)}, s[64:65]")
            p.label(f"K1_noscl{jj}")
        P = 112 + jj*8
        for k in range(8): p(f"v_cvt_pk_bf16_f32 {v(P+k)}, {v(A+2*k)}, {v(A+2*k+1)}")
        for i in range(4): p(f"ds_write_b64 {v(vIM+jj)}, {v(P+2*i,2)} offset:{i*768}")
    p("s_waitcnt lgkmcnt(0)")
    p("s_barrier")
    stamp(p, 5)
    p(f"s_mul_i32 s34, {s(sWV)}, 768")
    p("v_lshlrev_b32 v3, 4, v2")
    p("v_add_u32 v3, s34, v3")
    p(f"v_add_u32 v4, {6*6144}, v3")
    p(f"s_mul_i32 s34, {s(sHG)}, {4*98304}")
    p(f"s_mul_i32 s35, {s(sRT)}, 6144")
    p("s_add_u32 s34, s34, s35")
    p(f"s_mul_i32 s35, {s(sBR)}, {3*0x300000}")
    p("s_add_u32 s34, s34, s35")
    p("s_mov_b32 exec_hi, 0xffff")
    D = 32
    def rdblk(b):
        if b < 6: p(f"ds_read_b128 {v(D+4*b,4)}, v3 offset:{b*6144}")
        else: p(f"ds_read_b128 {v(D+4*b,4)}, v4 offset:{(b-6)*6144}")
    def stblk(b):
        off = (b//4)*0x300000 + (b%4)*98304
        p(f"s_add_u32 s35, s34, {off}")
        p(f"buffer_store_dwordx4 {v(D+4*b,4)}, v3, {s(SWS,4)}, s35 offen {SC}")
    for b in range(4): rdblk(b)
    p(f"s_cmp_eq_u32 {s(sBR)}, 0")
    p("s_cbranch_scc0 K1_bpath")
    p.begin_cond()
    for b in range(4,12): rdblk(b)
    for b in range(12): stblk(b)
    stamp(p, 6)
    if STAMP: p("s_waitcnt vmcnt(0)")
    stamp(p, 7)
    stamp_flush(p, 0, SWS, 8, sWV)
    p("s_endpgm")
    p.end_cond()
    p.label("K1_bpath")
    p("s_waitcnt lgkmcnt(0)")
    for b in range(4): stblk(b)
    p("s_mov_b32 exec_hi, -1")
    p(f"s_cmp_gt_u32 {s(sWV)}, 3")
    p("s_cbranch_scc1 K1_end")
    p("v_lshrrev_b32 v5, 5, v2")
    p("v_bfe_u32 v6, v2, 2, 2")
    p("v_lshl_add_u32 v5, v5, 3, v6")
    p("v_mul_u32_u24 v5, 48, v5")
    p("v_bfe_u32 v6, v2, 4, 1")
    p("v_lshl_add_u32 v5, v6, 5, v5")
    p("v_and_b32 v6, 3, v2")
    p("v_lshl_add_u32 v5, v6, 3, v5")
    p(f"s_add_u32 s35, {s(sWV)}, 4")
    p("s_mul_i32 s35, s35, 6144")
    p("v_add_u32 v5, s35, v5")
    KV = 96
    F = 112
    for t in range(8):
        for h in range(2): p(f"ds_read_b64_tr_b16 {v(F+8*t+2*h,2)}, v5 offset:{t*768+h*192}")
        for h in range(2): p(f"ds_read_b64_tr_b16 {v(F+8*t+4+2*h,2)}, v5 offset:{24576+t*768+h*192}")
        if t >= 2:
            tt = t-2
            p(f"v_mfma_f32_32x32x16_bf16 {v(KV,16)}, {v(F+8*tt,4)}, {v(F+8*tt+4,4)}, {'0' if tt==0 else v(KV,16)}")
    for tt in (6,7):
        p(f"v_mfma_f32_32x32x16_bf16 {v(KV,16)}, {v(F+8*tt,4)}, {v(F+8*tt+4,4)}, {v(KV,16)}")
    p(f"s_lshl_b32 s34, {s(sHG)}, 2")
    p(f"s_add_u32 s34, s34, {s(sWV)}")
    p("s_lshl_b32 s34, s34, 4")
    p(f"s_add_u32 s34, s34, {s(sRT)}")
    p("s_mul_i32 s34, s34, 3072")
    p(f"s_add_u32 s34, s34, {WS_KVP}")
    p("v_lshlrev_b32 v3, 4, v2")
    for q in range(3):
        p(f"buffer_store_dwordx4 {v(KV+4*q,4)}, v3, {s(SWS,4)}, s34 offen offset:{q*1024} {SC}")
    stamp(p, 6)
    if STAMP: p("s_waitcnt vmcnt(0)")
    stamp(p, 7)
    stamp_flush(p, 0, SWS, 8, sWV)
    p.label("K1_end")
    p("s_endpgm")
    p.pad()
    return p.text(), dict(name="k1_kernel", vgpr=177, sgpr=100, grid=256, block=512, lds=147456)

def descriptor(k):
    acc = (k.get('arch', k['vgpr']) + 3)//4*4
    return f""".p2align 6
.amdhsa_kernel {k['name']}
  .amdhsa_next_free_vgpr {k['vgpr']}
  .amdhsa_next_free_sgpr {k['sgpr']}
  .amdhsa_accum_offset {acc}
  .amdhsa_group_segment_fixed_size 0
  .amdhsa_kernarg_size 80
  .amdhsa_user_sgpr_count 2
  .amdhsa_user_sgpr_kernarg_segment_ptr 1
  .amdhsa_system_sgpr_workgroup_id_x 1
.end_amdhsa_kernel
"""

def build(kernels, path):
    ref = open(f"cdna_kernels/{NAME}.s.ref").read().splitlines()
    head = [l for l in ref if l.startswith(';') and '@launch' not in l and 'Override' not in l and 'grid=ceil' not in l]
    out = head[:]
    for _, k in kernels:
        out.append(f"; @launch kernel={k['name']} grid=({k['grid']},1,1) block=({k['block']},1,1) lds={k['lds']}")
    out.append('.amdgcn_target "amdgcn-amd-amdhsa--gfx950"')
    out.append('.text')
    txt = '\n'.join(out) + '\n'
    for t, _ in kernels: txt += t
    txt += "CODE_END:\n"
    txt += '.section .rodata,"a"\n'
    for _, k in kernels: txt += descriptor(k)
    open(path, 'w').write(txt)

if __name__ == '__main__':
    from gen1 import gen_k1
    from gen23 import gen_k2, gen_k3
    if os.environ.get('K3NEW', '1') == '1':
        from gen3 import gen_k3
    if os.environ.get('FUSED', '0') == '1':
        from genf import gen_fused
        ks = [gen_fused("fused_kernel")]
    else:
        ks = [gen_k1(), gen_k2(), gen_k3()]
    for i in range(int(os.environ.get('EMPTY', '0'))):
        ks.append((f".globl e{i}_kernel\n.p2align 8\n.type e{i}_kernel,@function\ne{i}_kernel:\n    s_endpgm\n", dict(name=f"e{i}_kernel", vgpr=8, sgpr=16, grid=256, block=256, lds=0)))
    out = sys.argv[1] if len(sys.argv) > 1 else f"cdna_kernels/{NAME}.s"
    build(ks, out)
    print("wrote", out)
```

```python
import math, struct, sys
from asmlib import *

NAME = "gated_mix__sliding_block__linear_attn_block__prompt"
WS_QA=0x000000; WS_KA=0x300000; WS_VA=0x600000; WS_QB=0x900000; WS_KVP=0xC00000
WS_OF=0xE00000; WS_WF=0x1300000; WS_G=0x1500000; WS_SIZE=0x1600000

def f32(x): return "0x%08x" % struct.unpack('<I', struct.pack('<f', x))[0]
LOG2E = math.log2(math.e)
QSCALE = (20 ** -0.5) * LOG2E
EPS = 1e-6
NEG = -1e30

def srd(p, d, base, nbytes):
    p(f"s_mov_b32 {s(d)}, {s(base)}")
    p(f"s_and_b32 {s(d+1)}, {s(base+1)}, 0xffff")
    p(f"s_mov_b32 {s(d+2)}, {nbytes}")
    p(f"s_mov_b32 {s(d+3)}, 0x20000")

import os
STAMP = int(os.environ.get('STAMP', '0'))
WS_DBG = 0x1580000
STV = {}
SC = os.environ.get('SC', 'sc1')
def stamp(p, i, sreg=None):
    if not STAMP: return
    p("s_memrealtime s[98:99]")
    p("s_waitcnt lgkmcnt(0)")
    if sreg is None:
        p(f"v_writelane_b32 {v(p.stv)}, s98, {i}")
    else:
        p(f"s_mov_b32 s99, m0")
        p(f"s_add_u32 m0, {s(sreg)}, {i}")
        p("s_nop 1")
        p(f"v_writelane_b32 {v(p.stv)}, s98, m0")
        p(f"s_mov_b32 m0, s99")
def stampc(p, i):
    if not STAMP: return
    p("s_memtime s[98:99]")
    p("s_waitcnt lgkmcnt(0)")
    p(f"v_writelane_b32 {v(p.stv)}, s98, {i}")
def stamp_flush(p, kidx, srdreg, n, wavereg):
    if not STAMP: return
    lab = f"STK{kidx}_{len(p.ins)}"
    p("s_getreg_b32 s98, hwreg(HW_REG_XCC_ID)")
    p(f"v_writelane_b32 {v(p.stv)}, s98, 29")
    p("s_getreg_b32 s98, hwreg(HW_REG_HW_ID)")
    p(f"v_writelane_b32 {v(p.stv)}, s98, 28")
    p(f"s_and_b32 s99, {s(wavereg)}, 3")
    p(f"s_lshr_b32 s98, {s(wavereg)}, 2")
    p(f"s_mul_i32 s98, s98, {int(os.environ.get('STW', '0'))}")
    p("s_cmp_lg_u32 s99, s98")
    p(f"s_cbranch_scc1 {lab}")
    p("s_mov_b32 exec_lo, -1")
    p("s_mov_b32 exec_hi, 0")
    p(f"s_lshr_b32 s99, {s(wavereg)}, 2")
    p("s_mul_i32 s99, s99, 0x18000")
    p("s_lshl_b32 s98, s2, 7")
    p("s_add_u32 s98, s98, s99")
    p(f"s_add_u32 s98, s98, {WS_DBG + kidx*0x8000}")
    p("v_mbcnt_lo_u32_b32 v1, -1, 0")
    p("v_lshlrev_b32 v1, 2, v1")
    p(f"buffer_store_dword {v(p.stv)}, v1, {s(srdreg,4)}, s98 offen")
    p.label(lab)

def header(p, name):
    p.raw(f".globl {name}")
    p.raw(".p2align 8")
    p.raw(f".type {name},@function")
    p.label(name)

def gen_k1():
    p = Prog()
    header(p, "k1_kernel")
    p.stv = 176
    SX, SW, SWS = 12, 16, 20
    sRT, sHG, sBR, sST, sKC, sOX, sOW, sSLI, sSLC, sWV = 24, 25, 26, 27, 28, 29, 30, 31, 32, 33
    sMH, sNG = 41, 42
    sINIT, sSCL, sFLG = 44, 48, 52
    sM0X, sM0W = 56, 57
    p("s_cmp_ge_u32 s2, 256")
    p("s_cbranch_scc1 K1_end")
    stamp(p, 0)
    p("s_load_dwordx4 s[4:7], s[0:1], 0")
    p("s_load_dwordx2 s[8:9], s[0:1], 32")
    p("s_load_dwordx2 s[10:11], s[0:1], 72")
    p("v_lshrrev_b32 v1, 6, v0")
    p("v_and_b32 v2, 63, v0")
    p(f"v_readfirstlane_b32 {s(sWV)}, v1")
    p("s_and_b32 s34, s2, 7")
    p("s_lshr_b32 s35, s2, 3")
    p("s_lshr_b32 s36, s34, 2")
    p("s_and_b32 s37, s34, 3")
    p("s_lshr_b32 s38, s35, 2")
    p("s_and_b32 s39, s35, 3")
    p(f"s_lshl_b32 {s(sRT)}, s36, 3")
    p(f"s_add_u32 {s(sRT)}, {s(sRT)}, s38")
    p(f"s_lshr_b32 {s(sBR)}, s39, 1")
    p(f"s_and_b32 {s(sHG)}, s39, 1")
    p("s_lshl_b32 s40, s37, 1")
    p(f"s_add_u32 {s(sHG)}, {s(sHG)}, s40")
    p("s_mov_b32 s58, s38")
    p("s_mov_b32 s59, s39")
    p(f"s_lshr_b32 {s(sMH)}, {s(sWV)}, 2")
    p(f"s_and_b32 {s(sNG)}, {s(sWV)}, 3")
    vXO, vWO = 4, 6
    p("v_lshrrev_b32 v3, 3, v2")
    p("v_and_b32 v10, 7, v2")
    p("v_xor_b32 v10, v10, v3")
    p("v_lshlrev_b32 v10, 4, v10")
    p("s_movk_i32 s40, 1280")
    p(f"v_mad_u32_u24 {v(vXO)}, v3, s40, v10")
    p(f"s_lshl_b32 s34, {s(sRT)}, 7")
    p(f"s_lshl_b32 s35, {s(sWV)}, 4")
    p("s_add_u32 s34, s34, s35")
    p("s_mul_i32 s34, s34, 1280")
    p(f"v_add_u32 {v(vXO)}, s34, {v(vXO)}")
    p(f"v_add_u32 {v(vXO+1)}, 9216, {v(vXO)}")
    p("v_lshrrev_b32 v3, 5, v2")
    p("v_bfe_u32 v10, v2, 1, 4")
    p("v_and_b32 v11, 1, v2")
    p("v_lshlrev_b32 v11, 4, v11")
    p("s_movk_i32 s35, 3840")
    p("v_mad_u32_u24 v11, v3, s35, v11")
    p(f"s_and_b32 s36, {s(sWV)}, 1")
    p("s_lshl_b32 s36, s36, 2")
    p(f"s_mul_i32 s37, {s(sWV)}, {8*3840}")
    p(f"s_mul_i32 s38, {s(sHG)}, 160")
    p("s_add_u32 s37, s37, s38")
    p("v_mov_b32 v16, 0x40000000")
    for i in range(2):
        p(f"v_or_b32 v12, s36, v3")
        if i: p("v_or_b32 v12, 2, v12")
        p("v_xor_b32 v12, v12, v10")
        p("v_mul_u32_u24 v13, 52, v12")
        p("v_lshrrev_b32 v13, 8, v13")
        p("v_mul_u32_u24 v14, 5, v13")
        p("v_sub_u32 v14, v12, v14")
        p("v_lshl_add_u32 v14, v14, 5, v11")
        p("v_mad_u32_u24 v14, v13, s40, v14")
        p(f"v_add_u32 v14, s37, v14")
        if i: p(f"v_add_u32 v14, {2*3840-1024}, v14")
        p("v_cmp_eq_u32 vcc, 15, v12")
        p(f"v_cndmask_b32 {v(vWO+i)}, v14, v16, vcc")
        p(f"v_add_u32 {v(vWO+2+i)}, 13312, {v(vWO+i)}")
    p("s_waitcnt lgkmcnt(0)")
    srd(p, SX, 4, 2048*1280)
    p(f"s_cmp_eq_u32 {s(sBR)}, 0")
    p("s_cselect_b32 s6, s6, s8")
    p("s_cselect_b32 s7, s7, s9")
    srd(p, SW, 6, 640*3840)
    srd(p, SWS, 10, WS_SIZE)
    p(f"s_lshl_b32 {s(sM0X)}, {s(sWV)}, 11")
    p(f"s_lshl_b32 {s(sM0W)}, {s(sWV)}, 12")
    p(f"s_add_u32 {s(sM0W)}, {s(sM0W)}, 16384")
    p(f"s_mov_b32 {s(sSLI)}, 0")
    ROTG = int(os.environ.get('ROTG', '3'))
    if ROTG == 10:
        p(f"s_mul_i32 {s(sKC)}, s59, 3")
        p(f"s_add_u32 {s(sKC)}, {s(sKC)}, s58")
        p(f"s_sub_u32 s34, {s(sKC)}, 10")
        p(f"s_cmp_ge_u32 {s(sKC)}, 10")
        p(f"s_cselect_b32 {s(sKC)}, s34, {s(sKC)}")
    elif ROTG == 1:
        p(f"s_mov_b32 {s(sKC)}, 0")
    else:
        mg = {3: 86, 4: 64, 5: 52, 2: 128}[ROTG]
        p("s_add_u32 s34, s58, s59")
        p(f"s_mul_i32 s35, s34, {mg}")
        p("s_lshr_b32 s35, s35, 8")
        p(f"s_mul_i32 s35, s35, {ROTG}")
        p("s_sub_u32 s34, s34, s35")
        p("s_mul_i32 s34, s34, 10")
        p(f"s_mul_i32 s34, s34, {mg}")
        p(f"s_lshr_b32 {s(sKC)}, s34, 8")
    p(f"s_lshl_b32 {s(sOX)}, {s(sKC)}, 7")
    p(f"s_mul_i32 {s(sOW)}, {s(sKC)}, 245760")
    def issue_steps():
        g = []
        g.append([f"s_add_u32 m0, {s(sSLI)}, {s(sM0X)}", "s_nop 0",
                  f"buffer_load_dwordx4 {v(vXO)}, {s(SX,4)}, {s(sOX)} offen lds"])
        g.append([f"buffer_load_dwordx4 {v(vXO+1)}, {s(SX,4)}, {s(sOX)} offen offset:1024 lds"])
        g.append([f"s_add_u32 m0, {s(sSLI)}, {s(sM0W)}", f"s_add_u32 {s(sOX)}, {s(sOX)}, 128",
                  f"buffer_load_dwordx4 {v(vWO)}, {s(SW,4)}, {s(sOW)} offen lds"])
        for i in range(1, 4):
            g.append([f"buffer_load_dwordx4 {v(vWO+i)}, {s(SW,4)}, {s(sOW)} offen offset:{i*1024} lds"])
        g[-1] += [f"s_add_u32 {s(sOW)}, {s(sOW)}, 245760", f"s_add_u32 {s(sKC)}, {s(sKC)}, 1", f"s_cmp_eq_u32 {s(sKC)}, 10",
                  f"s_cselect_b32 {s(sOX)}, 0, {s(sOX)}", f"s_cselect_b32 {s(sOW)}, 0, {s(sOW)}",
                  f"s_add_u32 {s(sSLI)}, {s(sSLI)}, 49152",
                  f"s_cmp_eq_u32 {s(sSLI)}, 147456", f"s_cselect_b32 {s(sSLI)}, 0, {s(sSLI)}"]
        return g
    def issue():
        for g in issue_steps():
            for t in g: p(t)
    stamp(p, 1)
    PRO = os.environ.get('PRO', '1')
    issue()
    p("s_getpc_b64 s[60:61]")
    p.label("K1_pc")
    p(f"s_lshl_b32 s34, {s(sWV)}, 13")
    p("v_lshlrev_b32 v26, 7, v2")
    p("v_add_u32 v26, s34, v26")
    p("v_min_u32 v26, CODE_END-K1_pc-4, v26")
    p("global_load_dword v29, v26, s[60:61]")
    if PRO == '0':
        issue(); issue()
    stamp(p, 2)
    vXS, vWS, vXA, vWA = 10, 12, 16, 18
    vG, vM = 22, 23
    p(f"v_lshrrev_b32 {v(vG)}, 4, v2")
    p(f"v_and_b32 {v(vM)}, 15, v2")
    p("v_and_b32 v3, 7, v2")
    p(f"v_xor_b32 v3, v3, {v(vG)}")
    p("v_lshlrev_b32 v3, 4, v3")
    p(f"v_lshl_add_u32 v3, {v(vM)}, 7, v3")
    p(f"s_lshl_b32 s34, {s(sMH)}, 13")
    p(f"v_add_u32 {v(vXS)}, s34, v3")
    p(f"v_xor_b32 {v(vXS+1)}, 64, {v(vXS)}")
    p("v_bfe_u32 v3, v2, 2, 2")
    p(f"v_and_b32 v24, 1, {v(vG)}")
    p("v_lshl_or_b32 v24, v24, 2, v3")
    p(f"v_lshl_add_u32 v25, {v(vG)}, 3, v3")
    p("v_lshlrev_b32 v25, 9, v25")
    p("v_and_b32 v26, 3, v2")
    p("v_lshl_add_u32 v25, v26, 3, v25")
    p("v_add_u32 v25, 16384, v25")
    for jj in range(4):
        p(f"s_add_u32 s35, {s(sNG)}, {4*jj}")
        p(f"v_xor_b32 v26, s35, v24")
        p(f"v_lshl_add_u32 {v(vWS+jj)}, v26, 5, v25")
        p("s_sub_u32 s36, s35, 5")
        p("s_cmp_lt_u32 s36, 5")
        p(f"s_cselect_b32 {s(sFLG+jj)}, {s(sBR)}, 0")
        p(f"s_mul_i32 {s(sINIT+jj)}, {s(sFLG+jj)}, {f32(EPS)}")
        p("s_cmp_lt_u32 s35, 5")
        p("s_cselect_b32 s36, 1, 0")
        p(f"s_andn2_b32 s36, s36, {s(sBR)}")
        p("s_cmp_eq_u32 s36, 1")
        p(f"s_cselect_b32 {s(sSCL+jj)}, {f32(QSCALE)}, 1.0")
    ACC = 32
    FX = [96, 128]
    FW = [112, 144]
    for jj in range(4):
        for k in range(16):
            p(f"v_mov_b32 {v(ACC+jj*16+k)}, {s(sINIT+jj)}")
    p(f"s_mov_b32 {s(sST)}, 0")
    p(f"s_mov_b32 {s(sSLC)}, 0")
    X_NOLDS = os.environ.get('K1_NOLDS'); X_NOMFMA = os.environ.get('K1_NOMFMA')
    def rdx(ks, i):
        if not X_NOLDS or X_NOLDS == 'w': p(f"ds_read_b128 {v(FX[ks]+4*i,4)}, {v(vXA+ks)} offset:{i*2048}")
    def rdw(ks, jj, h):
        if not X_NOLDS or X_NOLDS == 'x': p(f"ds_read_b64_tr_b16 {v(FW[ks]+4*jj+2*h,2)}, {v(vWA+jj)} offset:{ks*16384+h*2048}")
    def mm(ks, jj, i):
        A = ACC + (jj*4+i)*4
        p(f"v_mfma_f32_16x16x32_bf16 {v(A,4)}, {v(FW[ks]+4*jj,4)}, {v(FX[ks]+4*i,4)}, {v(A,4)}")
    def readlist(ks):
        L = [lambda: rdw(ks,0,0), lambda: rdw(ks,0,1)]
        for i in range(4): L.append(lambda i=i: rdx(ks,i))
        for jj in range(1,4):
            L.append(lambda jj=jj: rdw(ks,jj,0)); L.append(lambda jj=jj: rdw(ks,jj,1))
        return L
    def reads(ks):
        for f in readlist(ks): f()
    def setaddr():
        for k in range(2): p(f"v_add_u32 {v(vXA+k)}, {s(sSLC)}, {v(vXS+k)}")
        for k in range(4): p(f"v_add_u32 {v(vWA+k)}, {s(sSLC)}, {v(vWS+k)}")
    setaddr()
    if PRO == '0':
        p("s_waitcnt vmcnt(13)")
        p("s_barrier")
    elif PRO == '1':
        issue()
        p("s_waitcnt vmcnt(7)")
        p("s_barrier")
        issue()
    elif PRO == '2':
        issue(); issue()
        p("s_waitcnt vmcnt(13)")
        p("s_barrier")
    stamp(p, 3)
    stampc(p, 30)
    p.forget()
    reads(0)
    p.label("K1_loop")
    if STAMP > 1: stamp(p, 8, sST)
    L = readlist(1)
    for jj in range(4):
        for i in range(4):
            mm(0,jj,i)
            if L: L.pop(0)()
    p(f"s_add_u32 {s(sSLC)}, {s(sSLC)}, 49152")
    p(f"s_cmp_eq_u32 {s(sSLC)}, 147456")
    p(f"s_cselect_b32 {s(sSLC)}, 0, {s(sSLC)}")
    p(f"s_cmp_gt_u32 {s(sST)}, 6")
    p(f"s_cselect_b32 {s(sOX)}, 0x40000000, {s(sOX)}")
    p(f"s_cselect_b32 {s(sOW)}, 0x40000000, {s(sOW)}")
    p("s_waitcnt lgkmcnt(0)")
    setaddr()
    p("s_waitcnt vmcnt(6)")
    p("s_barrier")
    L = readlist(0)
    steps = issue_steps()
    if os.environ.get('K1_NODMA'): steps = []
    n = 0
    for jj in range(4):
        for i in range(4):
            mm(1,jj,i)
            if L: L.pop(0)()
            n += 1
            if n % 2 == 0 and n >= 4 and steps:
                for t in steps.pop(0): p(t)
    assert not steps
    p(f"s_add_u32 {s(sST)}, {s(sST)}, 1")
    p(f"s_cmp_lt_u32 {s(sST)}, 10")
    p("s_cbranch_scc1 K1_loop")
    p("s_waitcnt vmcnt(0) lgkmcnt(0)")
    p("s_barrier")
    stamp(p, 4)
    stampc(p, 31)
    vIM = 4
    p(f"s_lshl_b32 s34, {s(sMH)}, 6")
    p(f"v_add_u32 v3, s34, {v(vM)}")
    p("v_mul_u32_u24 v3, 48, v3")
    p(f"s_lshl_b32 s34, {s(sNG)}, 2")
    p("s_movk_i32 s36, 6144")
    for jj in range(4):
        p(f"s_add_u32 s35, s34, {16*jj}")
        p(f"v_add_u32 v8, s35, {v(vG)}")
        p("v_mul_u32_u24 v9, 52, v8")
        p("v_lshrrev_b32 v9, 8, v9")
        p("v_mul_u32_u24 v10, 5, v9")
        p("v_sub_u32 v10, v8, v10")
        p("v_lshl_add_u32 v10, v10, 3, v3")
        p(f"v_mad_u32_u24 {v(vIM+jj)}, v9, s36, v10")
    p("v_lshrrev_b32 v8, 7, v0")
    p("v_and_b32 v9, 127, v0")
    p("v_mul_u32_u24 v9, 48, v9")
    p("v_mad_u32_u24 v8, v8, s36, v9")
    p("v_mov_b32 v10, 0x3f80")
    p("v_mov_b32 v11, 0")
    p("v_mov_b32 v12, 0")
    p("v_mov_b32 v13, 0")
    p("ds_write_b64 v8, v[10:11] offset:40")
    p(f"ds_write_b64 v8, v[12:13] offset:{40+24576}")
    p(f"ds_write_b64 v8, v[10:11] offset:{40+49152}")
    p(f"s_mov_b32 s62, {f32(LOG2E)}")
    p(f"s_mov_b32 s63, {f32(LOG2E)}")
    p(f"s_mov_b32 s38, {f32(EPS)}")
    p(f"s_mov_b32 s64, {f32(QSCALE)}")
    p(f"s_mov_b32 s65, {f32(QSCALE)}")
    T = 96
    for jj in (3, 0, 1, 2):
        A = ACC + jj*16
        if jj in (1, 2):
            p(f"s_cmp_eq_u32 {s(sFLG+jj)}, 0")
            p(f"s_cbranch_scc1 K1_nophi{jj}")
            for k in range(8): p(f"v_pk_mul_f32 {v(T+2*k,2)}, {v(A+2*k,2)}, s[62:63]")
            for k in range(16): p(f"v_exp_f32 {v(T+k)}, {v(T+k)} clamp")
            for k in range(16): p(f"v_max_f32 {v(A+k)}, s38, {v(A+k)}")
            for k in range(8): p(f"v_pk_add_f32 {v(A+2*k,2)}, {v(A+2*k,2)}, {v(T+2*k,2)}")
            p.label(f"K1_nophi{jj}")
        if jj in (0, 1):
            p(f"s_cmp_eq_u32 {s(sSCL+jj)}, 1.0")
            p(f"s_cbranch_scc1 K1_noscl{jj}")
            for k in range(8): p(f"v_pk_mul_f32 {v(A+2*k,2)}, {v(A+2*k,2)}, s[64:65]")
            p.label(f"K1_noscl{jj}")
        P = 112 + jj*8
        for k in range(8): p(f"v_cvt_pk_bf16_f32 {v(P+k)}, {v(A+2*k)}, {v(A+2*k+1)}")
        for i in range(4): p(f"ds_write_b64 {v(vIM+jj)}, {v(P+2*i,2)} offset:{i*768}")
    p("s_waitcnt lgkmcnt(0)")
    p("s_barrier")
    stamp(p, 5)
    p(f"s_mul_i32 s34, {s(sWV)}, 768")
    p("v_lshlrev_b32 v3, 4, v2")
    p("v_add_u32 v3, s34, v3")
    p(f"v_add_u32 v4, {6*6144}, v3")
    p(f"s_mul_i32 s34, {s(sHG)}, {4*98304}")
    p(f"s_mul_i32 s35, {s(sRT)}, 6144")
    p("s_add_u32 s34, s34, s35")
    p(f"s_mul_i32 s35, {s(sBR)}, {3*0x300000}")
    p("s_add_u32 s34, s34, s35")
    p("s_mov_b32 exec_hi, 0xffff")
    D = 32
    def rdblk(b):
        if b < 6: p(f"ds_read_b128 {v(D+4*b,4)}, v3 offset:{b*6144}")
        else: p(f"ds_read_b128 {v(D+4*b,4)}, v4 offset:{(b-6)*6144}")
    def stblk(b):
        off = (b//4)*0x300000 + (b%4)*98304
        p(f"s_add_u32 s35, s34, {off}")
        p(f"buffer_store_dwordx4 {v(D+4*b,4)}, v3, {s(SWS,4)}, s35 offen {SC}")
    for b in range(4): rdblk(b)
    p(f"s_cmp_eq_u32 {s(sBR)}, 0")
    p("s_cbranch_scc0 K1_bpath")
    p.begin_cond()
    for b in range(4,12): rdblk(b)
    for b in range(12): stblk(b)
    stamp(p, 6)
    if STAMP: p("s_waitcnt vmcnt(0)")
    stamp(p, 7)
    stamp_flush(p, 0, SWS, 8, sWV)
    p("s_endpgm")
    p.end_cond()
    p.label("K1_bpath")
    p("s_waitcnt lgkmcnt(0)")
    for b in range(4): stblk(b)
    p("s_mov_b32 exec_hi, -1")
    p(f"s_cmp_gt_u32 {s(sWV)}, 3")
    p("s_cbranch_scc1 K1_end")
    p("v_lshrrev_b32 v5, 5, v2")
    p("v_bfe_u32 v6, v2, 2, 2")
    p("v_lshl_add_u32 v5, v5, 3, v6")
    p("v_mul_u32_u24 v5, 48, v5")
    p("v_bfe_u32 v6, v2, 4, 1")
    p("v_lshl_add_u32 v5, v6, 5, v5")
    p("v_and_b32 v6, 3, v2")
    p("v_lshl_add_u32 v5, v6, 3, v5")
    p(f"s_add_u32 s35, {s(sWV)}, 4")
    p("s_mul_i32 s35, s35, 6144")
    p("v_add_u32 v5, s35, v5")
    KV = 96
    F = 112
    for t in range(8):
        for h in range(2): p(f"ds_read_b64_tr_b16 {v(F+8*t+2*h,2)}, v5 offset:{t*768+h*192}")
        for h in range(2): p(f"ds_read_b64_tr_b16 {v(F+8*t+4+2*h,2)}, v5 offset:{24576+t*768+h*192}")
        if t >= 2:
            tt = t-2
            p(f"v_mfma_f32_32x32x16_bf16 {v(KV,16)}, {v(F+8*tt,4)}, {v(F+8*tt+4,4)}, {'0' if tt==0 else v(KV,16)}")
    for tt in (6,7):
        p(f"v_mfma_f32_32x32x16_bf16 {v(KV,16)}, {v(F+8*tt,4)}, {v(F+8*tt+4,4)}, {v(KV,16)}")
    p(f"s_lshl_b32 s34, {s(sHG)}, 2")
    p(f"s_add_u32 s34, s34, {s(sWV)}")
    p("s_lshl_b32 s34, s34, 4")
    p(f"s_add_u32 s34, s34, {s(sRT)}")
    p("s_mul_i32 s34, s34, 3072")
    p(f"s_add_u32 s34, s34, {WS_KVP}")
    p("v_lshlrev_b32 v3, 4, v2")
    for q in range(3):
        p(f"buffer_store_dwordx4 {v(KV+4*q,4)}, v3, {s(SWS,4)}, s34 offen offset:{q*1024} {SC}")
    stamp(p, 6)
    if STAMP: p("s_waitcnt vmcnt(0)")
    stamp(p, 7)
    stamp_flush(p, 0, SWS, 8, sWV)
    p.label("K1_end")
    p("s_endpgm")
    p.pad()
    return p.text(), dict(name="k1_kernel", vgpr=177, sgpr=100, grid=256, block=512, lds=147456)

def descriptor(k):
    acc = (k.get('arch', k['vgpr']) + 3)//4*4
    return f""".p2align 6
.amdhsa_kernel {k['name']}
  .amdhsa_next_free_vgpr {k['vgpr']}
  .amdhsa_next_free_sgpr {k['sgpr']}
  .amdhsa_accum_offset {acc}
  .amdhsa_group_segment_fixed_size 0
  .amdhsa_kernarg_size 80
  .amdhsa_user_sgpr_count 2
  .amdhsa_user_sgpr_kernarg_segment_ptr 1
  .amdhsa_system_sgpr_workgroup_id_x 1
.end_amdhsa_kernel
"""

def build(kernels, path):
    ref = open(f"cdna_kernels/{NAME}.s.ref").read().splitlines()
    head = [l for l in ref if l.startswith(';') and '@launch' not in l and 'Override' not in l and 'grid=ceil' not in l]
    out = head[:]
    if len(kernels) == 1 and kernels[0][1]['name'] == NAME + "_kernel":
        k = kernels[0][1]
        out.append(f"; @launch grid=({k['grid']},1,1) block=({k['block']},1,1) lds={k['lds']}")
        kl = []
    else: kl = kernels
    for _, k in kl:
        out.append(f"; @launch kernel={k['name']} grid=({k['grid']},1,1) block=({k['block']},1,1) lds={k['lds']}")
    out.append('.amdgcn_target "amdgcn-amd-amdhsa--gfx950"')
    out.append('.text')
    txt = '\n'.join(out) + '\n'
    for t, _ in kernels: txt += t
    txt += "CODE_END:\n"
    txt += '.section .rodata,"a"\n'
    for _, k in kernels: txt += descriptor(k)
    open(path, 'w').write(txt)

if __name__ == '__main__':
    from gen1 import gen_k1
    from gen23 import gen_k2, gen_k3
    if os.environ.get('K3NEW', '1') == '1':
        from gen3 import gen_k3
    if os.environ.get('FUSED', '0') == '1':
        from genf import gen_fused
        ks = [gen_fused(NAME + "_kernel" if os.environ.get('SINGLE') else "fused_kernel")]
    else:
        ks = [gen_k1(), gen_k2(), gen_k3()]
    for i in range(int(os.environ.get('EMPTY', '0'))):
        ks.append((f".globl e{i}_kernel\n.p2align 8\n.type e{i}_kernel,@function\ne{i}_kernel:\n    s_endpgm\n", dict(name=f"e{i}_kernel", vgpr=8, sgpr=16, grid=256, block=256, lds=0)))
    out = sys.argv[1] if len(sys.argv) > 1 else f"cdna_kernels/{NAME}.s"
    build(ks, out)
    print("wrote", out)
```

```python
from asmlib import *
from gen import *
import os

KVP_STRIDE = 2304

def gen_k1():
    p = Prog()
    header(p, "k1_kernel")
    p.stv = 206
    emit_p1(p, False)
    p.pad()
    return p.text(), dict(name="k1_kernel", vgpr=207, sgpr=100, grid=256, block=512, lds=147456)

def emit_p1(p, fused):
    SX, SW, SWS, SWO, SGW = 12, 16, 20, 68, 72
    sRT, sHG, sBR, sKC, sOX, sOW, sWV = 24, 25, 26, 28, 29, 30, 33
    sMH, sNG = 41, 42
    sINIT, sSCL, sFLG = 44, 48, 52
    sM0X, sM0W = 56, 57
    IMG = 49152
    p("s_cmp_ge_u32 s2, 256")
    p("s_cbranch_scc1 K1_end")
    stamp(p, 0)
    p("s_load_dwordx4 s[4:7], s[0:1], 0")
    p("s_load_dwordx2 s[8:9], s[0:1], 32")
    p("s_load_dwordx2 s[10:11], s[0:1], 72")
    p("s_load_dwordx2 s[76:77], s[0:1], 16")
    p("s_load_dwordx4 s[80:83], s[0:1], 40")
    if fused: p("s_load_dwordx2 s[96:97], s[0:1], 64")
    p("v_lshrrev_b32 v1, 6, v0")
    p("v_and_b32 v2, 63, v0")
    p(f"v_readfirstlane_b32 {s(sWV)}, v1")
    p("s_and_b32 s34, s2, 7")
    p("s_lshr_b32 s35, s2, 3")
    p("s_lshr_b32 s36, s34, 2")
    p("s_and_b32 s37, s34, 3")
    p("s_lshr_b32 s58, s35, 2")
    p("s_and_b32 s59, s35, 3")
    p(f"s_lshl_b32 {s(sRT)}, s36, 3")
    p(f"s_add_u32 {s(sRT)}, {s(sRT)}, s58")
    p(f"s_lshr_b32 {s(sBR)}, s59, 1")
    p(f"s_and_b32 {s(sHG)}, s59, 1")
    p("s_lshl_b32 s40, s37, 1")
    p(f"s_add_u32 {s(sHG)}, {s(sHG)}, s40")
    p("s_lshl_b32 s43, s37, 2")
    p("s_add_u32 s43, s43, s59")
    vXO, vWO = 4, 6
    p("v_lshrrev_b32 v3, 3, v2")
    p("v_and_b32 v10, 7, v2")
    p("v_xor_b32 v10, v10, v3")
    p("v_lshlrev_b32 v10, 4, v10")
    p("s_movk_i32 s40, 1280")
    p(f"v_mad_u32_u24 {v(vXO)}, v3, s40, v10")
    p(f"s_lshl_b32 s34, {s(sRT)}, 7")
    p(f"s_lshl_b32 s35, {s(sWV)}, 4")
    p("s_add_u32 s34, s34, s35")
    p("s_mul_i32 s34, s34, 1280")
    p(f"v_add_u32 {v(vXO)}, s34, {v(vXO)}")
    p(f"v_add_u32 {v(vXO+1)}, 9216, {v(vXO)}")
    p("v_lshrrev_b32 v3, 5, v2")
    p("v_bfe_u32 v10, v2, 1, 4")
    p("v_and_b32 v11, 1, v2")
    p("v_lshlrev_b32 v11, 4, v11")
    p("s_movk_i32 s35, 3840")
    p("v_mad_u32_u24 v11, v3, s35, v11")
    p(f"s_and_b32 s36, {s(sWV)}, 1")
    p("s_lshl_b32 s36, s36, 2")
    p(f"s_mul_i32 s37, {s(sWV)}, {8*3840}")
    p(f"s_mul_i32 s38, {s(sHG)}, 160")
    p("s_add_u32 s37, s37, s38")
    p("v_mov_b32 v16, 0x40000000")
    for i in range(2):
        p(f"v_or_b32 v12, s36, v3")
        if i: p("v_or_b32 v12, 2, v12")
        p("v_xor_b32 v12, v12, v10")
        p("v_mul_u32_u24 v13, 52, v12")
        p("v_lshrrev_b32 v13, 8, v13")
        p("v_mul_u32_u24 v14, 5, v13")
        p("v_sub_u32 v14, v12, v14")
        p("v_lshl_add_u32 v14, v14, 5, v11")
        p("v_mad_u32_u24 v14, v13, s40, v14")
        p(f"v_add_u32 v14, s37, v14")
        if i: p(f"v_add_u32 v14, {2*3840-1024}, v14")
        p("v_cmp_eq_u32 vcc, 15, v12")
        p(f"v_cndmask_b32 {v(vWO+i)}, v14, v16, vcc")
        p(f"v_add_u32 {v(vWO+2+i)}, 13312, {v(vWO+i)}")
    p(f"s_lshl_b32 {s(sM0X)}, {s(sWV)}, 11")
    p(f"s_lshl_b32 {s(sM0W)}, {s(sWV)}, 12")
    p(f"s_add_u32 {s(sM0W)}, {s(sM0W)}, 16384")
    ROTG = int(os.environ.get('ROTG', '4'))
    if ROTG == 10:
        p(f"s_mul_i32 {s(sKC)}, s59, 3")
        p(f"s_add_u32 {s(sKC)}, {s(sKC)}, s58")
        p(f"s_sub_u32 s34, {s(sKC)}, 10")
        p(f"s_cmp_ge_u32 {s(sKC)}, 10")
        p(f"s_cselect_b32 {s(sKC)}, s34, {s(sKC)}")
    else:
        mg = {3: 86, 4: 64, 5: 52, 2: 128}[ROTG]
        p("s_add_u32 s34, s58, s59")
        p(f"s_mul_i32 s35, s34, {mg}")
        p("s_lshr_b32 s35, s35, 8")
        p(f"s_mul_i32 s35, s35, {ROTG}")
        p("s_sub_u32 s34, s34, s35")
        p("s_mul_i32 s34, s34, 10")
        p(f"s_mul_i32 s34, s34, {mg}")
        p(f"s_lshr_b32 {s(sKC)}, s34, 8")
    p(f"s_lshl_b32 {s(sOX)}, {s(sKC)}, 7")
    p(f"s_mul_i32 {s(sOW)}, {s(sKC)}, 245760")
    p(f"s_mov_b32 m0, {s(sM0X)}")
    p("s_waitcnt lgkmcnt(0)")
    srd(p, SX, 4, 2048*1280)
    p(f"s_cmp_eq_u32 {s(sBR)}, 0")
    p("s_cselect_b32 s6, s6, s8")
    p("s_cselect_b32 s7, s7, s9")
    srd(p, SW, 6, 640*3840)
    tags = {}
    def issue_steps(st):
        slot = (st % 3) * 49152
        g = []
        first = [] if st == 0 else [f"s_add_u32 m0, {s(sM0X)}, {slot}", "s_nop 0"]
        g.append(first + [f"buffer_load_dwordx4 {v(vXO)}, {s(SX,4)}, {s(sOX)} offen lds"])
        g.append([f"buffer_load_dwordx4 {v(vXO+1)}, {s(SX,4)}, {s(sOX)} offen offset:1024 lds"])
        g.append([f"s_add_u32 m0, {s(sM0W)}, {slot}", f"s_add_u32 {s(sOX)}, {s(sOX)}, 128",
                  f"buffer_load_dwordx4 {v(vWO)}, {s(SW,4)}, {s(sOW)} offen lds"])
        for i in range(1, 4):
            g.append([f"buffer_load_dwordx4 {v(vWO+i)}, {s(SW,4)}, {s(sOW)} offen offset:{i*1024} lds"])
        g[-1] += [('tag', st)]
        if st < 9:
            g[-1] += [f"s_add_u32 {s(sOW)}, {s(sOW)}, 245760", f"s_add_u32 {s(sKC)}, {s(sKC)}, 1", f"s_cmp_eq_u32 {s(sKC)}, 10",
                      f"s_cselect_b32 {s(sOX)}, 0, {s(sOX)}", f"s_cselect_b32 {s(sOW)}, 0, {s(sOW)}"]
        return g
    def emit(t):
        if isinstance(t, tuple): tags[t[1]] = p.vmtag()
        elif isinstance(t, list):
            for x in t: emit(x)
        else: p(t)
    def issue(st):
        for g in issue_steps(st): emit(g)
    stamp(p, 1)
    issue(0)
    srd(p, SWS, 10, WS_SIZE)
    p("s_getpc_b64 s[60:61]")
    p.label("K1_pc")
    p(f"s_lshl_b32 s34, {s(sWV)}, 13")
    p("v_lshlrev_b32 v26, 7, v2")
    p("v_add_u32 v26, s34, v26")
    p("v_min_u32 v26, CODE_END-K1_pc-4, v26")
    p("global_load_dword v31, v26, s[60:61]")
    if fused:
        p(f"s_or_b32 s34, s2, {s(sWV)}")
        p("s_cmp_lg_u32 s34, 0")
        p("s_cbranch_scc1 P1_notag")
        p("s_memrealtime s[94:95]")
        p("v_mov_b32 v30, 0")
        p("s_waitcnt lgkmcnt(0)")
        p("s_or_b32 s94, s94, 1")
        p("v_mov_b32 v1, s94")
        p("s_mov_b32 exec_lo, 1")
        p("s_mov_b32 exec_hi, 0")
        p.raw("    global_store_dword v30, v1, s[96:97] sc1")
        p("s_mov_b32 exec_lo, -1")
        p("s_mov_b32 exec_hi, -1")
        p.label("P1_notag")
    stamp(p, 2)
    p(f"s_lshr_b32 {s(sMH)}, {s(sWV)}, 2")
    p(f"s_and_b32 {s(sNG)}, {s(sWV)}, 3")
    vXA = [10, 12, 14]; vWA = [16, 20, 24]
    vG, vM = 28, 29
    p(f"v_lshrrev_b32 {v(vG)}, 4, v2")
    p(f"v_and_b32 {v(vM)}, 15, v2")
    p("v_and_b32 v3, 7, v2")
    p(f"v_xor_b32 v3, v3, {v(vG)}")
    p("v_lshlrev_b32 v3, 4, v3")
    p(f"v_lshl_add_u32 v3, {v(vM)}, 7, v3")
    p(f"s_lshl_b32 s34, {s(sMH)}, 13")
    p(f"v_add_u32 {v(vXA[0])}, s34, v3")
    p(f"v_xor_b32 {v(vXA[0]+1)}, 64, {v(vXA[0])}")
    p("v_bfe_u32 v3, v2, 2, 2")
    p(f"v_and_b32 v1, 1, {v(vG)}")
    p("v_lshl_or_b32 v1, v1, 2, v3")
    p(f"v_lshl_add_u32 v30, {v(vG)}, 3, v3")
    p("v_lshlrev_b32 v30, 9, v30")
    p("v_and_b32 v3, 3, v2")
    p("v_lshl_add_u32 v30, v3, 3, v30")
    p("v_add_u32 v30, 16384, v30")
    for jj in range(4):
        p(f"s_add_u32 s35, {s(sNG)}, {4*jj}")
        p(f"v_xor_b32 v3, s35, v1")
        p(f"v_lshl_add_u32 {v(vWA[0]+jj)}, v3, 5, v30")
        p("s_sub_u32 s36, s35, 5")
        p("s_cmp_lt_u32 s36, 5")
        p(f"s_cselect_b32 {s(sFLG+jj)}, {s(sBR)}, 0")
        p(f"s_mul_i32 {s(sINIT+jj)}, {s(sFLG+jj)}, {f32(EPS)}")
        p("s_cmp_lt_u32 s35, 5")
        p("s_cselect_b32 s36, 1, 0")
        p(f"s_andn2_b32 {s(sSCL+jj)}, s36, {s(sBR)}")
    for sl in (1, 2):
        for k in range(2): p(f"v_add_u32 {v(vXA[sl]+k)}, {sl*49152}, {v(vXA[0]+k)}")
        for k in range(4): p(f"v_add_u32 {v(vWA[sl]+k)}, {sl*49152}, {v(vWA[0]+k)}")
    ACC = 32
    FX = [96, 128]; FW = [112, 144]
    for jj in range(4):
        for k in range(16):
            p(f"v_mov_b32 {v(ACC+jj*16+k)}, {s(sINIT+jj) if jj in (1,2) else 0}")
    issue(1)
    def rdx(st, ks, i): return f"ds_read_b128 {v(FX[ks]+4*i,4)}, {v(vXA[st%3]+ks)} offset:{i*2048}"
    def rdw(st, ks, jj, h): return f"ds_read_b64_tr_b16 {v(FW[ks]+4*jj+2*h,2)}, {v(vWA[st%3]+jj)} offset:{ks*16384+h*2048}"
    def mm(ks, jj, i):
        A = ACC + (jj*4+i)*4
        p(f"v_mfma_f32_16x16x32_bf16 {v(A,4)}, {v(FW[ks]+4*jj,4)}, {v(FX[ks]+4*i,4)}, {v(A,4)}")
    def readlist(st, ks, order=(0,1,2,3)):
        L = [rdw(st,ks,order[0],0), rdw(st,ks,order[0],1)]
        for i in range(4): L.append(rdx(st,ks,i))
        for jj in order[1:]:
            L.append(rdw(st,ks,jj,0)); L.append(rdw(st,ks,jj,1))
        return L
    GX, GWt, A0, WOR, WOH, vW0, vW1, vT0, vT1, vL16 = 160, 166, 172, 192, 196, 200, 201, 202, 203, 204
    sGR, sJOB, sWFo = 84, 85, 86
    F = {k: [] for k in range(20)}
    f = F[1]
    f += [f"v_lshlrev_b32 {v(vL16)}, 4, v2",
          f"s_lshl_b32 {s(sJOB)}, s2, 3", f"s_add_u32 {s(sJOB)}, {s(sJOB)}, {s(sWV)}",
          [f"s_cmp_ge_u32 {s(sJOB)}, 800", "s_cselect_b32 s76, s80, s76", "s_cselect_b32 s77, s81, s77",
           "s_cselect_b32 s87, 800, 0", "s_cselect_b32 s88, 20, 0"],
          f"s_mov_b32 {s(SWO)}, s76", f"s_and_b32 {s(SWO+1)}, s77, 0xffff", f"s_mov_b32 {s(SWO+2)}, {640*1280}", f"s_mov_b32 {s(SWO+3)}, 0x20000",
          f"s_mov_b32 {s(SGW)}, s82", f"s_and_b32 {s(SGW+1)}, s83, 0xffff", f"s_mov_b32 {s(SGW+2)}, 1280", f"s_mov_b32 {s(SGW+3)}, 0x20000",
          f"s_sub_u32 s87, {s(sJOB)}, s87", "s_mul_i32 s89, s87, 1639", "s_lshr_b32 s89, s89, 16",
          "s_mul_i32 s90, s89, 40", "s_sub_u32 s90, s87, s90", "s_lshl_b32 s91, s89, 2"]
    f = F[2]
    f += [f"v_add_u32 {v(vT0)}, s91, {v(vG)}",
          f"v_mul_u32_u24 {v(vT1)}, 205, {v(vT0)}", f"v_lshrrev_b32 {v(vT1)}, 10, {v(vT1)}",
          f"v_mul_u32_u24 {v(vW0)}, 5, {v(vT1)}", f"v_sub_u32 {v(vW0)}, {v(vT0)}, {v(vW0)}",
          f"v_lshrrev_b32 {v(vW1)}, 1, {v(vW0)}", f"v_mul_u32_u24 {v(vW1)}, 20, {v(vW1)}",
          f"v_and_b32 {v(vT0)}, 1, {v(vW0)}", f"v_lshl_add_u32 {v(vW1)}, {v(vT0)}, 2, {v(vW1)}",
          f"v_cmp_gt_u32 vcc, 4, {v(vW0)}", f"v_mov_b32 {v(vT0)}, 20", f"v_mul_u32_u24 {v(vT1)}, 40, {v(vT1)}",
          f"v_cndmask_b32 {v(vW1)}, 16, {v(vW1)}, vcc", f"v_cndmask_b32_e64 {v(vT0)}, {v(vT0)}, 8, vcc",
          f"v_add_u32 {v(vW1)}, {v(vT1)}, {v(vW1)}",
          f"v_lshlrev_b32 {v(vT1)}, 1, {v(vM)}",
          f"v_mad_u32_u24 {v(vW0)}, {v(vW1)}, s40, {v(vT1)}",
          f"v_mad_u32_u24 {v(vW1)}, {v(vT0)}, s40, {v(vW0)}"]
    f = F[3]
    f += ["s_lshl_b32 s91, s90, 5", "s_mul_i32 s90, s90, 40", "s_add_u32 s90, s90, s88", "s_add_u32 s90, s90, s89",
          "s_lshl_b32 s90, s90, 10", f"s_add_u32 s90, s90, {WS_WF}",
          [f"s_cmp_ge_u32 {s(sJOB)}, 1600", "s_cselect_b32 s91, 0x40000000, s91", f"s_cselect_b32 {s(sWFo)}, 0x40000000, s90"],
          f"s_lshl_b32 {s(sGR)}, {s(sRT)}, 4", f"s_add_u32 {s(sGR)}, {s(sGR)}, s43", f"s_lshl_b32 {s(sGR)}, {s(sGR)}, 3",
          f"s_add_u32 {s(sGR)}, {s(sGR)}, {s(sWV)}", f"s_mul_i32 s92, {s(sGR)}, 1280", f"v_lshlrev_b32 {v(vT0)}, 2, v2"]
    f = F[6]
    for k in range(2):
        for q in range(2):
            f.append(f"buffer_load_ushort {v(WOR+2*k+q)}, {v(vW0+k)}, {s(SWO,4)}, s91 offen offset:{2560*q}")
            f.append(f"buffer_load_ushort {v(WOH+2*k+q)}, {v(vW0+k)}, {s(SWO,4)}, s91 offen offset:{2560*q+1280}")
    f += [f"buffer_load_dwordx4 {v(GX,4)}, {v(vL16)}, {s(SX,4)}, s92 offen",
          f"buffer_load_dword {v(GX+4)}, {v(vT0)}, {s(SX,4)}, s92 offen offset:1024",
          f"buffer_load_dwordx4 {v(GWt,4)}, {v(vL16)}, {s(SGW,4)}, 0 offen",
          f"buffer_load_dword {v(GWt+4)}, {v(vT0)}, {s(SGW,4)}, 0 offen offset:1024"]
    if fused:
        F[8] += ["v_mov_b32 v205, 0", "global_load_dword v205, v205, s[96:97] sc1"]
    f = F[12]
    for k in range(4): f.append(f"v_lshl_or_b32 {v(WOR+k)}, {v(WOH+k)}, 16, {v(WOR+k)}")
    f.append(f"buffer_store_dwordx4 {v(WOR,4)}, {v(vL16)}, {s(SWS,4)}, {s(sWFo)} offen {SC}")
    for k in range(5):
        f += [f"v_lshlrev_b32 {v(A0+4*k)}, 16, {v(GX+k)}", f"v_and_b32 {v(A0+4*k+1)}, 0xffff0000, {v(GX+k)}",
              f"v_lshlrev_b32 {v(A0+4*k+2)}, 16, {v(GWt+k)}", f"v_and_b32 {v(A0+4*k+3)}, 0xffff0000, {v(GWt+k)}"]
    f = F[13]
    for k in range(5):
        f += [f"v_mul_f32 {v(A0+4*k)}, {v(A0+4*k)}, {v(A0+4*k+2)}", f"v_mul_f32 {v(A0+4*k+1)}, {v(A0+4*k+1)}, {v(A0+4*k+3)}"]
    for k in range(5): f.append(f"v_cvt_pk_bf16_f32 {v(A0+4*k+2)}, {v(A0+4*k)}, {v(A0+4*k+1)}")
    f = F[14]
    for k in range(5):
        f += [f"v_lshlrev_b32 {v(A0+4*k)}, 16, {v(A0+4*k+2)}", f"v_and_b32 {v(A0+4*k+1)}, 0xffff0000, {v(A0+4*k+2)}"]
    for k in range(5): f.append(f"v_add_f32 {v(A0+4*k)}, {v(A0+4*k)}, {v(A0+4*k+1)}")
    G = A0
    f += [f"v_add_f32 {v(A0)}, {v(A0)}, {v(A0+4)}", f"v_add_f32 {v(A0+8)}, {v(A0+8)}, {v(A0+12)}",
          f"v_add_f32 {v(A0)}, {v(A0)}, {v(A0+16)}", f"v_add_f32 {v(A0)}, {v(A0)}, {v(A0+8)}"]
    f = F[15]
    for sh in (1, 2, 4, 8): f += [f"v_add_f32_dpp {v(G)}, {v(G)}, {v(G)} row_shr:{sh} row_mask:0xf bank_mask:0xf", None]
    f += [f"v_add_f32_dpp {v(G)}, {v(G)}, {v(G)} row_bcast:15 row_mask:0xa bank_mask:0xf", None,
          f"v_add_f32_dpp {v(G)}, {v(G)}, {v(G)} row_bcast:31 row_mask:0xc bank_mask:0xf",
          f"s_mov_b32 s62, {f32(LOG2E)}", f"s_mov_b32 s63, {f32(LOG2E)}",
          f"v_cvt_pk_bf16_f32 {v(G)}, {v(G)}, {v(G)}", f"v_lshlrev_b32 {v(G)}, 16, {v(G)}",
          f"v_mul_f32 {v(G)}, s62, {v(G)}", f"v_exp_f32 {v(G)}, -{v(G)}", None, f"v_add_f32 {v(G)}, 1.0, {v(G)}",
          f"v_rcp_f32 {v(G)}, {v(G)}", None, f"v_cvt_pk_bf16_f32 {v(G)}, {v(G)}, {v(G)}"]
    f = F[16]
    f += [f"v_lshlrev_b32 {v(G)}, 16, {v(G)}", f"v_sub_f32 {v(G+1)}, 1.0, {v(G)}",
          f"v_cvt_pk_bf16_f32 {v(G+1)}, {v(G+1)}, {v(G+1)}", f"v_lshlrev_b32 {v(G+1)}, 16, {v(G+1)}",
          f"s_lshl_b32 s92, {s(sGR)}, 3", f"s_add_u32 s92, s92, {WS_G}", f"v_mov_b32 {v(vT0)}, 0",
          ["s_mov_b32 exec_lo, 0", "s_mov_b32 exec_hi, 0x80000000",
           f"buffer_store_dwordx2 {v(G,2)}, {v(vT0)}, {s(SWS,4)}, s92 offen {SC}", "s_mov_b32 exec_lo, -1", "s_mov_b32 exec_hi, -1"]]
    vIM = 4
    f += [f"s_lshl_b32 s34, {s(sMH)}, 6", f"v_add_u32 v3, s34, {v(vM)}", "v_mul_u32_u24 v3, 48, v3", f"v_add_u32 v3, {IMG}, v3",
          f"s_lshl_b32 s34, {s(sNG)}, 2", "s_movk_i32 s36, 6144"]
    f = F[17]
    for jj in range(4):
        f += [f"s_add_u32 s35, s34, {16*jj}", f"v_add_u32 v8, s35, {v(vG)}", "v_mul_u32_u24 v9, 52, v8", "v_lshrrev_b32 v9, 8, v9",
              "v_mul_u32_u24 v1, 5, v9", "v_sub_u32 v1, v8, v1", "v_lshl_add_u32 v1, v1, 3, v3", f"v_mad_u32_u24 {v(vIM+jj)}, v9, s36, v1"]
    f = F[18]
    f += ["v_lshrrev_b32 v8, 7, v0", "v_and_b32 v9, 127, v0", "v_mul_u32_u24 v9, 48, v9", "v_mad_u32_u24 v8, v8, s36, v9",
          f"v_mov_b32 {v(vT0)}, 0x3f80", f"v_mov_b32 {v(vT1)}, 0", f"v_mov_b32 {v(vW0)}, 0", f"v_mov_b32 {v(vW1)}, 0",
          f"v_add_u32 v8, {IMG}, v8",
          f"ds_write_b64 v8, {v(vT0,2)} offset:40", f"ds_write_b64 v8, {v(vW0,2)} offset:{40+24576}", f"ds_write_b64 v8, {v(vT0,2)} offset:{40+49152}",
          f"s_mov_b32 s38, {f32(EPS)}", f"s_mov_b32 s64, {f32(QSCALE)}", f"s_mov_b32 s65, {f32(QSCALE)}",
          f"s_mul_i32 s93, {s(sWV)}, 768", f"v_add_u32 v30, s93, {v(vL16)}", f"v_add_u32 v31, {IMG}, v30", f"v_add_u32 v9, {IMG+6*6144}, v30",
          f"s_mul_i32 s93, {s(sHG)}, {4*98304}", f"s_mul_i32 s35, {s(sRT)}, 6144", "s_add_u32 s93, s93, s35",
          f"s_mul_i32 s35, {s(sBR)}, {3*0x300000}", "s_add_u32 s93, s93, s35"]
    def block(ks, L, steps, fill, order=(0,1,2,3), after=None):
        n = 0
        fill = list(fill)
        per = 2
        for jj in order:
            for i in range(4):
                mm(ks, jj, i)
                n += 1
                did = 0
                if L: p(L.pop(0)); did += 1
                if n % 2 == 0 and n >= 4 and steps: emit(steps.pop(0)); did += 1
                k = per - did if (L or steps) else per + 1
                left = 16 - n
                while fill and (k > 0 or len(fill) > left * (per + 1)):
                    t = fill.pop(0)
                    if t is None: break
                    emit(t); k -= 1
            if after: after(jj)
        for t in fill:
            if t is not None: emit(t)
        assert not L and not steps
    T = 160
    def epi(jj):
        A = ACC + jj*16
        if jj in (1, 2):
            p(f"s_cmp_eq_u32 {s(sFLG+jj)}, 0")
            p(f"s_cbranch_scc1 K1_nophi{jj}")
            for k in range(8): p(f"v_pk_mul_f32 {v(T+2*k,2)}, {v(A+2*k,2)}, s[62:63]")
            for k in range(16): p(f"v_exp_f32 {v(T+k)}, {v(T+k)} clamp")
            for k in range(16): p(f"v_max_f32 {v(A+k)}, s38, {v(A+k)}")
            for k in range(8): p(f"v_pk_add_f32 {v(A+2*k,2)}, {v(A+2*k,2)}, {v(T+2*k,2)}")
            p.label(f"K1_nophi{jj}")
        if jj in (0, 1):
            p(f"s_cmp_eq_u32 {s(sSCL+jj)}, 0")
            p(f"s_cbranch_scc1 K1_noscl{jj}")
            for k in range(8): p(f"v_pk_mul_f32 {v(A+2*k,2)}, {v(A+2*k,2)}, s[64:65]")
            p.label(f"K1_noscl{jj}")
        P = 96 + jj*8
        for k in range(8): p(f"v_cvt_pk_bf16_f32 {v(P+k)}, {v(A+2*k)}, {v(A+2*k+1)}")
        for i in range(4): p(f"ds_write_b64 {v(vIM+jj)}, {v(P+2*i,2)} offset:{i*768}")
    if os.environ.get('EARLY', '0') == '1':
        for kf in (1, 2, 3, 6):
            for t in F[kf]:
                if t is not None: emit(t)
            F[kf] = []
        for a_, b_ in ((12, 6), (13, 7), (14, 8), (15, 9), (16, 10)):
            if a_ == 16:
                k_ = [i for i, t in enumerate(F[16]) if isinstance(t, str) and t.startswith(f"s_lshl_b32 s34, {s(sMH)}")][0]
                F[b_] = F[b_] + F[16][:k_]; F[16] = F[16][k_:]
            else:
                F[b_] = F[b_] + F[a_]; F[a_] = []
    p.wait_vm_tag(tags[0])
    p("s_barrier")
    stamp(p, 3)
    stampc(p, 30)
    for t in readlist(0, 0): p(t)
    issue(2)
    LAST = (1, 2, 0, 3)
    for st in range(10):
        block(0, readlist(st, 1, LAST if st == 9 else (0,1,2,3)), [], F[2*st])
        if st < 9:
            p.wait_vm_tag(tags[st+1], " lgkmcnt(0)")
            p("s_barrier")
            if STAMP > 1: stamp(p, 9 + st)
            block(1, readlist(st+1, 0), issue_steps(st+3) if st+3 <= 9 else [], F[2*st+1])
        else:
            def after(jj):
                k = LAST.index(jj)
                if k >= 1: epi(LAST[k-1])
            block(1, [], [], F[19], LAST, after)
            stamp(p, 4)
            stampc(p, 31)
            epi(LAST[3])
    p("s_waitcnt lgkmcnt(0)")
    p("s_barrier")
    stamp(p, 5)
    p("s_mov_b32 exec_hi, 0xffff")
    D = 32
    def rdblk(b):
        if b < 6: p(f"ds_read_b128 {v(D+4*b,4)}, v31 offset:{b*6144}")
        else: p(f"ds_read_b128 {v(D+4*b,4)}, v9 offset:{(b-6)*6144}")
    def stblk(b):
        off = (b//4)*0x300000 + (b%4)*98304
        p(f"s_add_u32 s35, s93, {off}")
        p(f"buffer_store_dwordx4 {v(D+4*b,4)}, v30, {s(SWS,4)}, s35 offen {SC}")
    for b in range(4): rdblk(b)
    p(f"s_cmp_eq_u32 {s(sBR)}, 0")
    p("s_cbranch_scc0 K1_bpath")
    p.begin_cond()
    for b in range(4,12): rdblk(b)
    for b in range(12): stblk(b)
    if fused:
        p("s_mov_b32 exec_hi, -1")
        p("s_branch P1_end")
    else:
        stamp(p, 6)
        if STAMP: p("s_waitcnt vmcnt(0)")
        stamp(p, 7)
        stamp_flush(p, 0, SWS, 8, sWV)
        p("s_endpgm")
    p.end_cond()
    p.label("K1_bpath")
    p("s_waitcnt lgkmcnt(0)")
    for b in range(4): stblk(b)
    p("s_mov_b32 exec_hi, -1")
    p(f"s_cmp_gt_u32 {s(sWV)}, 3")
    p("s_cbranch_scc1 P1_end" if fused else "s_cbranch_scc1 K1_end")
    p("v_lshrrev_b32 v7, 5, v2")
    p("v_bfe_u32 v6, v2, 2, 2")
    p("v_lshl_add_u32 v5, v7, 3, v6")
    p("v_mul_u32_u24 v5, 48, v5")
    p("v_bfe_u32 v6, v2, 4, 1")
    p("v_lshl_add_u32 v5, v6, 5, v5")
    p("v_and_b32 v6, 3, v2")
    p("v_lshl_add_u32 v5, v6, 3, v5")
    p(f"s_add_u32 s35, {s(sWV)}, 4")
    p("s_mul_i32 s35, s35, 6144")
    p(f"s_add_u32 s35, s35, {IMG}")
    p("v_add_u32 v5, s35, v5")
    KV = 96
    Fr = 112
    for t in range(8):
        for h in range(2): p(f"ds_read_b64_tr_b16 {v(Fr+8*t+2*h,2)}, v5 offset:{t*768+h*192}")
        for h in range(2): p(f"ds_read_b64_tr_b16 {v(Fr+8*t+4+2*h,2)}, v5 offset:{24576+t*768+h*192}")
        if t >= 2:
            tt = t-2
            p(f"v_mfma_f32_32x32x16_bf16 {v(KV,16)}, {v(Fr+8*tt,4)}, {v(Fr+8*tt+4,4)}, {'0' if tt==0 else v(KV,16)}")
    for tt in (6,7):
        p(f"v_mfma_f32_32x32x16_bf16 {v(KV,16)}, {v(Fr+8*tt,4)}, {v(Fr+8*tt+4,4)}, {v(KV,16)}")
    p(f"s_lshl_b32 s34, {s(sHG)}, 2")
    p(f"s_add_u32 s34, s34, {s(sWV)}")
    p("s_lshl_b32 s34, s34, 4")
    p(f"s_add_u32 s34, s34, {s(sRT)}")
    p(f"s_mul_i32 s34, s34, {KVP_STRIDE}")
    p(f"s_add_u32 s34, s34, {WS_KVP}")
    p("v_and_b32 v3, 31, v2")
    p("v_lshlrev_b32 v3, 4, v3")
    p("v_mul_u32_u24 v7, 384, v7")
    p("v_add_u32 v3, v3, v7")
    p("s_mov_b32 exec_lo, 0xffffff")
    p("s_mov_b32 exec_hi, 0xffffff")
    for q in range(3):
        p(f"buffer_store_dwordx4 {v(KV+4*q,4)}, v3, {s(SWS,4)}, s34 offen offset:{q*768} {SC}")
    if fused:
        p("s_mov_b32 exec_lo, -1")
        p("s_mov_b32 exec_hi, -1")
        p.label("P1_end")
        p.forget()
        stamp(p, 6)
        return
    stamp(p, 6)
    if STAMP: p("s_waitcnt vmcnt(0)")
    stamp(p, 7)
    stamp_flush(p, 0, SWS, 8, sWV)
    p.label("K1_end")
    p("s_endpgm")
```

```python
import re
from asmlib import *
from gen import *

LDS_V = 24576; LDS_RED = 49216
WS_FLG = 0x1520000
def gen_k2():
    p = Prog()
    header(p, "k2_kernel")
    p.stv = 230
    emit_p2(p, None)
    p.label("K2_end")
    p("s_endpgm")
    p.pad()
    return p.text(), dict(name="k2_kernel", vgpr=231, sgpr=100, grid=256, block=512, lds=LDS_RED + 8448 + 8*1536)

def emit_p2(p, fused):
    SWS = 20
    sH, sR, sWV = 32, 31, 33
    LD = 'sc1' if fused else ''
    SO_ = 8 if fused else 0
    if not fused:
        p("s_cmp_ge_u32 s2, 256")
        p("s_cbranch_scc1 K2_end")
        stamp(p, 0)
        p("s_load_dwordx2 s[12:13], s[0:1], 72")
        p("v_lshrrev_b32 v1, 6, v0")
        p("v_and_b32 v2, 63, v0")
        p(f"v_readfirstlane_b32 {s(sWV)}, v1")
    p("s_and_b32 s36, s2, 7")
    p("s_lshr_b32 s37, s2, 3")
    p("s_and_b32 s38, s36, 3")
    p("s_lshl_b32 s38, s38, 3")
    p("s_and_b32 s39, s37, 7")
    p(f"s_add_u32 {s(sH)}, s38, s39")
    p("s_lshr_b32 s38, s36, 2")
    p("s_lshl_b32 s38, s38, 2")
    p("s_lshr_b32 s39, s37, 3")
    p(f"s_add_u32 {s(sR)}, s38, s39")
    Q0, Q1 = 16, 20
    PQR = 24
    MU, ML = 32, 48
    SB = [64, 80]
    KF = [96, 104]
    VF = [112, 120]
    PB = [128, 136]
    O = 144
    CM = 160
    PAR = 176
    WOR = 229
    WOH = 204
    PQ = 208
    GX, GWt = 64, 70
    vL16, vQA, vHH = 3, 4, 5
    vQo, vPQo, vK0, vK1, vV, vM = 6, 7, 8, 9, 10, 11
    vDM, vW0, vW1, vOo, vOt = 216, 217, 218, 219, 220
    p(f"v_lshlrev_b32 {v(vL16)}, 4, v2")
    p(f"v_and_b32 {v(vQA)}, 31, v2")
    p(f"v_lshrrev_b32 {v(vHH)}, 5, v2")
    sRow = 35
    p(f"s_lshl_b32 {s(sRow)}, {s(sH)}, 11")
    p(f"s_lshl_b32 s36, {s(sR)}, 8")
    p(f"s_add_u32 {s(sRow)}, {s(sRow)}, s36")
    p(f"s_mul_i32 s40, {s(sWV)}, 3072")
    p(f"v_add_u32 {v(vDM)}, s40, {v(vL16)}")
    p(f"s_mul_i32 s41, {s(sRow)}, 48")
    p(f"s_add_u32 s42, s41, {WS_KA - 12288}")
    p(f"s_add_u32 s43, s41, {WS_VA - 12288}")
    sFILL = 55
    p(f"s_lshr_b32 {s(sFILL)}, {s(sWV)}, 2")
    p(f"s_or_b32 {s(sFILL)}, {s(sFILL)}, {s(sR)}")
    p(f"s_cmp_eq_u32 {s(sFILL)}, 0")
    p("s_cselect_b32 s42, 0x40000000, s42")
    p("s_cselect_b32 s43, 0x40000000, s43")
    p(f"s_lshl_b32 s36, {s(sWV)}, 5")
    p(f"v_add_u32 v12, s36, {v(vQA)}")
    p("v_mul_u32_u24 v12, 48, v12")
    p(f"v_lshl_add_u32 {v(vQo)}, {v(vHH)}, 4, v12")
    p(f"v_lshl_add_u32 {v(vPQo)}, {v(vHH)}, 3, v12")
    p(f"s_add_u32 s44, s41, {WS_QB}")
    for k in range(4): p(f"v_mov_b32 {v(Q1+k)}, 0")
    tg = {}
    def loads():
        p("s_mov_b32 m0, s40")
        if not fused:
            p("s_waitcnt lgkmcnt(0)")
            srd(p, SWS, 12, WS_SIZE)
            stamp(p, 1)
        else:
            p("s_nop 0")
        for i in range(3): p(f"buffer_load_dwordx4 {v(vDM)}, {s(SWS,4)}, s42 offen offset:{i*1024} {LD} lds")
        p(f"s_add_u32 m0, s40, {LDS_V}")
        p(f"buffer_load_dwordx4 {v(Q0,4)}, {v(vQo)}, {s(SWS,4)}, s41 offen {LD}")
        p("s_mov_b32 exec_hi, 0")
        p(f"buffer_load_dwordx4 {v(Q1,4)}, {v(vQo)}, {s(SWS,4)}, s41 offen offset:32 {LD}")
        p("s_mov_b32 exec_hi, -1")
        tg['K'] = p.vmtag()
        for i in range(3): p(f"buffer_load_dwordx4 {v(vDM)}, {s(SWS,4)}, s43 offen offset:{i*1024} {LD} lds")
        tg['V'] = p.vmtag()
    if not fused: loads()
    p(f"s_cmp_ge_u32 {s(sWV)}, 3")
    p("s_cselect_b32 s37, 8, 0")
    p("s_cselect_b32 s38, 3, 0")
    p(f"s_sub_u32 s38, {s(sWV)}, s38")
    p(f"s_lshl_b32 s66, {s(sH)}, 4")
    p("s_add_u32 s66, s66, s37")
    p("s_mul_i32 s66, s66, 2304")
    p("s_mul_i32 s38, s38, 768")
    p("s_add_u32 s66, s66, s38")
    p(f"s_add_u32 s66, s66, {WS_KVP}")
    p(f"s_cmp_ge_u32 {s(sWV)}, 6")
    p("s_cselect_b32 s66, 0x40000000, s66")
    p(f"v_mul_u32_u24 v12, 384, {v(vHH)}")
    p(f"v_min_u32 v13, 23, {v(vQA)}")
    p(f"v_lshl_add_u32 {v(vW0)}, v13, 4, v12")
    p(f"v_add_u32 {v(vW0)}, {LDS_RED}, {v(vW0)}")
    p("s_lshr_b32 s46, s2, 3")
    p("s_lshl_b32 s46, s46, 3")
    p(f"s_add_u32 s46, s46, {s(sWV)}")
    p("s_mul_i32 s46, s46, 6400")
    p(f"s_add_u32 s46, s46, {WS_WF}")
    p(f"v_min_u32 {v(vW1)}, 49, v2")
    p(f"v_lshlrev_b32 {v(vW1)}, 7, {v(vW1)}")
    p(f"s_mul_i32 s36, {s(sWV)}, 1536")
    p(f"v_mul_u32_u24 v12, 48, {v(vQA)}")
    p("v_add_u32 v12, s36, v12")
    p(f"v_lshl_add_u32 {v(vK0)}, {v(vHH)}, 4, v12")
    p(f"v_add_u32 {v(vK1)}, 32, v12")
    p("v_bfe_u32 v12, v2, 2, 2")
    p(f"v_lshl_add_u32 v12, {v(vHH)}, 2, v12")
    p("v_mul_u32_u24 v12, 48, v12")
    p("v_bfe_u32 v13, v2, 4, 1")
    p("v_lshl_add_u32 v12, v13, 5, v12")
    p("v_and_b32 v14, 3, v2")
    p("v_lshl_add_u32 v12, v14, 3, v12")
    p(f"s_add_u32 s36, s36, {LDS_V}")
    p(f"v_add_u32 {v(vV)}, s36, v12")
    sOM, sOT = 68, 69
    p(f"s_lshl_b32 s36, {s(sR)}, 4")
    p(f"s_lshl_b32 s37, {s(sWV)}, 1")
    p("s_add_u32 s36, s36, s37")
    p("s_mul_i32 s36, s36, 40960")
    p(f"s_add_u32 s36, s36, {WS_OF}")
    p(f"s_lshr_b32 s37, {s(sH)}, 1")
    p("s_mul_i32 s37, s37, 5")
    p(f"s_and_b32 s38, {s(sH)}, 1")
    p("s_lshl_b32 s39, s38, 1")
    p("s_add_u32 s39, s39, s37")
    p("s_lshl_b32 s39, s39, 8")
    p(f"s_add_u32 {s(sOM)}, s39, s36")
    p("s_add_u32 s37, s37, 4")
    p("s_lshl_b32 s37, s37, 8")
    p("s_lshl_b32 s38, s38, 3")
    p("s_add_u32 s37, s37, s38")
    p(f"s_add_u32 {s(sOT)}, s37, s36")
    p("s_mov_b32 s38, 40960")
    p("v_and_b32 v14, 15, v2")
    p("v_lshlrev_b32 v14, 4, v14")
    p(f"v_mad_u32_u24 {v(vOt)}, v13, s38, v14")
    p(f"v_lshl_add_u32 {v(vOo)}, {v(vHH)}, 8, {v(vOt)}")
    p(f"v_lshlrev_b32 v12, 2, {v(vHH)}")
    p(f"v_sub_u32 v12, {v(vQA)}, v12")
    p(f"v_mov_b32 v13, {f32(NEG)}")
    for r0 in range(0, 16, 4):
        for r in range(r0, r0+4):
            kb = 8*(r >> 2) + (r & 3)
            p(f"v_cmp_le_i32 {s(56+2*(r&3),2)}, {kb}, v12")
        for r in range(r0, r0+4):
            p(f"v_cndmask_b32 {v(ML+r)}, v13, 0, {s(56+2*(r&3),2)}")
            p(f"v_cndmask_b32 {v(MU+r)}, 0, v13, {s(56+2*(r&3),2)}")
    LB = 221
    p("v_mov_b32 v14, 0xffff")
    p("v_mov_b32 v15, 0xffff0000")
    for k0 in range(0, 8, 2):
        for k in (k0, k0+1):
            for hb in range(2):
                r = 2*k + hb
                kb = 8*(r >> 2) + (r & 3)
                p(f"v_cmp_le_i32 {s(56+2*(r&3),2)}, {kb}, v12")
        for k in (k0, k0+1):
            p(f"v_cndmask_b32 {v(LB+k)}, 0, v14, {s(56+2*((2*k)&3),2)}")
            p(f"v_cndmask_b32 v13, 0, v15, {s(56+2*((2*k+1)&3),2)}")
            p(f"v_or_b32 {v(LB+k)}, {v(LB+k)}, v13")
    MX = [vM, 13, 14, 15]
    for r in MX: p(f"v_mov_b32 {v(r)}, {f32(-3e38)}")
    if fused:
        fused['sync1'](sH, sR)
        loads()
    stamp(p, 2 + SO_*0 if not fused else 9)
    p.wait_vm_tag(tg['K'])
    p(f"s_cmp_lg_u32 {s(sFILL)}, 0")
    p("s_cbranch_scc1 K2_nofill")
    p(f"v_mul_u32_u24 {v(CM)}, 48, v0")
    p(f"v_mov_b32 {v(CM+1)}, 0xf149")
    p(f"ds_write_b32 {v(CM)}, {v(CM+1)} offset:40")
    p("s_waitcnt lgkmcnt(0)")
    p.label("K2_nofill")
    p("s_barrier")
    stamp(p, (10 if fused else 3)); stampc(p, 20)
    def rdK(t):
        b = KF[t & 1]
        p(f"ds_read_b128 {v(b,4)}, {v(vK0)} offset:{t*1536}")
        p(f"ds_read_b128 {v(b+4,4)}, {v(vK1)} offset:{t*1536}")
    def rdV(t):
        b = VF[t & 1]
        for c in range(2):
            for hsel in range(2):
                p(f"ds_read_b64_tr_b16 {v(b+4*c+2*hsel,2)}, {v(vV)} offset:{t*1536 + c*768 + hsel*384}")
    def qk(t, half, C):
        S = SB[t & 1]; b = KF[t & 1]
        if half == 0: p(f"v_mfma_f32_32x32x16_bf16 {v(S,16)}, {v(b,4)}, {v(Q0,4)}, {C}")
        else: p(f"v_mfma_f32_32x32x16_bf16 {v(S,16)}, {v(b+4,4)}, {v(Q1,4)}, {v(S,16)}")
    sec = []
    def pe(t):
        for x in (t if isinstance(t, list) else [t]):
            if isinstance(x, tuple): tg[x[1]] = p.vmtag()
            else: p(x)
    sec2 = []
    for k in range(8):
        g_ = [f"buffer_load_dwordx4 {v(PAR+4*k,4)}, {v(vL16)}, {s(SWS,4)}, s66 offen offset:{2304*(k&1)} {LD}"]
        if k & 1: g_.append("s_add_u32 s66, s66, 4608")
        sec2.append(g_)
    LDS_PQ = LDS_RED + 8448
    sec2.insert(0, [f"s_mul_i32 s45, {s(sWV)}, 1536", f"s_add_u32 m0, s45, {LDS_PQ}", "s_add_u32 s45, s45, s44",
                    f"buffer_load_dwordx4 {v(vL16)}, {s(SWS,4)}, s45 offen {LD} lds"])
    sec2.insert(1, ["s_mov_b32 exec_hi, 0", f"buffer_load_dwordx4 {v(vL16)}, {s(SWS,4)}, s45 offen offset:1024 {LD} lds", "s_mov_b32 exec_hi, -1", ('tag', 'PQ')])
    if not fused: sec2.append(f"buffer_load_dword {v(WOR)}, {v(vW1)}, {s(SWS,4)}, s46 offen")
    if fused: sec2 += fused['wdma']()
    def C1(t): return v(MU,16) if t == 0 else (v(ML,16) if t == 8 else '0')
    S3 = [SB[0], SB[1], O]; K3 = [KF[0], KF[1], VF[0]]
    def rdK3(t):
        p(f"ds_read_b128 {v(K3[t%3],4)}, {v(vK0)} offset:{t*1536}")
        p(f"ds_read_b128 {v(K3[t%3]+4,4)}, {v(vK1)} offset:{t*1536}")
    def qk3(t, half):
        if half == 0: p(f"v_mfma_f32_32x32x16_bf16 {v(S3[t%3],16)}, {v(K3[t%3],4)}, {v(Q0,4)}, {C1(t)}")
        else: p(f"v_mfma_f32_32x32x16_bf16 {v(S3[t%3],16)}, {v(K3[t%3]+4,4)}, {v(Q1,4)}, {v(S3[t%3],16)}")
    rdK3(0); rdK3(1); rdK3(2)
    if fused: fused['pre_all']()
    qk3(0,0); qk3(0,1); qk3(1,0); qk3(1,1)
    for t in range(9):
        S = S3[t % 3]
        if t+2 <= 8: qk3(t+2, 0)
        for k in range(4): p(f"v_max3_f32 {v(MX[k&3])}, {v(MX[k&3])}, {v(S+2*k)}, {v(S+2*k+1)}")
        if t+2 <= 8: qk3(t+2, 1)
        for k in range(4, 8): p(f"v_max3_f32 {v(MX[k&3])}, {v(MX[k&3])}, {v(S+2*k)}, {v(S+2*k+1)}")
        if t+3 <= 8: rdK3(t+3)
        if t == 3:
            if fused:
                p(f"s_cmp_eq_u32 {s(sWV)}, 0")
                p("s_cbranch_scc1 P2_vw")
                p.wait_vm_tag(tg['V'])
                p.label("P2_vw")
                p.raw("    s_waitcnt vmcnt(4)")
            else:
                p.wait_vm_tag(tg['V'])
            p("s_barrier")
            stamp(p, 11); stampc(p, 21)
    assert not sec
    p(f"ds_read_b128 {v(KF[0],4)}, {v(vK0)} offset:0")
    p(f"ds_read_b128 {v(KF[0]+4,4)}, {v(vK1)} offset:0")
    p(f"ds_read_b128 {v(KF[1],4)}, {v(vK0)} offset:{8*1536}")
    p(f"ds_read_b128 {v(KF[1]+4,4)}, {v(vK1)} offset:{8*1536}")
    p(f"v_max3_f32 {v(vM)}, {v(vM)}, v13, v14")
    p(f"v_max_f32 {v(vM)}, {v(vM)}, v15")
    p(f"v_mov_b32 v12, {v(vM)}")
    p(f"v_permlane32_swap_b32 {v(vM)}, v12")
    p(f"v_max_f32 {v(vM)}, {v(vM)}, v12")
    p(f"v_sub_f32 {v(CM)}, 0, {v(vM)}")
    p(f"v_sub_f32 {v(CM+1)}, 0, {v(vM)}")
    for k in range(8): p(f"v_pk_add_f32 {v(MU+2*k,2)}, {v(MU+2*k,2)}, {v(CM,2)}")
    for k in range(2, 16): p(f"v_mov_b32 {v(CM+k)}, {v(CM)}")
    for k in range(8): p(f"v_pk_add_f32 {v(ML+2*k,2)}, {v(ML+2*k,2)}, {v(CM,2)}")
    stamp(p, (12 if fused else 4)); stampc(p, 22)
    if fused: fused['gateB']()
    def rdKb(t, b):
        p(f"ds_read_b128 {v(KF[b],4)}, {v(vK0)} offset:{t*1536}")
        p(f"ds_read_b128 {v(KF[b]+4,4)}, {v(vK1)} offset:{t*1536}")
    def rdVb(t, b):
        for c in range(2):
            for hsel in range(2):
                p(f"ds_read_b64_tr_b16 {v(VF[b]+4*c+2*hsel,2)}, {v(vV)} offset:{t*1536 + c*768 + hsel*384}")
    def qkb(kb, sb, half, C):
        if half == 0: p(f"v_mfma_f32_32x32x16_bf16 {v(SB[sb],16)}, {v(KF[kb],4)}, {v(Q0,4)}, {C}")
        else: p(f"v_mfma_f32_32x32x16_bf16 {v(SB[sb],16)}, {v(KF[kb]+4,4)}, {v(Q1,4)}, {v(SB[sb],16)}")
    first = [True]
    def pvb(vb, pb, c):
        p(f"v_mfma_f32_32x32x16_bf16 {v(O,16)}, {v(VF[vb]+4*c,4)}, {v(PB[pb]+4*c,4)}, {'0' if first[0] else v(O,16)}")
        first[0] = False
    qkb(0,0,0,v(MU,16)); qkb(0,0,1,None)
    qkb(1,1,0,v(ML,16)); qkb(1,1,1,None)
    rdKb(1,0); rdKb(2,1)
    rdVb(0,0); rdVb(8,1)
    for k in range(16): p(f"v_max_f32 {v(SB[0]+k)}, {v(SB[0]+k)}, {v(SB[1]+k)}")
    for k in range(16):
        p(f"v_exp_f32 {v(SB[0]+k)}, {v(SB[0]+k)}")
        if k == 0: qkb(0,1,0,v(CM,16))
        if k == 4: qkb(0,1,1,None)
        if k == 5: rdKb(3,0)
    for k in range(8): p(f"v_cvt_pk_bf16_f32 {v(PB[0]+k)}, {v(SB[0]+2*k)}, {v(SB[0]+2*k+1)}")
    for k in range(8): p(f"v_and_b32 {v(PB[1]+k)}, {v(PB[0]+k)}, {v(LB+k)}")
    for k in range(8): p(f"v_xor_b32 {v(PB[0]+k)}, {v(PB[0]+k)}, {v(PB[1]+k)}")
    if fused: fused['waitB']()
    for t in range(1, 8):
        S = SB[t & 1]
        for k in range(16):
            p(f"v_exp_f32 {v(S+k)}, {v(S+k)}")
            if k == 0 and t+1 <= 7: qkb(t & 1, (t+1) & 1, 0, v(CM,16))
            if k == 3 and t+1 <= 7: qkb(t & 1, (t+1) & 1, 1, None)
            if k == 4 and t+3 <= 7: rdKb(t+3, t & 1)
            if k in (2, 5, 7, 11, 14, 13) and sec2: pe(sec2.pop(0))
            if t == 1:
                if k == 6: pvb(0,0,0)
                if k == 9: pvb(0,0,1)
                if k == 10: rdVb(1, 0)
                if k == 12: pvb(1,1,0)
                if k == 15: pvb(1,1,1)
            else:
                if k == 1: rdVb(t, (t+1) & 1)
                if k == 8: pvb(t & 1, t & 1, 0)
                if k == 12: pvb(t & 1, t & 1, 1)
        for k in range(8): p(f"v_cvt_pk_bf16_f32 {v(PB[(t+1)&1]+k)}, {v(S+2*k)}, {v(S+2*k+1)}")
        if t == 5:
            for st_ in (1, 2, 4):
                for w2 in range(0, 8, 2*st_):
                    for k in range(2): p(f"v_pk_add_f32 {v(PAR+4*w2+2*k,2)}, {v(PAR+4*w2+2*k,2)}, {v(PAR+4*(w2+st_)+2*k,2)}")
            p(f"s_lshl_b32 s36, {s(sWV)}, 10")
            p(f"s_add_u32 s36, s36, {LDS_RED}")
            p(f"v_add_u32 v12, s36, {v(vL16)}")
            p(f"ds_write_b128 v12, {v(PAR,4)}")
        if t == 6:
            p("s_waitcnt lgkmcnt(0)")
            p("s_barrier")
            p.wait_vm_tag(tg['PQ'])
            p(f"v_add_u32 v12, {LDS_PQ}, {v(vPQo)}")
            for k in range(3): p(f"ds_read_b64 {v(PQR+2*k,2)}, v12 offset:{16*k}")
        if t == 7:
            T = 176; U = 188
            p(f"s_mov_b32 s53, {f32(LOG2E)}")
            p(f"s_mov_b32 s54, {f32(EPS)}")
            for k in range(6):
                p(f"v_lshlrev_b32 {v(T+2*k)}, 16, {v(PQR+k)}")
                p(f"v_and_b32 {v(T+2*k+1)}, 0xffff0000, {v(PQR+k)}")
            for k in range(12): p(f"v_mul_f32 {v(U+k)}, s53, {v(T+k)}")
            for k in range(12): p(f"v_exp_f32 {v(U+k)}, {v(U+k)} clamp")
            for k in range(12): p(f"v_max_f32 {v(T+k)}, 0, {v(T+k)}")
            for k in range(12): p(f"v_add_f32 {v(T+k)}, {v(T+k)}, {v(U+k)}")
            for k in range(12): p(f"v_add_f32 {v(T+k)}, s54, {v(T+k)}")
            for k in range(6): p(f"v_cvt_pk_bf16_f32 {v(PQ+k)}, {v(T+2*k)}, {v(T+2*k+1)}")
            p(f"v_mov_b32 {v(PQ+6)}, 0"); p(f"v_mov_b32 {v(PQ+7)}, 0")
    assert not sec2
    pvb(0,0,0); pvb(0,0,1)
    stamp(p, (13 if fused else 5)); stampc(p, 23)
    RB = 32
    for w2 in range(6): p(f"ds_read_b128 {v(RB+4*w2,4)}, {v(vW0)} offset:{w2*1024}")
    def oepi(A, s_main, s_tail, eps, E):
        p(f"v_mov_b32 v13, {v(A+8)}")
        p(f"v_mov_b32 v14, {v(A+8)}")
        p("v_permlane32_swap_b32 v13, v14")
        if eps: p(f"v_add_f32 v14, {f32(EPS)}, v14")
        p("v_rcp_f32 v14, v14")
        p("s_nop 0")
        p("v_mov_b32 v15, v14")
        for k in range(6): p(f"v_pk_mul_f32 {v(A+2*k,2)}, {v(A+2*k,2)}, v[14:15]")
        for k in range(6): p(f"v_cvt_pk_bf16_f32 {v(E+k)}, {v(A+2*k)}, {v(A+2*k+1)}")
        p(f"buffer_store_dwordx4 {v(E,4)}, {v(vOo)}, {s(SWS,4)}, {s(s_main)} offen {SC}")
        p("s_mov_b32 exec_hi, 0")
        p(f"buffer_store_dwordx2 {v(E+4,2)}, {v(vOt)}, {s(SWS,4)}, {s(s_tail)} offen {SC}")
        p("s_mov_b32 exec_hi, -1")
    oepi(O, sOM, sOT, False, 128)
    stamp(p, (15 if fused else 9))
    for k in range(6): p(f"v_pk_add_f32 {v(RB+2*k,2)}, {v(RB+2*k,2)}, {v(RB+12+2*k,2)}")
    KVF = 136
    for k in range(6): p(f"v_cvt_pk_bf16_f32 {v(KVF+k)}, {v(RB+2*k)}, {v(RB+2*k+1)}")
    p(f"v_mov_b32 {v(KVF+6)}, 0"); p(f"v_mov_b32 {v(KVF+7)}, 0")
    N = 160
    p(f"v_mfma_f32_32x32x16_bf16 {v(N,16)}, {v(KVF,4)}, {v(PQ,4)}, 0")
    p(f"v_mfma_f32_32x32x16_bf16 {v(N,16)}, {v(KVF+4,4)}, {v(PQ+4,4)}, {v(N,16)}")
    stamp(p, (16 if fused else 10))
    p(f"s_add_u32 {s(sOM)}, {s(sOM)}, 20480")
    p(f"s_add_u32 {s(sOT)}, {s(sOT)}, 20480")
    oepi(N, sOM, sOT, True, 176)
    if fused:
        stamp(p, 17)
        return
    stamp(p, 6)
    if STAMP: p("s_waitcnt vmcnt(0)")
    stamp(p, 7)
    stamp_flush(p, 1, SWS, 8, sWV)

def gen_k3():
    p = Prog()
    header(p, "k3_kernel")
    p.stv = 227
    SWS, SO = 8, 12
    sWV, sRT, sCT = 16, 17, 18
    p("s_cmp_ge_u32 s2, 256")
    p("s_cbranch_scc1 K3_end")
    stamp(p, 0)
    p("s_load_dwordx2 s[4:5], s[0:1], 56")
    p("s_load_dwordx2 s[6:7], s[0:1], 72")
    p("v_lshrrev_b32 v1, 6, v0")
    p("v_and_b32 v2, 63, v0")
    p(f"v_readfirstlane_b32 {s(sWV)}, v1")
    p("s_and_b32 s20, s2, 7")
    p("s_lshr_b32 s21, s2, 3")
    p("s_lshl_b32 s22, s20, 2")
    p("s_lshr_b32 s23, s21, 3")
    p(f"s_add_u32 {s(sRT)}, s22, s23")
    p(f"s_and_b32 {s(sCT)}, s21, 7")
    p(f"s_mul_i32 s20, {s(sWV)}, 10240")
    p("v_lshlrev_b32 v3, 4, v2")
    p("v_add_u32 v3, s20, v3")
    p("v_add_u32 v4, 4096, v3")
    p("v_add_u32 v5, 8192, v3")
    sA, sB = 24, 28
    p(f"s_mul_i32 s20, {s(sRT)}, {4*40960}")
    for i in range(4): p(f"s_add_u32 {s(sA+i)}, s20, {WS_OF + i*40960}")
    p(f"s_mul_i32 s20, {s(sCT)}, {5*40960}")
    for j in range(5): p(f"s_add_u32 {s(sB+j)}, s20, {WS_WF + j*40960}")
    p("s_waitcnt lgkmcnt(0)")
    srd(p, SWS, 6, WS_SIZE)
    NB = 6
    FB = 8
    def ld(ks):
        b = FB + 36*(ks % NB)
        vo = v(3 + ks // 4); im = (ks % 4) * 1024
        for j in range(5):
            if j < 4: p(f"buffer_load_dwordx4 {v(b+4*j,4)}, {vo}, {s(SWS,4)}, {s(sA+j)} offen offset:{im}")
            p(f"buffer_load_dwordx4 {v(b+16+4*j,4)}, {vo}, {s(SWS,4)}, {s(sB+j)} offen offset:{im}")
    stamp(p, 1)
    for ks in range(NB): ld(ks)
    stamp(p, 2)
    srd(p, SO, 4, 2048*1280)
    vGT = 6
    p("v_lshrrev_b32 v1, 2, v0")
    p("v_lshlrev_b32 v224, 3, v1") if False else None
    p(f"s_lshl_b32 s20, {s(sRT)}, 9")
    p(f"s_add_u32 s20, s20, {WS_G}")
    GV = FB + 36*NB
    p(f"v_lshlrev_b32 {v(GV+2)}, 3, v1")
    p(f"buffer_load_dwordx2 {v(GV,2)}, {v(GV+2)}, {s(SWS,4)}, s20 offen")
    for ks in range(10):
        b = FB + 36*(ks % NB)
        for j in range(5):
            for i in range(4):
                A = (j*4+i)*4
                p(f"v_mfma_f32_16x16x32_bf16 {a(A,4)}, {v(b+16+4*j,4)}, {v(b+4*i,4)}, {'0' if ks==0 else a(A,4)}")
        if ks + NB < 10: ld(ks + NB)
        if ks == 0: stamp(p, 3)
    stamp(p, 4)
    RS = 336
    p("v_and_b32 v3, 15, v2")
    p(f"v_mul_u32_u24 v3, {RS}, v3")
    p("v_lshrrev_b32 v4, 4, v2")
    p("v_lshl_add_u32 v3, v4, 4, v3")
    p(f"s_mul_i32 s20, {s(sWV)}, {64*RS}")
    p("v_add_u32 v3, s20, v3")
    for j in range(5):
        for i in range(4):
            A = (j*4+i)*4
            p(f"ds_write_b128 v3, {a(A,4)} offset:{i*16*RS + j*64}")
    p(f"v_mul_u32_u24 v4, {RS}, v1")
    p("v_and_b32 v5, 3, v0")
    p("v_mul_u32_u24 v7, 80, v5")
    p("v_add_u32 v4, v4, v7")
    p(f"v_add_u32 v7, {2*64*RS}, v4")
    p("s_waitcnt lgkmcnt(0)")
    p("s_barrier")
    stamp(p, 5)
    R = 8
    for w in range(4):
        for c in range(5):
            p(f"ds_read_b128 {v(R+20*w+4*c,4)}, {v(4 if w < 2 else 7)} offset:{(w&1)*64*RS + 16*c}")
    p("s_movk_i32 s20, 1280")
    p("v_mul_u32_u24 v5, 40, v5")
    p("v_mad_u32_u24 v5, v1, s20, v5")
    p(f"s_mul_i32 s21, {s(sRT)}, {64*1280}")
    p(f"s_mul_i32 s22, {s(sCT)}, 160")
    p("s_add_u32 s21, s21, s22")
    for k in range(20): p(f"v_add_f32 {v(R+k)}, {v(R+k)}, {v(R+20+k)}")
    for k in range(20): p(f"v_mul_f32 {v(R+k)}, {v(GV)}, {v(R+k)}")
    for k in range(20): p(f"v_add_f32 {v(R+40+k)}, {v(R+40+k)}, {v(R+60+k)}")
    for k in range(20): p(f"v_fmac_f32 {v(R+k)}, {v(GV+1)}, {v(R+40+k)}")
    E = 96
    for k in range(10): p(f"v_cvt_pk_bf16_f32 {v(E+k)}, {v(R+2*k)}, {v(R+2*k+1)}")
    p(f"buffer_store_dwordx4 {v(E,4)}, v5, {s(SO,4)}, s21 offen")
    p(f"buffer_store_dwordx4 {v(E+4,4)}, v5, {s(SO,4)}, s21 offen offset:16")
    p(f"buffer_store_dwordx2 {v(E+8,2)}, v5, {s(SO,4)}, s21 offen offset:32")
    stamp(p, 6)
    if STAMP: p("s_waitcnt vmcnt(0)")
    stamp(p, 7)
    stamp_flush(p, 2, SWS, 8, sWV)
    p.label("K3_end")
    p("s_endpgm")
    p.pad()
    return p.text(), dict(name="k3_kernel", vgpr=228+80, arch=228, sgpr=100, grid=256, block=256, lds=4*64*RS)
```

```python
import os
from asmlib import *
from gen import *

P3_ACC = 0 + 16
P3_W = 96
P3_O = 176
P3_G = 4
P3_V = 10

def p3_setup(p, sWV, S):
    sRT, sCT, sA, sB, t0, t1 = S['RT'], S['CT'], S['A'], S['B'], S['t0'], S['t1']
    p(f"s_and_b32 {s(t0)}, s2, 7")
    p(f"s_lshr_b32 {s(t1)}, s2, 3")
    p(f"s_lshl_b32 {s(t0)}, {s(t0)}, 2")
    p(f"s_lshr_b32 {s(sRT)}, {s(t1)}, 3")
    p(f"s_add_u32 {s(sRT)}, {s(sRT)}, {s(t0)}")
    p(f"s_and_b32 {s(sCT)}, {s(t1)}, 7")
    p(f"s_mul_i32 {s(t0)}, {s(sWV)}, 5120")
    p(f"v_and_b32 {v(P3_V+5)}, 63, v0")
    p(f"v_lshlrev_b32 {v(P3_V+4)}, 4, {v(P3_V+5)}")
    p(f"v_add_u32 {v(P3_V)}, {s(t0)}, {v(P3_V+4)}")
    p(f"v_add_u32 {v(P3_V+1)}, 4096, {v(P3_V)}")
    p(f"s_mul_i32 {s(t0)}, {s(sRT)}, {4*40960}")
    for i in range(4): p(f"s_add_u32 {s(sA+i)}, {s(t0)}, {WS_OF + i*40960}")
    p(f"s_mul_i32 {s(t0)}, {s(sCT)}, {5*40960}")
    for j in range(5): p(f"s_add_u32 {s(sB+j)}, {s(t0)}, {WS_WF + j*40960}")

def p3_loadW(p, SWS, S, LD='', kss=(0, 1, 2, 3)):
    for ks in kss:
        vo = v(P3_V + ks // 4); im = (ks % 4) * 1024
        for j in range(5):
            p(f"buffer_load_dwordx4 {v(P3_W+((ks%4)*5+j)*4,4)}, {vo}, {s(SWS,4)}, {s(S['B']+j)} offen offset:{im} {LD}")

def p3_main(p, sWV, SWS, SO, S, LD=''):
    sRT, sCT, sA, t0, t1 = S['RT'], S['CT'], S['A'], S['t0'], S['t1']
    def ldo(ks):
        vo = v(P3_V + ks // 4); im = (ks % 4) * 1024
        for i in range(4):
            p(f"buffer_load_dwordx4 {v(P3_O+ks*16+4*i,4)}, {vo}, {s(SWS,4)}, {s(sA+i)} offen offset:{im} {LD}")
    def ldo1(ks, i):
        vo = v(P3_V + ks // 4); im = (ks % 4) * 1024
        return f"buffer_load_dwordx4 {v(P3_O+ks*16+4*i,4)}, {vo}, {s(SWS,4)}, {s(sA+i)} offen offset:{im} {LD}"
    def ldw1(j):
        return f"buffer_load_dwordx4 {v(P3_W+j*4,4)}, {v(P3_V+1)}, {s(SWS,4)}, {s(S['B']+j)} offen {LD}"
    NUP = int(os.environ.get('P3UP', '2'))
    for ks in range(NUP): ldo(ks)
    pend = [ldo1(ks, i) for ks in range(NUP, 5) for i in range(4)]
    p(f"s_mul_i32 {s(t0)}, {s(sWV)}, 20480")
    p(f"v_add_u32 v1, {s(t0)}, {v(P3_V+4)}")
    stamp(p, 18)
    done = []
    for ks in range(5):
        n = 0
        if ks == 1: pend = pend[:4] + [ldw1(j) for j in range(5)] + pend[4:]
        for i in range(4):
            for j in range(5):
                A = P3_ACC + (j*4+i)*4
                p(f"v_mfma_f32_16x16x32_bf16 {v(A,4)}, {v(P3_W+((ks%4)*5+j)*4,4)}, {v(P3_O+ks*16+4*i,4)}, {'0' if ks==0 else v(A,4)}")
                n += 1
                if n % 3 == 1 and pend and ks < 4: p(pend.pop(0))
                if ks == 4:
                    done.append(j*4+i)
                    if len(done) > 8:
                        tl = done.pop(0)
                        p(f"ds_write_b128 v1, {v(P3_ACC+4*tl,4)} offset:{tl*1024}")
        if ks == 2:
            sT0 = S['T0']
            p(f"s_mul_i32 {s(t0)}, {s(sWV)}, 3")
            p(f"s_lshl_b32 {s(t1)}, {s(sWV)}, 1")
            p(f"s_add_u32 {s(t1)}, {s(t1)}, 4")
            p(f"s_cmp_lt_u32 {s(sWV)}, 4")
            p(f"s_cselect_b32 {s(sT0)}, {s(t0)}, {s(t1)}")
            p(f"v_and_b32 {v(P3_V+2)}, 15, {v(P3_V+5)}")
            p(f"v_lshlrev_b32 {v(P3_V+3)}, 3, {v(P3_V+2)}")
            for q in range(3):
                p(f"s_add_u32 {s(t0)}, {s(sT0)}, {q}")
                p(f"s_and_b32 {s(t0)}, {s(t0)}, 3")
                p(f"s_lshl_b32 {s(t0)}, {s(t0)}, 7")
                p(f"s_lshl_b32 {s(t1)}, {s(sRT)}, 9")
                p(f"s_add_u32 {s(t0)}, {s(t0)}, {s(t1)}")
                p(f"s_add_u32 {s(t0)}, {s(t0)}, {WS_G}")
                p(f"buffer_load_dwordx2 {v(P3_G+2*q,2)}, {v(P3_V+3)}, {s(SWS,4)}, {s(t0)} offen {LD}")
        stamp(p, 19+ks)
    assert not pend
    stamp(p, 24)
    for tl in done:
        p(f"ds_write_b128 v1, {v(P3_ACC+4*tl,4)} offset:{tl*1024}")
    p(f"s_lshl_b32 {s(t0)}, {s(sT0)}, 10")
    p(f"v_add_u32 {v(P3_V)}, {s(t0)}, {v(P3_V+4)}")
    p(f"v_add_u32 {v(P3_V+1)}, {3*20480}, {v(P3_V)}")
    p(f"v_add_u32 {v(P3_V+3)}, {6*20480}, {v(P3_V)}")
    p(f"v_lshrrev_b32 {v(P3_V+4)}, 4, {v(P3_V+5)}")
    p(f"v_lshlrev_b32 {v(P3_V+4)}, 3, {v(P3_V+4)}")
    p(f"s_movk_i32 {s(t0)}, 1280")
    p(f"v_mad_u32_u24 {v(P3_V+4)}, {v(P3_V+2)}, {s(t0)}, {v(P3_V+4)}")
    sOB = S['OB']
    p(f"s_mul_i32 {s(sOB)}, {s(sRT)}, {64*1280}")
    p(f"s_mul_i32 {s(t1)}, {s(sCT)}, 160")
    p(f"s_add_u32 {s(sOB)}, {s(sOB)}, {s(t1)}")
    p("s_waitcnt lgkmcnt(0)")
    stamp(p, 26)
    p("s_barrier")
    stamp(p, 25)
    R = 96
    def fin(q):
        B = R + q*32
        for w in range(8):
            base = P3_V + (0 if w < 3 else (1 if w < 6 else 3))
            p(f"ds_read_b128 {v(B+4*w,4)}, {v(base)} offset:{(w%3)*20480 + q*1024}")
    def comb(q):
        B = R + q*32
        for h in range(2):
            p(f"v_pk_add_f32 {v(B+2*h,2)}, {v(B+2*h,2)}, {v(B+4+2*h,2)}")
            p(f"v_pk_add_f32 {v(B+8+2*h,2)}, {v(B+8+2*h,2)}, {v(B+12+2*h,2)}")
            p(f"v_pk_add_f32 {v(B+16+2*h,2)}, {v(B+16+2*h,2)}, {v(B+20+2*h,2)}")
            p(f"v_pk_add_f32 {v(B+24+2*h,2)}, {v(B+24+2*h,2)}, {v(B+28+2*h,2)}")
        for h in range(2):
            p(f"v_pk_add_f32 {v(B+2*h,2)}, {v(B+2*h,2)}, {v(B+8+2*h,2)}")
            p(f"v_pk_add_f32 {v(B+16+2*h,2)}, {v(B+16+2*h,2)}, {v(B+24+2*h,2)}")
        for k in range(4): p(f"v_mul_f32 {v(B+k)}, {v(P3_G+2*q)}, {v(B+k)}")
        for k in range(4): p(f"v_fmac_f32 {v(B+k)}, {v(P3_G+2*q+1)}, {v(B+16+k)}")
        p(f"v_cvt_pk_bf16_f32 {v(B+4)}, {v(B)}, {v(B+1)}")
        p(f"v_cvt_pk_bf16_f32 {v(B+5)}, {v(B+2)}, {v(B+3)}")
        p(f"s_add_u32 {s(t0)}, {s(sT0)}, {q}")
        p(f"s_and_b32 {s(t1)}, {s(t0)}, 3")
        p(f"s_mul_i32 {s(t1)}, {s(t1)}, {16*1280}")
        p(f"s_lshr_b32 {s(t0)}, {s(t0)}, 2")
        p(f"s_lshl_b32 {s(t0)}, {s(t0)}, 5")
        p(f"s_add_u32 {s(t0)}, {s(t0)}, {s(t1)}")
        p(f"s_add_u32 {s(t0)}, {s(t0)}, {s(sOB)}")
        p(f"buffer_store_dwordx2 {v(B+4,2)}, {v(P3_V+4)}, {s(SO,4)}, {s(t0)} offen")
    fin(0); fin(1); fin(2)
    comb(0); comb(1)
    p(f"s_cmp_lt_u32 {s(sWV)}, 4")
    p("s_cbranch_scc0 P3_done")
    comb(2)
    p.label("P3_done")

def gen_k3():
    p = Prog()
    header(p, "k3_kernel")
    p.stv = 2
    SWS, SO = 8, 12
    sWV = 16
    S = dict(RT=17, CT=18, A=24, B=28, t0=20, t1=21, T0=22, OB=23)
    p("s_cmp_ge_u32 s2, 256")
    p("s_cbranch_scc1 K3_end")
    stamp(p, 0)
    p("s_load_dwordx2 s[4:5], s[0:1], 56")
    p("s_load_dwordx2 s[6:7], s[0:1], 72")
    p("v_lshrrev_b32 v1, 6, v0")
    p(f"v_readfirstlane_b32 {s(sWV)}, v1")
    p3_setup(p, sWV, S)
    p("s_waitcnt lgkmcnt(0)")
    srd(p, SWS, 6, WS_SIZE)
    srd(p, SO, 4, 2048*1280)
    stamp(p, 1)
    p3_loadW(p, SWS, S)
    p3_main(p, sWV, SWS, SO, S)
    stamp(p, 6)
    if STAMP: p("s_waitcnt vmcnt(0)")
    stamp(p, 7)
    stamp_flush(p, 2, SWS, 8, sWV)
    p.label("K3_end")
    p("s_endpgm")
    p.pad()
    return p.text(), dict(name="k3_kernel", vgpr=256, sgpr=100, grid=256, block=512, lds=163840)
```

```python
import os
from asmlib import *
from gen import *
from gen1 import emit_p1
from gen23 import emit_p2, WS_FLG, LDS_RED
from gen3 import *

def gen_fused(name):
    p = Prog()
    header(p, name)
    p.stv = 231
    SWS, sWV, sNON = 20, 33, 94
    SPIN = 200000
    NWL = int(os.environ.get('NWL', '11')); LDSW = 70656
    def wdma():
        out = []
        for f in range(NWL):
            ks, j = divmod(f, 5)
            out.append([f"s_add_u32 m0, s29, {f*1024 - ks*1024}", "s_nop 0",
                        f"buffer_load_dwordx4 v248, {s(SWS,4)}, {s(24+j)} offen offset:{ks*1024} sc1 lds"])
        return out
    cnt = [0]
    def poll(voffs, sbase, lo, hi=0, setexec=True):
        cnt[0] += 1
        L = f"POLL{cnt[0]}"
        if setexec:
            p(f"s_mov_b32 exec_lo, {lo}")
            p(f"s_mov_b32 exec_hi, {hi}")
        p(f"s_mov_b32 s95, {SPIN}")
        p.label(L)
        for k, vo in enumerate(voffs):
            p.raw(f"    buffer_load_dword {v(232+k)}, {v(vo)}, {s(SWS,4)}, {sbase} offen sc1")
        p.raw("    s_waitcnt vmcnt(0)")
        p(f"v_xor_b32 v232, {s(sNON)}, v232")
        for k in range(1, len(voffs)):
            p(f"v_xor_b32 {v(232+k)}, {s(sNON)}, {v(232+k)}")
            p(f"v_or_b32 v232, v232, {v(232+k)}")
        p("v_cmp_ne_u32 vcc, 0, v232")
        p("s_sub_u32 s95, s95, 1")
        p("s_cmp_eq_u32 s95, 0")
        p(f"s_cbranch_scc1 {L}_out")
        p("s_nop 2")
        p(f"s_cbranch_vccz {L}_out")
        p("s_sleep 1")
        p(f"s_branch {L}")
        p.label(f"{L}_out")
        p("s_mov_b32 exec_lo, -1")
        p("s_mov_b32 exec_hi, -1")
    def publish(which):
        pass
    emit_p1(p, True)
    def sync1(sH, sR):
        p(f"s_lshr_b32 s36, {s(sH)}, 2")
        p(f"s_lshl_b32 s37, {s(sR)}, 1")
        p("s_sub_u32 s37, s37, 2")
        p("v_add_u32 v236, s37, v2")
        p("v_and_b32 v237, 7, v236")
        p("v_lshlrev_b32 v237, 5, v237")
        p("v_bfe_u32 v236, v236, 3, 1")
        p("v_lshl_add_u32 v237, v236, 2, v237")
        p("s_and_b32 s38, s36, 1")
        p("s_lshl_b32 s38, s38, 3")
        p("s_lshr_b32 s36, s36, 1")
        p("s_add_u32 s38, s38, s36")
        p("v_add_u32 v237, s38, v237")
        p("v_lshlrev_b32 v237, 7, v237")
        p("v_lshlrev_b32 v238, 7, v2")
        p("v_add_u32 v239, 8192, v238")
        p("v_add_u32 v240, 16384, v238")
        p("v_add_u32 v241, 24576, v238")
        p(f"s_mov_b32 s70, {WS_FLG}")
        p(f"s_cmp_eq_u32 {s(sR)}, 0")
        p("s_cselect_b32 s71, 0xffff000c, 0xffff000f") if False else None
        p("s_cselect_b32 s71, 12, 15")
        p("s_bfe_u32 s29, s2, 0x30003")
        p(f"s_mul_i32 s29, s29, {5*40960}")
        for j in range(5): p(f"s_add_u32 {s(24+j)}, s29, {WS_WF + j*40960}")
        p(f"s_mul_i32 s29, {s(sWV)}, 5120")
        p("v_lshlrev_b32 v248, 4, v2")
        p("v_add_u32 v248, s29, v248")
        p(f"s_mul_i32 s29, {s(sWV)}, {NWL*1024}")
        p(f"s_add_u32 s29, s29, {LDSW}")
        p("s_waitcnt vmcnt(0)")
        p("s_barrier")
        stamp(p, 7)
        p(f"s_cmp_lg_u32 {s(sWV)}, 0")
        p("s_cbranch_scc1 S1_touch")
        p(f"v_readfirstlane_b32 {s(sNON)}, v205")
        p(f"s_mov_b32 s95, {SPIN}")
        p.label("S1_tag")
        p(f"s_cmp_lg_u32 {s(sNON)}, 0")
        p("s_cbranch_scc1 S1_havetag")
        p("s_sub_u32 s95, s95, 1")
        p("s_cmp_eq_u32 s95, 0")
        p("s_cbranch_scc1 S1_havetag")
        p("s_sleep 1")
        p("v_mov_b32 v232, 0")
        p.raw("    global_load_dword v205, v232, s[96:97] sc1")
        p.raw("    s_waitcnt vmcnt(0)")
        p(f"v_readfirstlane_b32 {s(sNON)}, v205")
        p("s_branch S1_tag")
        p.label("S1_havetag")
        p(f"v_mov_b32 v232, {LDS_RED + 8192}")
        p("v_mov_b32 v233, 0")
        p.raw("    ds_write_b32 v232, v233")
        p("s_lshl_b32 s72, s2, 7")
        p("s_add_u32 s72, s72, s70")
        p(f"v_mov_b32 v232, {s(sNON)}")
        p("v_mov_b32 v233, 0")
        p("s_mov_b32 exec_lo, 1")
        p("s_mov_b32 exec_hi, 0")
        p.raw(f"    buffer_store_dword v232, v233, {s(SWS,4)}, s72 offen sc1")
        poll([237], "s70", "s71")
        p.raw("    s_waitcnt lgkmcnt(0)")
        p("s_branch S1_skip")
        p.label("S1_touch")
        p("s_lshr_b32 s74, s2, 3")
        p("s_mul_i32 s74, s74, 51200")
        p(f"s_sub_u32 s75, {s(sWV)}, 1")
        p("s_lshl_b32 s75, s75, 13")
        p("v_lshlrev_b32 v246, 7, v2")
        p("v_add_u32 v246, s75, v246")
        p("v_min_u32 v246, 51072, v246")
        p(f"s_add_u32 s74, s74, {WS_WF}")
        if os.environ.get('TOUCH', '0') == '1': p.raw(f"    buffer_load_dword v247, v246, {s(SWS,4)}, s74 offen")
        p.label("S1_skip")
        p("s_barrier")
        stamp(p, 8)
    def pre_all():
        p(f"s_cmp_lg_u32 {s(sWV)}, 0")
        p("s_cbranch_scc1 SM_skip")
        for k in range(4): p.raw(f"    buffer_load_dword {v(242+k)}, {v(238+k)}, {s(SWS,4)}, s70 offen sc1")
        p.label("SM_skip")
    def gateB():
        p(f"s_cmp_lg_u32 {s(sWV)}, 0")
        p("s_cbranch_scc1 SA_done")
        p.raw("    s_waitcnt vmcnt(0)")
        for k in range(4): p(f"v_xor_b32 {v(242+k)}, {s(sNON)}, {v(242+k)}")
        p("v_or3_b32 v242, v242, v243, v244")
        p("v_or_b32 v242, v242, v245")
        p("v_cmp_ne_u32 vcc, 0, v242")
        p("s_nop 4")
        p("s_cbranch_vccz SA_skip")
        poll([238, 239, 240, 241], "s70", "-1", "-1", setexec=False)
        p.label("SA_skip")
        p(f"v_mov_b32 v232, {LDS_RED + 8192}")
        p("v_mov_b32 v233, 1")
        p.raw("    ds_write_b32 v232, v233")
        p.raw("    s_waitcnt lgkmcnt(0)")
        p.label("SA_done")
    def waitB():
        p(f"v_mov_b32 v232, {LDS_RED + 8192}")
        p(f"s_mov_b32 s95, {SPIN*8}")
        p("s_waitcnt lgkmcnt(0)")
        p.label("WB_loop")
        p.raw("    ds_read_b32 v233, v232")
        p.raw("    s_waitcnt lgkmcnt(0)")
        p("v_readfirstlane_b32 s73, v233")
        p("s_sub_u32 s95, s95, 1")
        p("s_cmp_eq_u32 s95, 0")
        p("s_cbranch_scc1 WB_out")
        p("s_cmp_eq_u32 s73, 0")
        p("s_cbranch_scc0 WB_out")
        p("s_sleep 1")
        p("s_branch WB_loop")
        p.label("WB_out")
    emit_p2(p, dict(sync1=sync1, pre_all=pre_all, gateB=gateB, waitB=waitB, wdma=wdma))
    S = dict(RT=17, CT=18, A=40, B=44, t0=36, t1=37, T0=38, OB=39)
    p("s_mov_b32 s30, s29")
    p("s_load_dwordx2 s[4:5], s[0:1], 56")
    p3_setup(p, sWV, S)
    p("s_and_b32 s50, s2, 3")
    p("s_lshl_b32 s50, s50, 6")
    p("s_bfe_u32 s51, s2, 0x10002")
    p("s_lshl_b32 s51, s51, 2")
    p("s_add_u32 s50, s50, s51")
    p("v_and_b32 v1, 7, v2")
    p("v_lshlrev_b32 v1, 3, v1")
    p("v_bfe_u32 v3, v2, 3, 2")
    p("v_add3_u32 v1, v1, v3, s50")
    p("v_lshlrev_b32 v237, 7, v1")
    p(f"s_add_u32 s70, s70, 32768")
    p("s_lshl_b32 s72, s2, 7")
    p("s_add_u32 s72, s72, s70")
    p(f"v_mov_b32 v232, {s(sNON)}")
    p("v_mov_b32 v233, 0")
    p("s_waitcnt lgkmcnt(0)")
    srd(p, 12, 4, 2048*1280)
    p("s_waitcnt vmcnt(0)")
    p("s_barrier")
    stamp(p, 18)
    p(f"s_cmp_lg_u32 {s(sWV)}, 0")
    p("s_cbranch_scc1 S2_a")
    p("s_mov_b32 exec_lo, 1")
    p("s_mov_b32 exec_hi, 0")
    p.raw(f"    buffer_store_dword v232, v233, {s(SWS,4)}, s72 offen sc1")
    p("s_mov_b32 exec_lo, -1")
    p("s_mov_b32 exec_hi, -1")
    p.label("S2_a")
    if NWL:
        p(f"v_add_u32 v1, s30, {v(P3_V+4)}")
        for f in range(NWL): p(f"ds_read_b128 {v(P3_W+4*f,4)}, v1 offset:{f*1024}")
    for f in range(NWL, 20):
        ks, j = divmod(f, 5)
        p(f"buffer_load_dwordx4 {v(P3_W+4*f,4)}, {v(P3_V)}, {s(SWS,4)}, {s(S['B']+j)} offen offset:{ks*1024} sc1")
    p("s_waitcnt lgkmcnt(0)")
    p(f"s_cmp_lg_u32 {s(sWV)}, 0")
    p("s_cbranch_scc1 S2_skip")
    poll([237], "s70", "-1", "0")
    p.label("S2_skip")
    p("s_barrier")
    stamp(p, 19)
    if STAMP:
        stamp_flush(p, 0, SWS, 8, sWV)
        p("s_mov_b32 exec_lo, -1"); p("s_mov_b32 exec_hi, -1")
        p.stv = 3
    p3_main(p, sWV, SWS, 12, S, 'sc1')
    stamp(p, 6)
    if STAMP: p("s_waitcnt vmcnt(0)")
    stamp(p, 7)
    stamp_flush(p, 2, SWS, 8, sWV)
    p.label("K1_end")
    p("s_endpgm")
    p.pad()
    return p.text(), dict(name=name, vgpr=256, sgpr=100, grid=256, block=512, lds=163840)
```

```python
import os
from asmlib import *
from gen import *
from gen1 import emit_p1
from gen23 import emit_p2, WS_FLG, LDS_RED
from gen3 import *

def gen_fused(name):
    p = Prog()
    header(p, name)
    p.stv = 231
    SWS, sWV, sNON = 20, 33, 94
    SPIN = 200000
    NWL = int(os.environ.get('NWL', '11')); LDSW = 70656
    def wdma():
        out = []
        for f in range(NWL):
            ks, j = divmod(f, 5)
            out.append([f"s_add_u32 m0, s29, {f*1024 - ks*1024}", "s_nop 0",
                        f"buffer_load_dwordx4 v248, {s(SWS,4)}, {s(24+j)} offen offset:{ks*1024} sc1 lds"])
        return out
    cnt = [0]
    def poll(voffs, sbase, lo, hi=0, setexec=True):
        cnt[0] += 1
        L = f"POLL{cnt[0]}"
        if setexec:
            p(f"s_mov_b32 exec_lo, {lo}")
            p(f"s_mov_b32 exec_hi, {hi}")
        p(f"s_mov_b32 s95, {SPIN}")
        p.label(L)
        for k, vo in enumerate(voffs):
            p.raw(f"    buffer_load_dword {v(232+k)}, {v(vo)}, {s(SWS,4)}, {sbase} offen sc1")
        p.raw("    s_waitcnt vmcnt(0)")
        p(f"v_xor_b32 v232, {s(sNON)}, v232")
        for k in range(1, len(voffs)):
            p(f"v_xor_b32 {v(232+k)}, {s(sNON)}, {v(232+k)}")
            p(f"v_or_b32 v232, v232, {v(232+k)}")
        p("v_cmp_ne_u32 vcc, 0, v232")
        p("s_sub_u32 s95, s95, 1")
        p("s_cmp_eq_u32 s95, 0")
        p(f"s_cbranch_scc1 {L}_out")
        p("s_nop 2")
        p(f"s_cbranch_vccz {L}_out")
        p("s_sleep 1")
        p(f"s_branch {L}")
        p.label(f"{L}_out")
        p("s_mov_b32 exec_lo, -1")
        p("s_mov_b32 exec_hi, -1")
    def publish(which):
        pass
    emit_p1(p, True)
    def sync1(sH, sR):
        p(f"s_lshr_b32 s36, {s(sH)}, 2")
        p(f"s_lshl_b32 s37, {s(sR)}, 1")
        p("s_sub_u32 s37, s37, 2")
        p("v_add_u32 v236, s37, v2")
        p("v_and_b32 v237, 7, v236")
        p("v_lshlrev_b32 v237, 5, v237")
        p("v_bfe_u32 v236, v236, 3, 1")
        p("v_lshl_add_u32 v237, v236, 2, v237")
        p("s_and_b32 s38, s36, 1")
        p("s_lshl_b32 s38, s38, 3")
        p("s_lshr_b32 s36, s36, 1")
        p("s_add_u32 s38, s38, s36")
        p("v_add_u32 v237, s38, v237")
        p("v_lshlrev_b32 v237, 7, v237")
        p("v_lshlrev_b32 v238, 7, v2")
        p("v_add_u32 v239, 8192, v238")
        p("v_add_u32 v240, 16384, v238")
        p("v_add_u32 v241, 24576, v238")
        p(f"s_mov_b32 s70, {WS_FLG}")
        p(f"s_cmp_eq_u32 {s(sR)}, 0")
        p("s_cselect_b32 s71, 0xffff000c, 0xffff000f") if False else None
        p("s_cselect_b32 s71, 12, 15")
        p("s_bfe_u32 s29, s2, 0x30003")
        p(f"s_mul_i32 s29, s29, {5*40960}")
        for j in range(5): p(f"s_add_u32 {s(24+j)}, s29, {WS_WF + j*40960}")
        p(f"s_mul_i32 s29, {s(sWV)}, 5120")
        p("v_lshlrev_b32 v248, 4, v2")
        p("v_add_u32 v248, s29, v248")
        p(f"s_mul_i32 s29, {s(sWV)}, {NWL*1024}")
        p(f"s_add_u32 s29, s29, {LDSW}")
        p("s_waitcnt vmcnt(0)")
        p("s_barrier")
        stamp(p, 7)
        p(f"s_cmp_lg_u32 {s(sWV)}, 0")
        p("s_cbranch_scc1 S1_touch")
        p(f"v_readfirstlane_b32 {s(sNON)}, v205")
        p(f"s_mov_b32 s95, {SPIN}")
        p.label("S1_tag")
        p(f"s_cmp_lg_u32 {s(sNON)}, 0")
        p("s_cbranch_scc1 S1_havetag")
        p("s_sub_u32 s95, s95, 1")
        p("s_cmp_eq_u32 s95, 0")
        p("s_cbranch_scc1 S1_havetag")
        p("s_sleep 1")
        p("v_mov_b32 v232, 0")
        p.raw("    global_load_dword v205, v232, s[96:97] sc1")
        p.raw("    s_waitcnt vmcnt(0)")
        p(f"v_readfirstlane_b32 {s(sNON)}, v205")
        p("s_branch S1_tag")
        p.label("S1_havetag")
        p(f"v_mov_b32 v232, {LDS_RED + 8192}")
        p("v_mov_b32 v233, 0")
        p.raw("    ds_write_b32 v232, v233")
        p("s_lshl_b32 s72, s2, 7")
        p("s_add_u32 s72, s72, s70")
        p(f"v_mov_b32 v232, {s(sNON)}")
        p("v_mov_b32 v233, 0")
        p("s_mov_b32 exec_lo, 1")
        p("s_mov_b32 exec_hi, 0")
        p.raw(f"    buffer_store_dword v232, v233, {s(SWS,4)}, s72 offen sc1")
        poll([237], "s70", "s71")
        p.raw("    s_waitcnt lgkmcnt(0)")
        p("s_branch S1_skip")
        p.label("S1_touch")
        p("s_lshr_b32 s74, s2, 3")
        p("s_mul_i32 s74, s74, 51200")
        p(f"s_sub_u32 s75, {s(sWV)}, 1")
        p("s_lshl_b32 s75, s75, 13")
        p("v_lshlrev_b32 v246, 7, v2")
        p("v_add_u32 v246, s75, v246")
        p("v_min_u32 v246, 51072, v246")
        p(f"s_add_u32 s74, s74, {WS_WF}")
        if os.environ.get('TOUCH', '0') == '1': p.raw(f"    buffer_load_dword v247, v246, {s(SWS,4)}, s74 offen")
        p.label("S1_skip")
        p("s_barrier")
        stamp(p, 8)
    def pre_all():
        p(f"s_cmp_lg_u32 {s(sWV)}, 0")
        p("s_cbranch_scc1 SM_skip")
        for k in range(4): p.raw(f"    buffer_load_dword {v(242+k)}, {v(238+k)}, {s(SWS,4)}, s70 offen sc1")
        p.label("SM_skip")
    def gateB():
        p(f"s_cmp_lg_u32 {s(sWV)}, 0")
        p("s_cbranch_scc1 SA_done")
        p.raw("    s_waitcnt vmcnt(0)")
        for k in range(4): p(f"v_xor_b32 {v(242+k)}, {s(sNON)}, {v(242+k)}")
        p("v_or3_b32 v242, v242, v243, v244")
        p("v_or_b32 v242, v242, v245")
        p("v_cmp_ne_u32 vcc, 0, v242")
        p("s_nop 4")
        p("s_cbranch_vccz SA_skip")
        poll([238, 239, 240, 241], "s70", "-1", "-1", setexec=False)
        p.label("SA_skip")
        p(f"v_mov_b32 v232, {LDS_RED + 8192}")
        p("v_mov_b32 v233, 1")
        p.raw("    ds_write_b32 v232, v233")
        p.raw("    s_waitcnt lgkmcnt(0)")
        p.label("SA_done")
    def waitB():
        p(f"v_mov_b32 v232, {LDS_RED + 8192}")
        p(f"s_mov_b32 s95, {SPIN*8}")
        p("s_waitcnt lgkmcnt(0)")
        p.label("WB_loop")
        p.raw("    ds_read_b32 v233, v232")
        p.raw("    s_waitcnt lgkmcnt(0)")
        p("v_readfirstlane_b32 s73, v233")
        p("s_sub_u32 s95, s95, 1")
        p("s_cmp_eq_u32 s95, 0")
        p("s_cbranch_scc1 WB_out")
        p("s_cmp_eq_u32 s73, 0")
        p("s_cbranch_scc0 WB_out")
        p("s_sleep 1")
        p("s_branch WB_loop")
        p.label("WB_out")
    emit_p2(p, dict(sync1=sync1, pre_all=pre_all, gateB=gateB, waitB=waitB, wdma=wdma))
    S = dict(RT=17, CT=18, A=40, B=44, t0=36, t1=37, T0=38, OB=39)
    p("s_mov_b32 s30, s29")
    p("s_load_dwordx2 s[4:5], s[0:1], 56")
    p3_setup(p, sWV, S)
    p("s_and_b32 s50, s2, 3")
    p("s_lshl_b32 s50, s50, 6")
    p("s_bfe_u32 s51, s2, 0x10002")
    p("s_lshl_b32 s51, s51, 2")
    p("s_add_u32 s50, s50, s51")
    p("v_and_b32 v1, 7, v2")
    p("v_lshlrev_b32 v1, 3, v1")
    p("v_bfe_u32 v3, v2, 3, 2")
    p("v_add3_u32 v1, v1, v3, s50")
    p("v_lshlrev_b32 v237, 7, v1")
    p(f"s_add_u32 s70, s70, 32768")
    p("s_lshl_b32 s72, s2, 7")
    p("s_add_u32 s72, s72, s70")
    p(f"v_mov_b32 v232, {s(sNON)}")
    p("v_mov_b32 v233, 0")
    p("s_waitcnt lgkmcnt(0)")
    srd(p, 12, 4, 2048*1280)
    p("s_waitcnt vmcnt(0)")
    p("s_barrier")
    stamp(p, 18)
    p(f"s_cmp_lg_u32 {s(sWV)}, 0")
    p("s_cbranch_scc1 S2_a")
    p("s_mov_b32 exec_lo, 1")
    p("s_mov_b32 exec_hi, 0")
    p.raw(f"    buffer_store_dword v232, v233, {s(SWS,4)}, s72 offen sc1")
    p("s_mov_b32 exec_lo, -1")
    p("s_mov_b32 exec_hi, -1")
    p.label("S2_a")
    if NWL:
        p(f"v_add_u32 v1, s30, {v(P3_V+4)}")
        for f in range(NWL): p(f"ds_read_b128 {v(P3_W+4*f,4)}, v1 offset:{f*1024}")
    for f in range(NWL, 20):
        ks, j = divmod(f, 5)
        p(f"buffer_load_dwordx4 {v(P3_W+4*f,4)}, {v(P3_V)}, {s(SWS,4)}, {s(S['B']+j)} offen offset:{ks*1024} sc1")
    p("s_waitcnt lgkmcnt(0)")
    p(f"s_cmp_lg_u32 {s(sWV)}, 0")
    p("s_cbranch_scc1 S2_skip")
    poll([237], "s70", "-1", "0")
    p.label("S2_skip")
    p("s_barrier")
    stamp(p, 19)
    if STAMP and os.environ.get('DBGOUT'):
        sel = (0, 1, 3, 4, 5, 6, 7, 8, 10, 12, 17, 18, 19)
        for i, ln in enumerate(sel):
            p(f"v_readlane_b32 {s(76+i)}, {v(p.stv)}, {ln}")
    if STAMP:
        stamp_flush(p, 0, SWS, 8, sWV)
        p("s_mov_b32 exec_lo, -1"); p("s_mov_b32 exec_hi, -1")
        p.stv = 3
    p3_main(p, sWV, SWS, 12, S, 'sc1')
    stamp(p, 6)
    if STAMP: p("s_waitcnt vmcnt(0)")
    stamp(p, 7)
    if STAMP and os.environ.get('DBGOUT'):
        p(f"s_sub_u32 s34, s2, {int(os.environ['DBGOUT'])}")
        p(f"s_or_b32 s34, s34, {s(sWV)}")
        p("s_cmp_lg_u32 s34, 0")
        p("s_cbranch_scc1 DBG_skip")
        p(f"v_readlane_b32 s89, {v(p.stv)}, 24")
        p(f"v_readlane_b32 s90, {v(p.stv)}, 7")
        for i in range(1, 15):
            p(f"s_sub_u32 s34, {s(76+i)}, s76")
            p(f"v_writelane_b32 v20, s34, {i}")
        p("v_mbcnt_lo_u32_b32 v21, -1, 0")
        p("v_lshlrev_b32 v21, 2, v21")
        p("s_mov_b32 exec_lo, 0x7ffe")
        p("s_mov_b32 exec_hi, 0")
        p("global_store_dword v21, v20, s[96:97]")
        p("s_mov_b32 exec_lo, -1")
        p("s_mov_b32 exec_hi, -1")
        p.label("DBG_skip")
    stamp_flush(p, 2, SWS, 8, sWV)
    p.label("K1_end")
    p("s_endpgm")
    p.pad()
    return p.text(), dict(name=name, vgpr=256, sgpr=100, grid=256, block=512, lds=163840)
```

```python
from asmlib import *
from gen import *
import os

KVP_STRIDE = 2304

def gen_k1():
    p = Prog()
    header(p, "k1_kernel")
    p.stv = 206
    emit_p1(p, False)
    p.pad()
    return p.text(), dict(name="k1_kernel", vgpr=207, sgpr=100, grid=256, block=512, lds=147456)

def emit_p1(p, fused):
    SX, SW, SWS, SWO, SGW = 12, 16, 20, 68, 72
    sRT, sHG, sBR, sKC, sOX, sOW, sWV = 24, 25, 26, 28, 29, 30, 33
    sMH, sNG = 41, 42
    sINIT, sSCL, sFLG = 44, 48, 52
    sM0X, sM0W = 56, 57
    IMG = 49152
    p("s_cmp_ge_u32 s2, 256")
    p("s_cbranch_scc1 K1_end")
    stamp(p, 0)
    p("s_load_dwordx4 s[4:7], s[0:1], 0")
    p("s_load_dwordx2 s[8:9], s[0:1], 32")
    p("s_load_dwordx2 s[10:11], s[0:1], 72")
    p("s_load_dwordx2 s[76:77], s[0:1], 16")
    p("s_load_dwordx4 s[80:83], s[0:1], 40")
    if fused: p("s_load_dwordx2 s[96:97], s[0:1], 64")
    p("v_lshrrev_b32 v1, 6, v0")
    p("v_and_b32 v2, 63, v0")
    p(f"v_readfirstlane_b32 {s(sWV)}, v1")
    p("s_and_b32 s34, s2, 7")
    p("s_lshr_b32 s35, s2, 3")
    p("s_lshr_b32 s36, s34, 2")
    p("s_and_b32 s37, s34, 3")
    p("s_lshr_b32 s58, s35, 2")
    p("s_and_b32 s59, s35, 3")
    p(f"s_lshl_b32 {s(sRT)}, s36, 3")
    p(f"s_add_u32 {s(sRT)}, {s(sRT)}, s58")
    p(f"s_lshr_b32 {s(sBR)}, s59, 1")
    p(f"s_and_b32 {s(sHG)}, s59, 1")
    p("s_lshl_b32 s40, s37, 1")
    p(f"s_add_u32 {s(sHG)}, {s(sHG)}, s40")
    p("s_lshl_b32 s43, s37, 2")
    p("s_add_u32 s43, s43, s59")
    vXO, vWO = 4, 6
    p("v_lshrrev_b32 v3, 3, v2")
    p("v_and_b32 v10, 7, v2")
    p("v_xor_b32 v10, v10, v3")
    p("v_lshlrev_b32 v10, 4, v10")
    p("s_movk_i32 s40, 1280")
    p(f"v_mad_u32_u24 {v(vXO)}, v3, s40, v10")
    p(f"s_lshl_b32 s34, {s(sRT)}, 7")
    p(f"s_lshl_b32 s35, {s(sWV)}, 4")
    p("s_add_u32 s34, s34, s35")
    p("s_mul_i32 s34, s34, 1280")
    p(f"v_add_u32 {v(vXO)}, s34, {v(vXO)}")
    p(f"v_add_u32 {v(vXO+1)}, 9216, {v(vXO)}")
    p("v_lshrrev_b32 v3, 5, v2")
    p("v_bfe_u32 v10, v2, 1, 4")
    p("v_and_b32 v11, 1, v2")
    p("v_lshlrev_b32 v11, 4, v11")
    p("s_movk_i32 s35, 3840")
    p("v_mad_u32_u24 v11, v3, s35, v11")
    p(f"s_and_b32 s36, {s(sWV)}, 1")
    p("s_lshl_b32 s36, s36, 2")
    p(f"s_mul_i32 s37, {s(sWV)}, {8*3840}")
    p(f"s_mul_i32 s38, {s(sHG)}, 160")
    p("s_add_u32 s37, s37, s38")
    p("v_mov_b32 v16, 0x40000000")
    for i in range(2):
        p(f"v_or_b32 v12, s36, v3")
        if i: p("v_or_b32 v12, 2, v12")
        p("v_xor_b32 v12, v12, v10")
        p("v_mul_u32_u24 v13, 52, v12")
        p("v_lshrrev_b32 v13, 8, v13")
        p("v_mul_u32_u24 v14, 5, v13")
        p("v_sub_u32 v14, v12, v14")
        p("v_lshl_add_u32 v14, v14, 5, v11")
        p("v_mad_u32_u24 v14, v13, s40, v14")
        p(f"v_add_u32 v14, s37, v14")
        if i: p(f"v_add_u32 v14, {2*3840-1024}, v14")
        p("v_cmp_eq_u32 vcc, 15, v12")
        p(f"v_cndmask_b32 {v(vWO+i)}, v14, v16, vcc")
        p(f"v_add_u32 {v(vWO+2+i)}, 13312, {v(vWO+i)}")
    p(f"s_lshl_b32 {s(sM0X)}, {s(sWV)}, 11")
    p(f"s_lshl_b32 {s(sM0W)}, {s(sWV)}, 12")
    p(f"s_add_u32 {s(sM0W)}, {s(sM0W)}, 16384")
    ROTG = int(os.environ.get('ROTG', '4'))
    if ROTG == 10:
        p(f"s_mul_i32 {s(sKC)}, s59, 3")
        p(f"s_add_u32 {s(sKC)}, {s(sKC)}, s58")
        p(f"s_sub_u32 s34, {s(sKC)}, 10")
        p(f"s_cmp_ge_u32 {s(sKC)}, 10")
        p(f"s_cselect_b32 {s(sKC)}, s34, {s(sKC)}")
    else:
        mg = {3: 86, 4: 64, 5: 52, 2: 128}[ROTG]
        p("s_add_u32 s34, s58, s59")
        p(f"s_mul_i32 s35, s34, {mg}")
        p("s_lshr_b32 s35, s35, 8")
        p(f"s_mul_i32 s35, s35, {ROTG}")
        p("s_sub_u32 s34, s34, s35")
        p("s_mul_i32 s34, s34, 10")
        p(f"s_mul_i32 s34, s34, {mg}")
        p(f"s_lshr_b32 {s(sKC)}, s34, 8")
    p(f"s_lshl_b32 {s(sOX)}, {s(sKC)}, 7")
    p(f"s_mul_i32 {s(sOW)}, {s(sKC)}, 245760")
    p(f"s_mov_b32 m0, {s(sM0X)}")
    p("s_waitcnt lgkmcnt(0)")
    srd(p, SX, 4, 2048*1280)
    p(f"s_cmp_eq_u32 {s(sBR)}, 0")
    p("s_cselect_b32 s6, s6, s8")
    p("s_cselect_b32 s7, s7, s9")
    srd(p, SW, 6, 640*3840)
    tags = {}
    def issue_steps(st):
        slot = (st % 3) * 49152
        g = []
        first = [] if st == 0 else [f"s_add_u32 m0, {s(sM0X)}, {slot}", "s_nop 0"]
        g.append(first + [f"buffer_load_dwordx4 {v(vXO)}, {s(SX,4)}, {s(sOX)} offen lds"])
        g.append([f"buffer_load_dwordx4 {v(vXO+1)}, {s(SX,4)}, {s(sOX)} offen offset:1024 lds"])
        g.append([f"s_add_u32 m0, {s(sM0W)}, {slot}", f"s_add_u32 {s(sOX)}, {s(sOX)}, 128",
                  f"buffer_load_dwordx4 {v(vWO)}, {s(SW,4)}, {s(sOW)} offen lds"])
        for i in range(1, 4):
            g.append([f"buffer_load_dwordx4 {v(vWO+i)}, {s(SW,4)}, {s(sOW)} offen offset:{i*1024} lds"])
        g[-1] += [('tag', st)]
        if st < 9:
            g[-1] += [f"s_add_u32 {s(sOW)}, {s(sOW)}, 245760", f"s_add_u32 {s(sKC)}, {s(sKC)}, 1", f"s_cmp_eq_u32 {s(sKC)}, 10",
                      f"s_cselect_b32 {s(sOX)}, 0, {s(sOX)}", f"s_cselect_b32 {s(sOW)}, 0, {s(sOW)}"]
        return g
    def emit(t):
        if isinstance(t, tuple) and t[0] == 'raw': p.raw("    " + t[1])
        elif isinstance(t, tuple) and t[0] == 'label': p.label(t[1])
        elif isinstance(t, tuple): tags[t[1]] = p.vmtag()
        elif isinstance(t, list):
            for x in t: emit(x)
        else: p(t)
    def issue(st):
        for g in issue_steps(st): emit(g)
    stamp(p, 1)
    issue(0)
    srd(p, SWS, 10, WS_SIZE)
    p("s_getpc_b64 s[60:61]")
    p.label("K1_pc")
    p(f"s_lshl_b32 s34, {s(sWV)}, 13")
    p("v_lshlrev_b32 v26, 7, v2")
    p("v_add_u32 v26, s34, v26")
    p("v_min_u32 v26, CODE_END-K1_pc-4, v26")
    p("global_load_dword v31, v26, s[60:61]")
    if fused:
        p(f"s_or_b32 s34, s2, {s(sWV)}")
        p("s_cmp_lg_u32 s34, 0")
        p("s_cbranch_scc1 P1_notag")
        p("s_memrealtime s[94:95]")
        p("v_mov_b32 v30, 0")
        p("s_waitcnt lgkmcnt(0)")
        p("s_or_b32 s94, s94, 1")
        p("v_mov_b32 v1, s94")
        p("s_mov_b32 exec_lo, 1")
        p("s_mov_b32 exec_hi, 0")
        p.raw("    global_store_dword v30, v1, s[96:97] sc1")
        p("s_mov_b32 exec_lo, -1")
        p("s_mov_b32 exec_hi, -1")
        p.label("P1_notag")
    stamp(p, 2)
    p(f"s_lshr_b32 {s(sMH)}, {s(sWV)}, 2")
    p(f"s_and_b32 {s(sNG)}, {s(sWV)}, 3")
    vXA = [10, 12, 14]; vWA = [16, 20, 24]
    vG, vM = 28, 29
    p(f"v_lshrrev_b32 {v(vG)}, 4, v2")
    p(f"v_and_b32 {v(vM)}, 15, v2")
    p("v_and_b32 v3, 7, v2")
    p(f"v_xor_b32 v3, v3, {v(vG)}")
    p("v_lshlrev_b32 v3, 4, v3")
    p(f"v_lshl_add_u32 v3, {v(vM)}, 7, v3")
    p(f"s_lshl_b32 s34, {s(sMH)}, 13")
    p(f"v_add_u32 {v(vXA[0])}, s34, v3")
    p(f"v_xor_b32 {v(vXA[0]+1)}, 64, {v(vXA[0])}")
    p("v_bfe_u32 v3, v2, 2, 2")
    p(f"v_and_b32 v1, 1, {v(vG)}")
    p("v_lshl_or_b32 v1, v1, 2, v3")
    p(f"v_lshl_add_u32 v30, {v(vG)}, 3, v3")
    p("v_lshlrev_b32 v30, 9, v30")
    p("v_and_b32 v3, 3, v2")
    p("v_lshl_add_u32 v30, v3, 3, v30")
    p("v_add_u32 v30, 16384, v30")
    for jj in range(4):
        p(f"s_add_u32 s35, {s(sNG)}, {4*jj}")
        p(f"v_xor_b32 v3, s35, v1")
        p(f"v_lshl_add_u32 {v(vWA[0]+jj)}, v3, 5, v30")
        p("s_sub_u32 s36, s35, 5")
        p("s_cmp_lt_u32 s36, 5")
        p(f"s_cselect_b32 {s(sFLG+jj)}, {s(sBR)}, 0")
        p(f"s_mul_i32 {s(sINIT+jj)}, {s(sFLG+jj)}, {f32(EPS)}")
        p("s_cmp_lt_u32 s35, 5")
        p("s_cselect_b32 s36, 1, 0")
        p(f"s_andn2_b32 {s(sSCL+jj)}, s36, {s(sBR)}")
    for sl in (1, 2):
        for k in range(2): p(f"v_add_u32 {v(vXA[sl]+k)}, {sl*49152}, {v(vXA[0]+k)}")
        for k in range(4): p(f"v_add_u32 {v(vWA[sl]+k)}, {sl*49152}, {v(vWA[0]+k)}")
    ACC = 32
    FX = [96, 128]; FW = [112, 144]
    for jj in range(4):
        for k in range(16):
            p(f"v_mov_b32 {v(ACC+jj*16+k)}, {s(sINIT+jj) if jj in (1,2) else 0}")
    issue(1)
    def rdx(st, ks, i): return f"ds_read_b128 {v(FX[ks]+4*i,4)}, {v(vXA[st%3]+ks)} offset:{i*2048}"
    def rdw(st, ks, jj, h): return f"ds_read_b64_tr_b16 {v(FW[ks]+4*jj+2*h,2)}, {v(vWA[st%3]+jj)} offset:{ks*16384+h*2048}"
    def mm(ks, jj, i):
        A = ACC + (jj*4+i)*4
        p(f"v_mfma_f32_16x16x32_bf16 {v(A,4)}, {v(FW[ks]+4*jj,4)}, {v(FX[ks]+4*i,4)}, {v(A,4)}")
    def readlist(st, ks, order=(0,1,2,3)):
        L = [rdw(st,ks,order[0],0), rdw(st,ks,order[0],1)]
        for i in range(4): L.append(rdx(st,ks,i))
        for jj in order[1:]:
            L.append(rdw(st,ks,jj,0)); L.append(rdw(st,ks,jj,1))
        return L
    GX, GWt, A0, WOR, WOH, vW0, vW1, vT0, vT1, vL16 = 160, 166, 172, 192, 196, 200, 201, 202, 203, 204
    sGR, sJOB, sWFo = 84, 85, 86
    F = {k: [] for k in range(20)}
    f = F[1]
    f += [f"v_lshlrev_b32 {v(vL16)}, 4, v2",
          f"s_lshl_b32 {s(sJOB)}, s2, 3", f"s_add_u32 {s(sJOB)}, {s(sJOB)}, {s(sWV)}",
          [f"s_cmp_ge_u32 {s(sJOB)}, 800", "s_cselect_b32 s76, s80, s76", "s_cselect_b32 s77, s81, s77",
           "s_cselect_b32 s87, 800, 0", "s_cselect_b32 s88, 20, 0"],
          f"s_mov_b32 {s(SWO)}, s76", f"s_and_b32 {s(SWO+1)}, s77, 0xffff", f"s_mov_b32 {s(SWO+2)}, {640*1280}", f"s_mov_b32 {s(SWO+3)}, 0x20000",
          f"s_mov_b32 {s(SGW)}, s82", f"s_and_b32 {s(SGW+1)}, s83, 0xffff", f"s_mov_b32 {s(SGW+2)}, 1280", f"s_mov_b32 {s(SGW+3)}, 0x20000",
          f"s_sub_u32 s87, {s(sJOB)}, s87", "s_mul_i32 s89, s87, 1639", "s_lshr_b32 s89, s89, 16",
          "s_mul_i32 s90, s89, 40", "s_sub_u32 s90, s87, s90", "s_lshl_b32 s91, s89, 2"]
    f = F[2]
    f += [f"v_add_u32 {v(vT0)}, s91, {v(vG)}",
          f"v_lshrrev_b32 {v(vT1)}, 1, {v(vT0)}", f"v_mul_u32_u24 {v(vT1)}, 20, {v(vT1)}",
          f"v_and_b32 {v(vW0)}, 1, {v(vT0)}", f"v_lshl_add_u32 {v(vT1)}, {v(vW0)}, 2, {v(vT1)}",
          f"v_mul_u32_u24 {v(vW1)}, 40, {v(vT0)}", f"v_subrev_u32 {v(vW1)}, {40*64-16}, {v(vW1)}",
          f"v_cmp_gt_u32 vcc, 64, {v(vT0)}", f"v_mov_b32 {v(vT0)}, 20", None,
          f"v_cndmask_b32 {v(vW1)}, {v(vW1)}, {v(vT1)}, vcc", f"v_cndmask_b32_e64 {v(vT0)}, {v(vT0)}, 8, vcc",
          f"v_lshlrev_b32 {v(vT1)}, 1, {v(vM)}",
          f"v_mad_u32_u24 {v(vW0)}, {v(vW1)}, s40, {v(vT1)}",
          f"v_mad_u32_u24 {v(vW1)}, {v(vT0)}, s40, {v(vW0)}"]
    f = F[3]
    f += ["s_lshl_b32 s91, s90, 5", "s_mul_i32 s90, s90, 40", "s_add_u32 s90, s90, s88", "s_add_u32 s90, s90, s89",
          "s_lshl_b32 s90, s90, 10", f"s_add_u32 s90, s90, {WS_WF}",
          [f"s_cmp_ge_u32 {s(sJOB)}, 1600", "s_cselect_b32 s91, 0x40000000, s91", f"s_cselect_b32 {s(sWFo)}, 0x40000000, s90"],
          f"s_lshl_b32 {s(sGR)}, {s(sRT)}, 4", f"s_add_u32 {s(sGR)}, {s(sGR)}, s43", f"s_lshl_b32 {s(sGR)}, {s(sGR)}, 3",
          f"s_add_u32 {s(sGR)}, {s(sGR)}, {s(sWV)}", f"s_mul_i32 s92, {s(sGR)}, 1280", f"v_lshlrev_b32 {v(vT0)}, 2, v2"]
    f = F[6]
    for k in range(2):
        for q in range(2):
            f.append(f"buffer_load_ushort {v(WOR+2*k+q)}, {v(vW0+k)}, {s(SWO,4)}, s91 offen offset:{2560*q}")
            f.append(f"buffer_load_ushort {v(WOH+2*k+q)}, {v(vW0+k)}, {s(SWO,4)}, s91 offen offset:{2560*q+1280}")
    f += [f"buffer_load_dwordx4 {v(GX,4)}, {v(vL16)}, {s(SX,4)}, s92 offen",
          f"buffer_load_dword {v(GX+4)}, {v(vT0)}, {s(SX,4)}, s92 offen offset:1024",
          f"buffer_load_dwordx4 {v(GWt,4)}, {v(vL16)}, {s(SGW,4)}, 0 offen",
          f"buffer_load_dword {v(GWt+4)}, {v(vT0)}, {s(SGW,4)}, 0 offen offset:1024"]
    if fused:
        F[8] += ["v_mov_b32 v205, 0", "global_load_dword v205, v205, s[96:97] sc1"]
    f = F[12]
    for k in range(4): f.append(f"v_lshl_or_b32 {v(WOR+k)}, {v(WOH+k)}, 16, {v(WOR+k)}")
    f.append(f"buffer_store_dwordx4 {v(WOR,4)}, {v(vL16)}, {s(SWS,4)}, {s(sWFo)} offen {SC}")
    for k in range(5):
        f += [f"v_lshlrev_b32 {v(A0+4*k)}, 16, {v(GX+k)}", f"v_and_b32 {v(A0+4*k+1)}, 0xffff0000, {v(GX+k)}",
              f"v_lshlrev_b32 {v(A0+4*k+2)}, 16, {v(GWt+k)}", f"v_and_b32 {v(A0+4*k+3)}, 0xffff0000, {v(GWt+k)}"]
    f = F[13]
    for k in range(5):
        f += [f"v_mul_f32 {v(A0+4*k)}, {v(A0+4*k)}, {v(A0+4*k+2)}", f"v_mul_f32 {v(A0+4*k+1)}, {v(A0+4*k+1)}, {v(A0+4*k+3)}"]
    for k in range(5): f.append(f"v_cvt_pk_bf16_f32 {v(A0+4*k+2)}, {v(A0+4*k)}, {v(A0+4*k+1)}")
    f = F[14]
    for k in range(5):
        f += [f"v_lshlrev_b32 {v(A0+4*k)}, 16, {v(A0+4*k+2)}", f"v_and_b32 {v(A0+4*k+1)}, 0xffff0000, {v(A0+4*k+2)}"]
    for k in range(5): f.append(f"v_add_f32 {v(A0+4*k)}, {v(A0+4*k)}, {v(A0+4*k+1)}")
    G = A0
    f += [f"v_add_f32 {v(A0)}, {v(A0)}, {v(A0+4)}", f"v_add_f32 {v(A0+8)}, {v(A0+8)}, {v(A0+12)}",
          f"v_add_f32 {v(A0)}, {v(A0)}, {v(A0+16)}", f"v_add_f32 {v(A0)}, {v(A0)}, {v(A0+8)}"]
    f = F[15]
    for sh in (1, 2, 4, 8): f += [f"v_add_f32_dpp {v(G)}, {v(G)}, {v(G)} row_shr:{sh} row_mask:0xf bank_mask:0xf", None]
    f += [f"v_add_f32_dpp {v(G)}, {v(G)}, {v(G)} row_bcast:15 row_mask:0xa bank_mask:0xf", None,
          f"v_add_f32_dpp {v(G)}, {v(G)}, {v(G)} row_bcast:31 row_mask:0xc bank_mask:0xf",
          f"s_mov_b32 s62, {f32(LOG2E)}", f"s_mov_b32 s63, {f32(LOG2E)}",
          f"v_cvt_pk_bf16_f32 {v(G)}, {v(G)}, {v(G)}", f"v_lshlrev_b32 {v(G)}, 16, {v(G)}",
          f"v_mul_f32 {v(G)}, s62, {v(G)}", f"v_exp_f32 {v(G)}, -{v(G)}", None, f"v_add_f32 {v(G)}, 1.0, {v(G)}",
          f"v_rcp_f32 {v(G)}, {v(G)}", None, f"v_cvt_pk_bf16_f32 {v(G)}, {v(G)}, {v(G)}"]
    f = F[16]
    f += [f"v_lshlrev_b32 {v(G)}, 16, {v(G)}", f"v_sub_f32 {v(G+1)}, 1.0, {v(G)}",
          f"v_cvt_pk_bf16_f32 {v(G+1)}, {v(G+1)}, {v(G+1)}", f"v_lshlrev_b32 {v(G+1)}, 16, {v(G+1)}",
          f"s_lshl_b32 s92, {s(sGR)}, 3", f"s_add_u32 s92, s92, {WS_G}", f"v_mov_b32 {v(vT0)}, 0",
          ["s_mov_b32 exec_lo, 0", "s_mov_b32 exec_hi, 0x80000000",
           f"buffer_store_dwordx2 {v(G,2)}, {v(vT0)}, {s(SWS,4)}, s92 offen {SC}", "s_mov_b32 exec_lo, -1", "s_mov_b32 exec_hi, -1"]]
    vIM = 4
    f += [f"s_lshl_b32 s34, {s(sMH)}, 6", f"v_add_u32 v3, s34, {v(vM)}", f"s_lshl_b32 s34, {s(sNG)}, 2"]
    f = F[17]
    sPD = 58
    for jj in range(4):
        f += [[f"s_add_u32 s35, {s(sNG)}, {4*jj}", "s_cmp_ge_u32 s35, 5", f"s_cselect_b32 {s(sPD+jj)}, {s(sBR)}, 0",
               f"s_cmp_eq_u32 {s(sPD+jj)}, 1", "s_cselect_b32 s36, 0x1800, 0x1400" if False else "s_cselect_b32 s36, 6, 5",
               "s_cselect_b32 s37, 48, 40", f"s_cselect_b32 s39, {IMG - 4096}, {IMG}" if False else "s_cselect_b32 s39, 44, 48",
               "s_lshl_b32 s36, s36, 10", "s_lshl_b32 s39, s39, 10"],
              f"s_add_u32 s35, s34, {16*jj}", f"v_add_u32 v8, s35, {v(vG)}", "v_mul_u32_u24 v9, 52, v8", "v_lshrrev_b32 v9, 8, v9",
              "v_mul_u32_u24 v1, 5, v9", "v_sub_u32 v1, v8, v1", "v_lshlrev_b32 v1, 3, v1", "v_mad_u32_u24 v1, v3, s37, v1",
              "v_mad_u32_u24 v1, v9, s36, v1", f"v_add_u32 {v(vIM+jj)}, s39, v1"]
    f = F[18]
    f += ["v_lshrrev_b32 v8, 7, v0", "v_and_b32 v9, 127, v0", "v_mul_u32_u24 v9, 48, v9", "s_movk_i32 s36, 6144", "v_mad_u32_u24 v8, v8, s36, v9",
          f"v_mov_b32 {v(vT0)}, 0x3f80", f"v_mov_b32 {v(vT1)}, 0", f"v_mov_b32 {v(vW0)}, 0", f"v_mov_b32 {v(vW1)}, 0",
          f"v_add_u32 v8, {IMG + 20480}, v8",
          [f"s_cmp_eq_u32 {s(sBR)}, 0", "s_cbranch_scc1 K1_nopad",
           ('raw', f"ds_write_b64 v8, {v(vW0,2)} offset:40"), ('raw', f"ds_write_b64 v8, {v(vT0,2)} offset:{40+24576}"), ('label', 'K1_nopad')],
          f"s_mov_b32 s38, {f32(EPS)}", f"s_mov_b32 s64, {f32(QSCALE)}", f"s_mov_b32 s65, {f32(QSCALE)}",
          f"s_mul_i32 s93, {s(sWV)}, 640", f"v_add_u32 v30, s93, {v(vL16)}", f"v_add_u32 v31, {IMG}, v30",
          f"s_mul_i32 s93, {s(sHG)}, {4*81920}", f"s_mul_i32 s35, {s(sRT)}, 5120", "s_add_u32 s93, s93, s35",
          f"s_mul_i32 s35, {s(sBR)}, {3*0x300000}", "s_add_u32 s93, s93, s35"]
    def block(ks, L, steps, fill, order=(0,1,2,3), after=None):
        n = 0
        fill = list(fill)
        per = 2
        for jj in order:
            for i in range(4):
                mm(ks, jj, i)
                n += 1
                did = 0
                if L: p(L.pop(0)); did += 1
                if n % 2 == 0 and n >= 4 and steps: emit(steps.pop(0)); did += 1
                k = per - did if (L or steps) else per + 1
                left = 16 - n
                while fill and (k > 0 or len(fill) > left * (per + 1)):
                    t = fill.pop(0)
                    if t is None: break
                    emit(t); k -= 1
            if after: after(jj)
        for t in fill:
            if t is not None: emit(t)
        assert not L and not steps
    T = 160
    def epi(jj):
        A = ACC + jj*16
        if jj in (1, 2):
            p(f"s_cmp_eq_u32 {s(sFLG+jj)}, 0")
            p(f"s_cbranch_scc1 K1_nophi{jj}")
            for k in range(8): p(f"v_pk_mul_f32 {v(T+2*k,2)}, {v(A+2*k,2)}, s[62:63]")
            for k in range(16): p(f"v_exp_f32 {v(T+k)}, {v(T+k)} clamp")
            for k in range(16): p(f"v_max_f32 {v(A+k)}, s38, {v(A+k)}")
            for k in range(8): p(f"v_pk_add_f32 {v(A+2*k,2)}, {v(A+2*k,2)}, {v(T+2*k,2)}")
            p.label(f"K1_nophi{jj}")
        if jj in (0, 1):
            p(f"s_cmp_eq_u32 {s(sSCL+jj)}, 0")
            p(f"s_cbranch_scc1 K1_noscl{jj}")
            for k in range(8): p(f"v_pk_mul_f32 {v(A+2*k,2)}, {v(A+2*k,2)}, s[64:65]")
            p.label(f"K1_noscl{jj}")
        P = 96 + jj*8
        for k in range(8): p(f"v_cvt_pk_bf16_f32 {v(P+k)}, {v(A+2*k)}, {v(A+2*k+1)}")
        if jj == 0:
            for i in range(4): p(f"ds_write_b64 {v(vIM+jj)}, {v(P+2*i,2)} offset:{i*640}")
        else:
            p(f"s_cmp_eq_u32 {s(sPD+jj)}, 0")
            p(f"s_cbranch_scc1 K1_dn{jj}")
            for i in range(4): p(f"ds_write_b64 {v(vIM+jj)}, {v(P+2*i,2)} offset:{i*768}")
            p(f"s_branch K1_wr{jj}")
            p.label(f"K1_dn{jj}")
            for i in range(4): p.raw(f"    ds_write_b64 {v(vIM+jj)}, {v(P+2*i,2)} offset:{i*640}")
            p.label(f"K1_wr{jj}")
    if os.environ.get('EARLY', '0') == '1':
        for kf in (1, 2, 3, 6):
            for t in F[kf]:
                if t is not None: emit(t)
            F[kf] = []
        for a_, b_ in ((12, 6), (13, 7), (14, 8), (15, 9), (16, 10)):
            if a_ == 16:
                k_ = [i for i, t in enumerate(F[16]) if isinstance(t, str) and t.startswith(f"s_lshl_b32 s34, {s(sMH)}")][0]
                F[b_] = F[b_] + F[16][:k_]; F[16] = F[16][k_:]
            else:
                F[b_] = F[b_] + F[a_]; F[a_] = []
    p.wait_vm_tag(tags[0])
    p("s_barrier")
    stamp(p, 3)
    stampc(p, 30)
    for t in readlist(0, 0): p(t)
    issue(2)
    LAST = (1, 2, 0, 3)
    for st in range(10):
        block(0, readlist(st, 1, LAST if st == 9 else (0,1,2,3)), [], F[2*st])
        if st < 9:
            p.wait_vm_tag(tags[st+1], " lgkmcnt(0)")
            p("s_barrier")
            if STAMP > 1: stamp(p, 9 + st)
            block(1, readlist(st+1, 0), issue_steps(st+3) if st+3 <= 9 else [], F[2*st+1])
        else:
            def after(jj):
                k = LAST.index(jj)
                if k >= 1: epi(LAST[k-1])
            block(1, [], [], F[19], LAST, after)
            stamp(p, 4)
            stampc(p, 31)
            epi(LAST[3])
    p("s_waitcnt lgkmcnt(0)")
    p("s_barrier")
    stamp(p, 5)
    p("s_mov_b32 exec_hi, 0xff")
    D = 32
    def rdblk(b):
        p(f"ds_read_b128 {v(D+4*b,4)}, v31 offset:{b*5120}")
    def stblk(b):
        off = (b//4)*0x300000 + (b%4)*81920
        p(f"s_add_u32 s35, s93, {off}")
        p(f"buffer_store_dwordx4 {v(D+4*b,4)}, v30, {s(SWS,4)}, s35 offen {SC}")
    for b in range(4): rdblk(b)
    p(f"s_cmp_eq_u32 {s(sBR)}, 0")
    p("s_cbranch_scc0 K1_bpath")
    p.begin_cond()
    for b in range(4,12): rdblk(b)
    for b in range(12): stblk(b)
    if fused:
        p("s_mov_b32 exec_hi, -1")
        p("s_branch P1_end")
    else:
        stamp(p, 6)
        if STAMP: p("s_waitcnt vmcnt(0)")
        stamp(p, 7)
        stamp_flush(p, 0, SWS, 8, sWV)
        p("s_endpgm")
    p.end_cond()
    p.label("K1_bpath")
    p("s_waitcnt lgkmcnt(0)")
    for b in range(4): stblk(b)
    p("s_mov_b32 exec_hi, -1")
    p(f"s_cmp_gt_u32 {s(sWV)}, 3")
    p("s_cbranch_scc1 P1_end" if fused else "s_cbranch_scc1 K1_end")
    p("v_lshrrev_b32 v7, 5, v2")
    p("v_bfe_u32 v6, v2, 2, 2")
    p("v_lshl_add_u32 v5, v7, 3, v6")
    p("v_mul_u32_u24 v5, 48, v5")
    p("v_bfe_u32 v6, v2, 4, 1")
    p("v_lshl_add_u32 v5, v6, 5, v5")
    p("v_and_b32 v6, 3, v2")
    p("v_lshl_add_u32 v5, v6, 3, v5")
    p(f"s_mul_i32 s35, {s(sWV)}, 6144")
    p(f"s_add_u32 s35, s35, {IMG + 20480}")
    p("v_add_u32 v5, s35, v5")
    KV = 96
    Fr = 112
    for t in range(8):
        for h in range(2): p(f"ds_read_b64_tr_b16 {v(Fr+8*t+2*h,2)}, v5 offset:{t*768+h*192}")
        for h in range(2): p(f"ds_read_b64_tr_b16 {v(Fr+8*t+4+2*h,2)}, v5 offset:{24576+t*768+h*192}")
        if t >= 2:
            tt = t-2
            p(f"v_mfma_f32_32x32x16_bf16 {v(KV,16)}, {v(Fr+8*tt,4)}, {v(Fr+8*tt+4,4)}, {'0' if tt==0 else v(KV,16)}")
    for tt in (6,7):
        p(f"v_mfma_f32_32x32x16_bf16 {v(KV,16)}, {v(Fr+8*tt,4)}, {v(Fr+8*tt+4,4)}, {v(KV,16)}")
    p(f"s_lshl_b32 s34, {s(sHG)}, 2")
    p(f"s_add_u32 s34, s34, {s(sWV)}")
    p("s_lshl_b32 s34, s34, 4")
    p(f"s_add_u32 s34, s34, {s(sRT)}")
    p(f"s_mul_i32 s34, s34, {KVP_STRIDE}")
    p(f"s_add_u32 s34, s34, {WS_KVP}")
    p("v_and_b32 v3, 31, v2")
    p("v_lshlrev_b32 v3, 4, v3")
    p("v_mul_u32_u24 v7, 384, v7")
    p("v_add_u32 v3, v3, v7")
    p("s_mov_b32 exec_lo, 0xffffff")
    p("s_mov_b32 exec_hi, 0xffffff")
    for q in range(3):
        p(f"buffer_store_dwordx4 {v(KV+4*q,4)}, v3, {s(SWS,4)}, s34 offen offset:{q*768} {SC}")
    if fused:
        p("s_mov_b32 exec_lo, -1")
        p("s_mov_b32 exec_hi, -1")
        p.label("P1_end")
        p.forget()
        stamp(p, 6)
        return
    stamp(p, 6)
    if STAMP: p("s_waitcnt vmcnt(0)")
    stamp(p, 7)
    stamp_flush(p, 0, SWS, 8, sWV)
    p.label("K1_end")
    p("s_endpgm")
```

```python
import re
from asmlib import *
from gen import *

LDS_V = 24576; LDS_RED = 49216
WS_FLG = 0x1520000
def gen_k2():
    p = Prog()
    header(p, "k2_kernel")
    p.stv = 230
    emit_p2(p, None)
    p.label("K2_end")
    p("s_endpgm")
    p.pad()
    return p.text(), dict(name="k2_kernel", vgpr=236, sgpr=100, grid=256, block=512, lds=LDS_RED + 8448 + 8*1536)

def emit_p2(p, fused):
    SWS = 20
    sH, sR, sWV = 32, 31, 33
    LD = 'sc1' if fused else ''
    SO_ = 8 if fused else 0
    if not fused:
        p("s_cmp_ge_u32 s2, 256")
        p("s_cbranch_scc1 K2_end")
        stamp(p, 0)
        p("s_load_dwordx2 s[12:13], s[0:1], 72")
        p("v_lshrrev_b32 v1, 6, v0")
        p("v_and_b32 v2, 63, v0")
        p(f"v_readfirstlane_b32 {s(sWV)}, v1")
    p("s_and_b32 s36, s2, 7")
    p("s_lshr_b32 s37, s2, 3")
    p("s_and_b32 s38, s36, 3")
    p("s_lshl_b32 s38, s38, 3")
    p("s_and_b32 s39, s37, 7")
    p(f"s_add_u32 {s(sH)}, s38, s39")
    p("s_lshr_b32 s38, s36, 2")
    p("s_lshl_b32 s38, s38, 2")
    p("s_lshr_b32 s39, s37, 3")
    p(f"s_add_u32 {s(sR)}, s38, s39")
    Q0, Q1 = 16, 20
    PQR = 24
    MU, ML = 32, 48
    SB = [64, 80]
    KF = [96, 104]
    VF = [112, 120]
    PB = [128, 136]
    O = 144
    CM = 160
    PAR = 176
    WOR = 229
    WOH = 204
    PQ = 208
    GX, GWt = 64, 70
    vL16, vQA, vHH = 3, 4, 5
    vQo, vPQo, vK0, vK1, vV, vM = 6, 7, 8, 9, 10, 11
    vDM, vW0, vW1, vOo, vOt = 216, 217, 218, 219, 220
    p(f"v_lshlrev_b32 {v(vL16)}, 4, v2")
    p(f"v_and_b32 {v(vQA)}, 31, v2")
    p(f"v_lshrrev_b32 {v(vHH)}, 5, v2")
    sRow = 35
    p(f"s_lshl_b32 {s(sRow)}, {s(sH)}, 11")
    p(f"s_lshl_b32 s36, {s(sR)}, 8")
    p(f"s_add_u32 {s(sRow)}, {s(sRow)}, s36")
    p(f"s_mul_i32 s40, {s(sWV)}, 3072")
    p(f"v_add_u32 {v(vDM)}, s40, {v(vL16)}")
    p(f"s_mul_i32 s41, {s(sRow)}, 40")
    p(f"s_mul_i32 s36, {s(sWV)}, 2560")
    p("s_add_u32 s36, s36, s41")
    p(f"s_add_u32 s42, s36, {WS_KA - 10240}")
    p(f"s_add_u32 s43, s36, {WS_VA - 10240}")
    vD3 = 232 if not fused else 249
    for i in range(3):
        p(f"v_add_u32 v12, {64*i}, v2")
        p("v_mul_u32_u24 v13, 171, v12")
        p("v_lshrrev_b32 v13, 9, v13")
        p("v_mul_u32_u24 v14, 3, v13")
        p("v_sub_u32 v14, v12, v14")
        p("v_lshlrev_b32 v14, 4, v14")
        p(f"v_mad_u32_u24 {v(vD3+i)}, v13, 40, v14")
    sFILL = 55
    p(f"s_lshr_b32 {s(sFILL)}, {s(sWV)}, 2")
    p(f"s_or_b32 {s(sFILL)}, {s(sFILL)}, {s(sR)}")
    p(f"s_cmp_eq_u32 {s(sFILL)}, 0")
    p("s_cselect_b32 s42, 0x40000000, s42")
    p("s_cselect_b32 s43, 0x40000000, s43")
    p(f"s_lshl_b32 s36, {s(sWV)}, 5")
    p(f"v_add_u32 v12, s36, {v(vQA)}")
    p("v_mul_u32_u24 v12, 40, v12")
    p(f"v_lshl_add_u32 {v(vQo)}, {v(vHH)}, 4, v12")
    p(f"v_lshl_add_u32 {v(vPQo)}, {v(vHH)}, 3, v12")
    p(f"s_add_u32 s44, s41, {WS_QB}")
    for k in range(4): p(f"v_mov_b32 {v(Q1+k)}, 0")
    p("s_mov_b32 exec_hi, 0")
    p(f"v_mov_b32 {v(Q1+2)}, 0x3f80")
    p("s_mov_b32 exec_hi, -1")
    tg = {}
    def loads():
        p("s_mov_b32 m0, s40")
        if not fused:
            p("s_waitcnt lgkmcnt(0)")
            srd(p, SWS, 12, WS_SIZE)
            stamp(p, 1)
        else:
            p("s_nop 0")
        for i in range(3):
            if i: p(f"s_add_u32 m0, s40, {i*1024}")
            p(f"buffer_load_dwordx4 {v(vD3+i)}, {s(SWS,4)}, s42 offen {LD} lds")
        p(f"buffer_load_dwordx4 {v(Q0,4)}, {v(vQo)}, {s(SWS,4)}, s41 offen {LD}")
        p("s_mov_b32 exec_hi, 0")
        p(f"buffer_load_dwordx2 {v(Q1,2)}, {v(vQo)}, {s(SWS,4)}, s41 offen offset:32 {LD}")
        p("s_mov_b32 exec_hi, -1")
        tg['K'] = p.vmtag()
        for i in range(3):
            p(f"s_add_u32 m0, s40, {LDS_V + i*1024}")
            p(f"buffer_load_dwordx4 {v(vD3+i)}, {s(SWS,4)}, s43 offen {LD} lds")
        tg['V'] = p.vmtag()
    if not fused: loads()
    p(f"s_cmp_ge_u32 {s(sWV)}, 3")
    p("s_cselect_b32 s37, 8, 0")
    p("s_cselect_b32 s38, 3, 0")
    p(f"s_sub_u32 s38, {s(sWV)}, s38")
    p(f"s_lshl_b32 s66, {s(sH)}, 4")
    p("s_add_u32 s66, s66, s37")
    p("s_mul_i32 s66, s66, 2304")
    p("s_mul_i32 s38, s38, 768")
    p("s_add_u32 s66, s66, s38")
    p(f"s_add_u32 s66, s66, {WS_KVP}")
    p(f"s_cmp_ge_u32 {s(sWV)}, 6")
    p("s_cselect_b32 s66, 0x40000000, s66")
    p(f"v_mul_u32_u24 v12, 384, {v(vHH)}")
    p(f"v_min_u32 v13, 23, {v(vQA)}")
    p(f"v_lshl_add_u32 {v(vW0)}, v13, 4, v12")
    p(f"v_add_u32 {v(vW0)}, {LDS_RED}, {v(vW0)}")
    p("s_lshr_b32 s46, s2, 3")
    p("s_lshl_b32 s46, s46, 3")
    p(f"s_add_u32 s46, s46, {s(sWV)}")
    p("s_mul_i32 s46, s46, 6400")
    p(f"s_add_u32 s46, s46, {WS_WF}")
    p(f"v_min_u32 {v(vW1)}, 49, v2")
    p(f"v_lshlrev_b32 {v(vW1)}, 7, {v(vW1)}")
    p(f"s_mul_i32 s36, {s(sWV)}, 1536")
    p(f"v_mul_u32_u24 v12, 48, {v(vQA)}")
    p("v_add_u32 v12, s36, v12")
    p(f"v_lshl_add_u32 {v(vK0)}, {v(vHH)}, 4, v12")
    p(f"v_add_u32 {v(vK1)}, 32, v12")
    p("v_bfe_u32 v12, v2, 2, 2")
    p(f"v_lshl_add_u32 v12, {v(vHH)}, 2, v12")
    p("v_mul_u32_u24 v12, 48, v12")
    p("v_bfe_u32 v13, v2, 4, 1")
    p("v_lshl_add_u32 v12, v13, 5, v12")
    p("v_and_b32 v14, 3, v2")
    p("v_lshl_add_u32 v12, v14, 3, v12")
    p(f"s_add_u32 s36, s36, {LDS_V}")
    p(f"v_add_u32 {v(vV)}, s36, v12")
    sOM, sOT = 68, 69
    p(f"s_lshl_b32 s36, {s(sR)}, 4")
    p(f"s_lshl_b32 s37, {s(sWV)}, 1")
    p("s_add_u32 s36, s36, s37")
    p("s_mul_i32 s36, s36, 40960")
    p(f"s_add_u32 s36, s36, {WS_OF}")
    p(f"s_lshl_b32 s39, {s(sH)}, 9")
    p(f"s_add_u32 {s(sOM)}, s39, s36")
    p(f"s_lshl_b32 s37, {s(sH)}, 7")
    p("s_add_u32 s37, s37, 16384")
    p(f"s_add_u32 {s(sOT)}, s37, s36")
    p("s_mov_b32 s38, 40960")
    p("v_and_b32 v14, 15, v2")
    p("v_mul_u32_u24 v13, v13, s38") if False else p("v_mul_lo_u32 v13, v13, s38")
    p(f"v_lshl_add_u32 {v(vOt)}, v14, 3, v13")
    p("v_lshl_add_u32 v13, v14, 4, v13")
    p(f"v_lshl_add_u32 {v(vOo)}, {v(vHH)}, 8, v13")
    p(f"v_lshlrev_b32 v12, 2, {v(vHH)}")
    p(f"v_sub_u32 v12, {v(vQA)}, v12")
    p(f"v_mov_b32 v13, {f32(NEG)}")
    for r0 in range(0, 16, 4):
        for r in range(r0, r0+4):
            kb = 8*(r >> 2) + (r & 3)
            p(f"v_cmp_le_i32 {s(56+2*(r&3),2)}, {kb}, v12")
        for r in range(r0, r0+4):
            p(f"v_cndmask_b32 {v(ML+r)}, v13, 0, {s(56+2*(r&3),2)}")
            p(f"v_cndmask_b32 {v(MU+r)}, 0, v13, {s(56+2*(r&3),2)}")
    LB = 221
    p("v_mov_b32 v14, 0xffff")
    p("v_mov_b32 v15, 0xffff0000")
    for k0 in range(0, 8, 2):
        for k in (k0, k0+1):
            for hb in range(2):
                r = 2*k + hb
                kb = 8*(r >> 2) + (r & 3)
                p(f"v_cmp_le_i32 {s(56+2*(r&3),2)}, {kb}, v12")
        for k in (k0, k0+1):
            p(f"v_cndmask_b32 {v(LB+k)}, 0, v14, {s(56+2*((2*k)&3),2)}")
            p(f"v_cndmask_b32 v13, 0, v15, {s(56+2*((2*k+1)&3),2)}")
            p(f"v_or_b32 {v(LB+k)}, {v(LB+k)}, v13")
    MX = [vM, 13, 14, 15]
    for r in MX: p(f"v_mov_b32 {v(r)}, {f32(-3e38)}")
    p(f"v_mul_u32_u24 {v(CM)}, 48, v0")
    p(f"s_cmp_eq_u32 {s(sFILL)}, 0")
    p("s_cselect_b32 s36, 0xf149, 0")
    p(f"v_mov_b32 {v(CM+2)}, s36")
    p(f"v_mov_b32 {v(CM+3)}, 0")
    p(f"v_mov_b32 {v(CM+4)}, 0x3f80")
    p(f"v_mov_b32 {v(CM+5)}, 0")
    if fused:
        fused['sync1'](sH, sR)
        loads()
    stamp(p, 2 + SO_*0 if not fused else 9)
    p.wait_vm_tag(tg['K'])
    p(f"ds_write_b64 {v(CM)}, {v(CM+2,2)} offset:40")
    p("s_waitcnt lgkmcnt(0)")
    p("s_barrier")
    stamp(p, (10 if fused else 3)); stampc(p, 20)
    def rdK(t):
        b = KF[t & 1]
        p(f"ds_read_b128 {v(b,4)}, {v(vK0)} offset:{t*1536}")
        p(f"ds_read_b128 {v(b+4,4)}, {v(vK1)} offset:{t*1536}")
    def rdV(t):
        b = VF[t & 1]
        for c in range(2):
            for hsel in range(2):
                p(f"ds_read_b64_tr_b16 {v(b+4*c+2*hsel,2)}, {v(vV)} offset:{t*1536 + c*768 + hsel*384}")
    def qk(t, half, C):
        S = SB[t & 1]; b = KF[t & 1]
        if half == 0: p(f"v_mfma_f32_32x32x16_bf16 {v(S,16)}, {v(b,4)}, {v(Q0,4)}, {C}")
        else: p(f"v_mfma_f32_32x32x16_bf16 {v(S,16)}, {v(b+4,4)}, {v(Q1,4)}, {v(S,16)}")
    sec = []
    def pe(t):
        for x in (t if isinstance(t, list) else [t]):
            if isinstance(x, tuple): tg[x[1]] = p.vmtag()
            else: p(x)
    sec2 = []
    for k in range(8):
        g_ = [f"buffer_load_dwordx4 {v(PAR+4*k,4)}, {v(vL16)}, {s(SWS,4)}, s66 offen offset:{2304*(k&1)} {LD}"]
        if k & 1: g_.append("s_add_u32 s66, s66, 4608")
        sec2.append(g_)
    LDS_PQ = LDS_RED + 8448
    sec2.insert(0, [f"s_mul_i32 s45, {s(sWV)}, 1280", f"s_add_u32 m0, s45, {LDS_PQ}", "s_add_u32 s45, s45, s44",
                    f"buffer_load_dwordx4 {v(vL16)}, {s(SWS,4)}, s45 offen {LD} lds"])
    sec2.insert(1, ["s_mov_b32 exec_lo, 0xffff", "s_mov_b32 exec_hi, 0", f"buffer_load_dwordx4 {v(vL16)}, {s(SWS,4)}, s45 offen offset:1024 {LD} lds",
                    "s_mov_b32 exec_lo, -1", "s_mov_b32 exec_hi, -1", ('tag', 'PQ')])
    if not fused: sec2.append(f"buffer_load_dword {v(WOR)}, {v(vW1)}, {s(SWS,4)}, s46 offen")
    if fused: sec2 += fused['wdma']()
    def C1(t): return v(MU,16) if t == 0 else (v(ML,16) if t == 8 else '0')
    S3 = [SB[0], SB[1], O]; K3 = [KF[0], KF[1], VF[0]]
    def rdK3(t):
        p(f"ds_read_b128 {v(K3[t%3],4)}, {v(vK0)} offset:{t*1536}")
        p(f"ds_read_b128 {v(K3[t%3]+4,4)}, {v(vK1)} offset:{t*1536}")
    def qk3(t, half):
        if half == 0: p(f"v_mfma_f32_32x32x16_bf16 {v(S3[t%3],16)}, {v(K3[t%3],4)}, {v(Q0,4)}, {C1(t)}")
        else: p(f"v_mfma_f32_32x32x16_bf16 {v(S3[t%3],16)}, {v(K3[t%3]+4,4)}, {v(Q1,4)}, {v(S3[t%3],16)}")
    rdK3(0); rdK3(1); rdK3(2)
    if fused: fused['pre_all']()
    qk3(0,0); qk3(0,1); qk3(1,0); qk3(1,1)
    for t in range(9):
        S = S3[t % 3]
        if t+2 <= 8: qk3(t+2, 0)
        for k in range(4): p(f"v_max3_f32 {v(MX[k&3])}, {v(MX[k&3])}, {v(S+2*k)}, {v(S+2*k+1)}")
        if t+2 <= 8: qk3(t+2, 1)
        for k in range(4, 8): p(f"v_max3_f32 {v(MX[k&3])}, {v(MX[k&3])}, {v(S+2*k)}, {v(S+2*k+1)}")
        if t+3 <= 8: rdK3(t+3)
        if t == 3:
            if fused:
                p(f"s_cmp_eq_u32 {s(sWV)}, 0")
                p("s_cbranch_scc1 P2_vw")
                p.wait_vm_tag(tg['V'])
                p.label("P2_vw")
                p.raw("    s_waitcnt vmcnt(4)")
            else:
                p.wait_vm_tag(tg['V'])
            p(f"ds_write_b64 {v(CM)}, {v(CM+4,2)} offset:{LDS_V + 40}")
            p("s_waitcnt lgkmcnt(0)")
            p("s_barrier")
            stamp(p, 11); stampc(p, 21)
    assert not sec
    p(f"ds_read_b128 {v(KF[0],4)}, {v(vK0)} offset:0")
    p(f"ds_read_b128 {v(KF[0]+4,4)}, {v(vK1)} offset:0")
    p(f"ds_read_b128 {v(KF[1],4)}, {v(vK0)} offset:{8*1536}")
    p(f"ds_read_b128 {v(KF[1]+4,4)}, {v(vK1)} offset:{8*1536}")
    p(f"v_max3_f32 {v(vM)}, {v(vM)}, v13, v14")
    p(f"v_max_f32 {v(vM)}, {v(vM)}, v15")
    p(f"v_mov_b32 v12, {v(vM)}")
    p(f"v_permlane32_swap_b32 {v(vM)}, v12")
    p(f"v_max_f32 {v(vM)}, {v(vM)}, v12")
    p(f"v_sub_f32 {v(CM)}, 0, {v(vM)}")
    p(f"v_sub_f32 {v(CM+1)}, 0, {v(vM)}")
    for k in range(8): p(f"v_pk_add_f32 {v(MU+2*k,2)}, {v(MU+2*k,2)}, {v(CM,2)}")
    for k in range(2, 16): p(f"v_mov_b32 {v(CM+k)}, {v(CM)}")
    for k in range(8): p(f"v_pk_add_f32 {v(ML+2*k,2)}, {v(ML+2*k,2)}, {v(CM,2)}")
    stamp(p, (12 if fused else 4)); stampc(p, 22)
    if fused: fused['gateB']()
    def rdKb(t, b):
        p(f"ds_read_b128 {v(KF[b],4)}, {v(vK0)} offset:{t*1536}")
        p(f"ds_read_b128 {v(KF[b]+4,4)}, {v(vK1)} offset:{t*1536}")
    def rdVb(t, b):
        for c in range(2):
            for hsel in range(2):
                p(f"ds_read_b64_tr_b16 {v(VF[b]+4*c+2*hsel,2)}, {v(vV)} offset:{t*1536 + c*768 + hsel*384}")
    def qkb(kb, sb, half, C):
        if half == 0: p(f"v_mfma_f32_32x32x16_bf16 {v(SB[sb],16)}, {v(KF[kb],4)}, {v(Q0,4)}, {C}")
        else: p(f"v_mfma_f32_32x32x16_bf16 {v(SB[sb],16)}, {v(KF[kb]+4,4)}, {v(Q1,4)}, {v(SB[sb],16)}")
    first = [True]
    def pvb(vb, pb, c):
        p(f"v_mfma_f32_32x32x16_bf16 {v(O,16)}, {v(VF[vb]+4*c,4)}, {v(PB[pb]+4*c,4)}, {'0' if first[0] else v(O,16)}")
        first[0] = False
    qkb(0,0,0,v(MU,16)); qkb(0,0,1,None)
    qkb(1,1,0,v(ML,16)); qkb(1,1,1,None)
    rdKb(1,0); rdKb(2,1)
    rdVb(0,0); rdVb(8,1)
    for k in range(16): p(f"v_max_f32 {v(SB[0]+k)}, {v(SB[0]+k)}, {v(SB[1]+k)}")
    for k in range(16):
        p(f"v_exp_f32 {v(SB[0]+k)}, {v(SB[0]+k)}")
        if k == 0: qkb(0,1,0,v(CM,16))
        if k == 4: qkb(0,1,1,None)
        if k == 5: rdKb(3,0)
    for k in range(8): p(f"v_cvt_pk_bf16_f32 {v(PB[0]+k)}, {v(SB[0]+2*k)}, {v(SB[0]+2*k+1)}")
    for k in range(8): p(f"v_and_b32 {v(PB[1]+k)}, {v(PB[0]+k)}, {v(LB+k)}")
    for k in range(8): p(f"v_xor_b32 {v(PB[0]+k)}, {v(PB[0]+k)}, {v(PB[1]+k)}")
    if fused: fused['waitB']()
    for t in range(1, 8):
        S = SB[t & 1]
        for k in range(16):
            p(f"v_exp_f32 {v(S+k)}, {v(S+k)}")
            if k == 0 and t+1 <= 7: qkb(t & 1, (t+1) & 1, 0, v(CM,16))
            if k == 3 and t+1 <= 7: qkb(t & 1, (t+1) & 1, 1, None)
            if k == 4 and t+3 <= 7: rdKb(t+3, t & 1)
            if k in (2, 5, 7, 11, 14, 13) and sec2: pe(sec2.pop(0))
            if t == 1:
                if k == 6: pvb(0,0,0)
                if k == 9: pvb(0,0,1)
                if k == 10: rdVb(1, 0)
                if k == 12: pvb(1,1,0)
                if k == 15: pvb(1,1,1)
            else:
                if k == 1: rdVb(t, (t+1) & 1)
                if k == 8: pvb(t & 1, t & 1, 0)
                if k == 12: pvb(t & 1, t & 1, 1)
        for k in range(8): p(f"v_cvt_pk_bf16_f32 {v(PB[(t+1)&1]+k)}, {v(S+2*k)}, {v(S+2*k+1)}")
        if t == 5:
            for st_ in (1, 2, 4):
                for w2 in range(0, 8, 2*st_):
                    for k in range(2): p(f"v_pk_add_f32 {v(PAR+4*w2+2*k,2)}, {v(PAR+4*w2+2*k,2)}, {v(PAR+4*(w2+st_)+2*k,2)}")
            p(f"s_lshl_b32 s36, {s(sWV)}, 10")
            p(f"s_add_u32 s36, s36, {LDS_RED}")
            p(f"v_add_u32 v12, s36, {v(vL16)}")
            p(f"ds_write_b128 v12, {v(PAR,4)}")
        if t == 6:
            p("s_waitcnt lgkmcnt(0)")
            p("s_barrier")
            p.wait_vm_tag(tg['PQ'])
            p(f"v_add_u32 v12, {LDS_PQ}, {v(vPQo)}")
            for k in range(3): p(f"ds_read_b64 {v(PQR+2*k,2)}, v12 offset:{16*k}")
        if t == 7:
            T = 176; U = 188
            p(f"s_mov_b32 s53, {f32(LOG2E)}")
            p(f"s_mov_b32 s54, {f32(EPS)}")
            for k in range(6):
                p(f"v_lshlrev_b32 {v(T+2*k)}, 16, {v(PQR+k)}")
                p(f"v_and_b32 {v(T+2*k+1)}, 0xffff0000, {v(PQR+k)}")
            for k in range(12): p(f"v_mul_f32 {v(U+k)}, s53, {v(T+k)}")
            for k in range(12): p(f"v_exp_f32 {v(U+k)}, {v(U+k)} clamp")
            for k in range(12): p(f"v_max_f32 {v(T+k)}, 0, {v(T+k)}")
            for k in range(12): p(f"v_add_f32 {v(T+k)}, {v(T+k)}, {v(U+k)}")
            for k in range(12): p(f"v_add_f32 {v(T+k)}, s54, {v(T+k)}")
            for k in range(6): p(f"v_cvt_pk_bf16_f32 {v(PQ+k)}, {v(T+2*k)}, {v(T+2*k+1)}")
            p(f"v_mov_b32 {v(PQ+6)}, 0"); p(f"v_mov_b32 {v(PQ+7)}, 0")
            p("s_mov_b32 exec_lo, 0")
            p(f"v_mov_b32 {v(PQ+4)}, 0"); p(f"v_mov_b32 {v(PQ+5)}, 0")
            p("s_mov_b32 exec_lo, -1")
    assert not sec2
    pvb(0,0,0); pvb(0,0,1)
    stamp(p, (13 if fused else 5)); stampc(p, 23)
    RB = 32
    for w2 in range(6): p(f"ds_read_b128 {v(RB+4*w2,4)}, {v(vW0)} offset:{w2*1024}")
    def oepi(A, s_main, s_tail, eps, E):
        p(f"v_mov_b32 v13, {v(A+8)}")
        p(f"v_mov_b32 v14, {v(A+8)}")
        p("v_permlane32_swap_b32 v13, v14")
        if eps: p(f"v_add_f32 v14, {f32(EPS)}, v14")
        p("v_rcp_f32 v14, v14")
        p("s_nop 0")
        p("v_mov_b32 v15, v14")
        for k in range(6): p(f"v_pk_mul_f32 {v(A+2*k,2)}, {v(A+2*k,2)}, v[14:15]")
        for k in range(6): p(f"v_cvt_pk_bf16_f32 {v(E+k)}, {v(A+2*k)}, {v(A+2*k+1)}")
        p(f"buffer_store_dwordx4 {v(E,4)}, {v(vOo)}, {s(SWS,4)}, {s(s_main)} offen {SC}")
        p("s_mov_b32 exec_hi, 0")
        p(f"buffer_store_dwordx2 {v(E+4,2)}, {v(vOt)}, {s(SWS,4)}, {s(s_tail)} offen {SC}")
        p("s_mov_b32 exec_hi, -1")
    oepi(O, sOM, sOT, False, 128)
    stamp(p, (15 if fused else 9))
    for k in range(6): p(f"v_pk_add_f32 {v(RB+2*k,2)}, {v(RB+2*k,2)}, {v(RB+12+2*k,2)}")
    KVF = 136
    for k in range(6): p(f"v_cvt_pk_bf16_f32 {v(KVF+k)}, {v(RB+2*k)}, {v(RB+2*k+1)}")
    p(f"v_mov_b32 {v(KVF+6)}, 0"); p(f"v_mov_b32 {v(KVF+7)}, 0")
    N = 160
    p(f"v_mfma_f32_32x32x16_bf16 {v(N,16)}, {v(KVF,4)}, {v(PQ,4)}, 0")
    p(f"v_mfma_f32_32x32x16_bf16 {v(N,16)}, {v(KVF+4,4)}, {v(PQ+4,4)}, {v(N,16)}")
    stamp(p, (16 if fused else 10))
    p(f"s_add_u32 {s(sOM)}, {s(sOM)}, 20480")
    p(f"s_add_u32 {s(sOT)}, {s(sOT)}, 20480")
    oepi(N, sOM, sOT, True, 176)
    if fused:
        stamp(p, 17)
        return
    stamp(p, 6)
    if STAMP: p("s_waitcnt vmcnt(0)")
    stamp(p, 7)
    stamp_flush(p, 1, SWS, 8, sWV)

def gen_k3():
    p = Prog()
    header(p, "k3_kernel")
    p.stv = 227
    SWS, SO = 8, 12
    sWV, sRT, sCT = 16, 17, 18
    p("s_cmp_ge_u32 s2, 256")
    p("s_cbranch_scc1 K3_end")
    stamp(p, 0)
    p("s_load_dwordx2 s[4:5], s[0:1], 56")
    p("s_load_dwordx2 s[6:7], s[0:1], 72")
    p("v_lshrrev_b32 v1, 6, v0")
    p("v_and_b32 v2, 63, v0")
    p(f"v_readfirstlane_b32 {s(sWV)}, v1")
    p("s_and_b32 s20, s2, 7")
    p("s_lshr_b32 s21, s2, 3")
    p("s_lshl_b32 s22, s20, 2")
    p("s_lshr_b32 s23, s21, 3")
    p(f"s_add_u32 {s(sRT)}, s22, s23")
    p(f"s_and_b32 {s(sCT)}, s21, 7")
    p(f"s_mul_i32 s20, {s(sWV)}, 10240")
    p("v_lshlrev_b32 v3, 4, v2")
    p("v_add_u32 v3, s20, v3")
    p("v_add_u32 v4, 4096, v3")
    p("v_add_u32 v5, 8192, v3")
    sA, sB = 24, 28
    p(f"s_mul_i32 s20, {s(sRT)}, {4*40960}")
    for i in range(4): p(f"s_add_u32 {s(sA+i)}, s20, {WS_OF + i*40960}")
    p(f"s_mul_i32 s20, {s(sCT)}, {5*40960}")
    for j in range(5): p(f"s_add_u32 {s(sB+j)}, s20, {WS_WF + j*40960}")
    p("s_waitcnt lgkmcnt(0)")
    srd(p, SWS, 6, WS_SIZE)
    NB = 6
    FB = 8
    def ld(ks):
        b = FB + 36*(ks % NB)
        vo = v(3 + ks // 4); im = (ks % 4) * 1024
        for j in range(5):
            if j < 4: p(f"buffer_load_dwordx4 {v(b+4*j,4)}, {vo}, {s(SWS,4)}, {s(sA+j)} offen offset:{im}")
            p(f"buffer_load_dwordx4 {v(b+16+4*j,4)}, {vo}, {s(SWS,4)}, {s(sB+j)} offen offset:{im}")
    stamp(p, 1)
    for ks in range(NB): ld(ks)
    stamp(p, 2)
    srd(p, SO, 4, 2048*1280)
    vGT = 6
    p("v_lshrrev_b32 v1, 2, v0")
    p("v_lshlrev_b32 v224, 3, v1") if False else None
    p(f"s_lshl_b32 s20, {s(sRT)}, 9")
    p(f"s_add_u32 s20, s20, {WS_G}")
    GV = FB + 36*NB
    p(f"v_lshlrev_b32 {v(GV+2)}, 3, v1")
    p(f"buffer_load_dwordx2 {v(GV,2)}, {v(GV+2)}, {s(SWS,4)}, s20 offen")
    for ks in range(10):
        b = FB + 36*(ks % NB)
        for j in range(5):
            for i in range(4):
                A = (j*4+i)*4
                p(f"v_mfma_f32_16x16x32_bf16 {a(A,4)}, {v(b+16+4*j,4)}, {v(b+4*i,4)}, {'0' if ks==0 else a(A,4)}")
        if ks + NB < 10: ld(ks + NB)
        if ks == 0: stamp(p, 3)
    stamp(p, 4)
    RS = 336
    p("v_and_b32 v3, 15, v2")
    p(f"v_mul_u32_u24 v3, {RS}, v3")
    p("v_lshrrev_b32 v4, 4, v2")
    p("v_lshl_add_u32 v3, v4, 4, v3")
    p(f"s_mul_i32 s20, {s(sWV)}, {64*RS}")
    p("v_add_u32 v3, s20, v3")
    for j in range(5):
        for i in range(4):
            A = (j*4+i)*4
            p(f"ds_write_b128 v3, {a(A,4)} offset:{i*16*RS + j*64}")
    p(f"v_mul_u32_u24 v4, {RS}, v1")
    p("v_and_b32 v5, 3, v0")
    p("v_mul_u32_u24 v7, 80, v5")
    p("v_add_u32 v4, v4, v7")
    p(f"v_add_u32 v7, {2*64*RS}, v4")
    p("s_waitcnt lgkmcnt(0)")
    p("s_barrier")
    stamp(p, 5)
    R = 8
    for w in range(4):
        for c in range(5):
            p(f"ds_read_b128 {v(R+20*w+4*c,4)}, {v(4 if w < 2 else 7)} offset:{(w&1)*64*RS + 16*c}")
    p("s_movk_i32 s20, 1280")
    p("v_mul_u32_u24 v5, 40, v5")
    p("v_mad_u32_u24 v5, v1, s20, v5")
    p(f"s_mul_i32 s21, {s(sRT)}, {64*1280}")
    p(f"s_mul_i32 s22, {s(sCT)}, 160")
    p("s_add_u32 s21, s21, s22")
    for k in range(20): p(f"v_add_f32 {v(R+k)}, {v(R+k)}, {v(R+20+k)}")
    for k in range(20): p(f"v_mul_f32 {v(R+k)}, {v(GV)}, {v(R+k)}")
    for k in range(20): p(f"v_add_f32 {v(R+40+k)}, {v(R+40+k)}, {v(R+60+k)}")
    for k in range(20): p(f"v_fmac_f32 {v(R+k)}, {v(GV+1)}, {v(R+40+k)}")
    E = 96
    for k in range(10): p(f"v_cvt_pk_bf16_f32 {v(E+k)}, {v(R+2*k)}, {v(R+2*k+1)}")
    p(f"buffer_store_dwordx4 {v(E,4)}, v5, {s(SO,4)}, s21 offen")
    p(f"buffer_store_dwordx4 {v(E+4,4)}, v5, {s(SO,4)}, s21 offen offset:16")
    p(f"buffer_store_dwordx2 {v(E+8,2)}, v5, {s(SO,4)}, s21 offen offset:32")
    stamp(p, 6)
    if STAMP: p("s_waitcnt vmcnt(0)")
    stamp(p, 7)
    stamp_flush(p, 2, SWS, 8, sWV)
    p.label("K3_end")
    p("s_endpgm")
    p.pad()
    return p.text(), dict(name="k3_kernel", vgpr=228+80, arch=228, sgpr=100, grid=256, block=256, lds=4*64*RS)
```

```python
import os
from asmlib import *
from gen import *

P3_ACC = 0 + 16
P3_W = 96
P3_OR = [196, 212, 228, 96, 116]
P3_G = 4
P3_V = 10

def p3_setup(p, sWV, S):
    sRT, sCT, sA, sB, t0, t1 = S['RT'], S['CT'], S['A'], S['B'], S['t0'], S['t1']
    p(f"s_and_b32 {s(t0)}, s2, 7")
    p(f"s_lshr_b32 {s(t1)}, s2, 3")
    p(f"s_lshl_b32 {s(t0)}, {s(t0)}, 2")
    p(f"s_lshr_b32 {s(sRT)}, {s(t1)}, 3")
    p(f"s_add_u32 {s(sRT)}, {s(sRT)}, {s(t0)}")
    p(f"s_and_b32 {s(sCT)}, {s(t1)}, 7")
    p(f"s_lshr_b32 {s(t0)}, {s(sWV)}, 2")
    p(f"s_mul_i32 {s(t0)}, {s(t0)}, 20480")
    p(f"s_and_b32 {s(t1)}, {s(sWV)}, 3")
    p(f"s_lshl_b32 {s(S['TL'])}, {s(t1)}, 10")
    p(f"s_add_u32 {s(S['TL'])}, {s(S['TL'])}, {s(t0)}")
    p(f"s_add_u32 {s(S['TL'])}, {s(S['TL'])}, 16384")
    p(f"s_lshl_b32 {s(t1)}, {s(t1)}, 12")
    p(f"s_add_u32 {s(t0)}, {s(t0)}, {s(t1)}")
    p(f"v_and_b32 {v(P3_V+5)}, 63, v0")
    p(f"v_lshlrev_b32 {v(P3_V+4)}, 4, {v(P3_V+5)}")
    p(f"v_add_u32 {v(P3_V)}, {s(t0)}, {v(P3_V+4)}")
    p(f"v_add_u32 {v(P3_V+1)}, {s(S['TL'])}, {v(P3_V+4)}")
    p(f"s_mul_i32 {s(t0)}, {s(sRT)}, {4*40960}")
    for i in range(4): p(f"s_add_u32 {s(sA+i)}, {s(t0)}, {WS_OF + i*40960}")
    p(f"s_mul_i32 {s(t0)}, {s(sCT)}, {5*40960}")
    for j in range(5): p(f"s_add_u32 {s(sB+j)}, {s(t0)}, {WS_WF + j*40960}")

def p3_loadW(p, SWS, S, LD='', kss=(0, 1, 2, 3, 4)):
    for ks in kss:
        vo = v(P3_V + ks // 4); im = (ks % 4) * 1024
        for j in range(5):
            p(f"buffer_load_dwordx4 {v(P3_W+(ks*5+j)*4,4)}, {vo}, {s(SWS,4)}, {s(S['B']+j)} offen offset:{im} {LD}")

def p3_main(p, sWV, SWS, SO, S, LD=''):
    sRT, sCT, sA, t0, t1 = S['RT'], S['CT'], S['A'], S['t0'], S['t1']
    vTL = 2
    p(f"v_lshrrev_b32 {v(vTL)}, 4, {v(P3_V+5)}")
    p(f"v_lshlrev_b32 {v(vTL)}, 8, {v(vTL)}")
    p(f"v_and_b32 v1, 15, {v(P3_V+5)}")
    p(f"v_lshl_add_u32 {v(vTL)}, v1, 3, {v(vTL)}")
    p(f"v_add_u32 {v(vTL)}, {s(S['TL'])}, {v(vTL)}")
    def ldo1(ks, i):
        R = P3_OR[ks] + 4*i
        if ks < 4: return [f"buffer_load_dwordx4 {v(R,4)}, {v(P3_V)}, {s(SWS,4)}, {s(sA+i)} offen offset:{ks*1024} {LD}"]
        return [f"buffer_load_dwordx2 {v(R,2)}, {v(vTL)}, {s(SWS,4)}, {s(sA+i)} offen {LD}",
                f"buffer_load_dwordx2 {v(R+2,2)}, {v(vTL)}, {s(SWS,4)}, {s(sA+i)} offen offset:128 {LD}"]
    def pe(g):
        for x in (g if isinstance(g, list) else [g]):
            if isinstance(x, tuple) and x[0] == 'raw': p.raw("    " + x[1])
            elif isinstance(x, tuple): p.label(x[1])
            else: p(x)
    def ldo(ks):
        for i in range(4): pe(ldo1(ks, i))
    def ldw1(j):
        return f"buffer_load_dwordx4 {v(P3_W+j*4,4)}, {v(P3_V+1)}, {s(SWS,4)}, {s(S['B']+j)} offen {LD}"
    NUP = int(os.environ.get('P3UP', '2'))
    for ks in range(NUP): ldo(ks)
    pend = [ldo1(ks, i) for ks in range(NUP, 3) for i in range(4)]
    p(f"s_mul_i32 {s(t0)}, {s(sWV)}, 20480")
    p(f"v_add_u32 v1, {s(t0)}, {v(P3_V+4)}")
    stamp(p, 18)
    done = []
    for ks in range(5):
        n = 0
        if ks in (1, 2): pend += [ldo1(ks+2, i) for i in range(4)]
        for i in range(4):
            for j in range(5):
                A = P3_ACC + (j*4+i)*4
                p(f"v_mfma_f32_16x16x32_bf16 {v(A,4)}, {v(P3_W+(ks*5+j)*4,4)}, {v(P3_OR[ks]+4*i,4)}, {'0' if ks==0 else v(A,4)}")
                n += 1
                if n % 2 == 1 and pend and ks < 4: pe(pend.pop(0))
                if ks == 4:
                    done.append(j*4+i)
                    if len(done) > 8:
                        tl = done.pop(0)
                        p(f"ds_write_b128 v1, {v(P3_ACC+4*tl,4)} offset:{tl*1024}")
        if ks == 2:
            sT0 = S['T0']
            p(f"s_mul_i32 {s(t0)}, {s(sWV)}, 3")
            p(f"s_lshl_b32 {s(t1)}, {s(sWV)}, 1")
            p(f"s_add_u32 {s(t1)}, {s(t1)}, 4")
            p(f"s_cmp_lt_u32 {s(sWV)}, 4")
            p(f"s_cselect_b32 {s(sT0)}, {s(t0)}, {s(t1)}")
            p(f"v_and_b32 {v(P3_V+2)}, 15, {v(P3_V+5)}")
            p(f"v_lshlrev_b32 {v(P3_V+3)}, 3, {v(P3_V+2)}")
            for q in range(3):
                p(f"s_add_u32 {s(t0)}, {s(sT0)}, {q}")
                p(f"s_and_b32 {s(t0)}, {s(t0)}, 3")
                p(f"s_lshl_b32 {s(t0)}, {s(t0)}, 7")
                p(f"s_lshl_b32 {s(t1)}, {s(sRT)}, 9")
                p(f"s_add_u32 {s(t0)}, {s(t0)}, {s(t1)}")
                p(f"s_add_u32 {s(t0)}, {s(t0)}, {WS_G}")
                p(f"buffer_load_dwordx2 {v(P3_G+2*q,2)}, {v(P3_V+3)}, {s(SWS,4)}, {s(t0)} offen {LD}")
        stamp(p, 19+ks)
    assert not pend
    stamp(p, 24)
    for tl in done:
        p(f"ds_write_b128 v1, {v(P3_ACC+4*tl,4)} offset:{tl*1024}")
    p(f"s_lshl_b32 {s(t0)}, {s(sT0)}, 10")
    p(f"v_add_u32 {v(P3_V)}, {s(t0)}, {v(P3_V+4)}")
    p(f"v_add_u32 {v(P3_V+1)}, {3*20480}, {v(P3_V)}")
    p(f"v_add_u32 {v(P3_V+3)}, {6*20480}, {v(P3_V)}")
    p(f"v_lshrrev_b32 {v(P3_V+4)}, 4, {v(P3_V+5)}")
    p(f"v_lshlrev_b32 {v(P3_V+4)}, 3, {v(P3_V+4)}")
    p(f"s_movk_i32 {s(t0)}, 1280")
    p(f"v_mad_u32_u24 {v(P3_V+4)}, {v(P3_V+2)}, {s(t0)}, {v(P3_V+4)}")
    sOB = S['OB']
    p(f"s_mul_i32 {s(sOB)}, {s(sRT)}, {64*1280}")
    p(f"s_mul_i32 {s(t1)}, {s(sCT)}, 160")
    p(f"s_add_u32 {s(sOB)}, {s(sOB)}, {s(t1)}")
    p("s_waitcnt lgkmcnt(0)")
    stamp(p, 26)
    p("s_barrier")
    stamp(p, 25)
    R = 96
    def fin(q):
        B = R + q*32
        for w in range(8):
            base = P3_V + (0 if w < 3 else (1 if w < 6 else 3))
            p(f"ds_read_b128 {v(B+4*w,4)}, {v(base)} offset:{(w%3)*20480 + q*1024}")
    def comb(q):
        B = R + q*32
        for h in range(2):
            p(f"v_pk_add_f32 {v(B+2*h,2)}, {v(B+2*h,2)}, {v(B+4+2*h,2)}")
            p(f"v_pk_add_f32 {v(B+8+2*h,2)}, {v(B+8+2*h,2)}, {v(B+12+2*h,2)}")
            p(f"v_pk_add_f32 {v(B+16+2*h,2)}, {v(B+16+2*h,2)}, {v(B+20+2*h,2)}")
            p(f"v_pk_add_f32 {v(B+24+2*h,2)}, {v(B+24+2*h,2)}, {v(B+28+2*h,2)}")
        for h in range(2):
            p(f"v_pk_add_f32 {v(B+2*h,2)}, {v(B+2*h,2)}, {v(B+8+2*h,2)}")
            p(f"v_pk_add_f32 {v(B+16+2*h,2)}, {v(B+16+2*h,2)}, {v(B+24+2*h,2)}")
        for k in range(4): p(f"v_mul_f32 {v(B+k)}, {v(P3_G+2*q)}, {v(B+k)}")
        for k in range(4): p(f"v_fmac_f32 {v(B+k)}, {v(P3_G+2*q+1)}, {v(B+16+k)}")
        p(f"v_cvt_pk_bf16_f32 {v(B+4)}, {v(B)}, {v(B+1)}")
        p(f"v_cvt_pk_bf16_f32 {v(B+5)}, {v(B+2)}, {v(B+3)}")
        p(f"s_add_u32 {s(t0)}, {s(sT0)}, {q}")
        p(f"s_and_b32 {s(t1)}, {s(t0)}, 3")
        p(f"s_mul_i32 {s(t1)}, {s(t1)}, {16*1280}")
        p(f"s_lshr_b32 {s(t0)}, {s(t0)}, 2")
        p(f"s_lshl_b32 {s(t0)}, {s(t0)}, 5")
        p(f"s_add_u32 {s(t0)}, {s(t0)}, {s(t1)}")
        p(f"s_add_u32 {s(t0)}, {s(t0)}, {s(sOB)}")
        p(f"buffer_store_dwordx2 {v(B+4,2)}, {v(P3_V+4)}, {s(SO,4)}, {s(t0)} offen {os.environ.get('OSC', '')}")
    fin(0); fin(1); fin(2)
    comb(0); comb(1)
    p(f"s_cmp_lt_u32 {s(sWV)}, 4")
    p("s_cbranch_scc0 P3_done")
    comb(2)
    p.label("P3_done")

def gen_k3():
    p = Prog()
    header(p, "k3_kernel")
    p.stv = 3
    SWS, SO = 8, 12
    sWV = 16
    S = dict(RT=17, CT=18, A=24, B=28, t0=20, t1=21, T0=22, OB=23, TL=19)
    p("s_cmp_ge_u32 s2, 256")
    p("s_cbranch_scc1 K3_end")
    stamp(p, 0)
    p("s_load_dwordx2 s[4:5], s[0:1], 56")
    p("s_load_dwordx2 s[6:7], s[0:1], 72")
    p("v_lshrrev_b32 v1, 6, v0")
    p(f"v_readfirstlane_b32 {s(sWV)}, v1")
    p3_setup(p, sWV, S)
    p("s_waitcnt lgkmcnt(0)")
    srd(p, SWS, 6, WS_SIZE)
    srd(p, SO, 4, 2048*1280)
    stamp(p, 1)
    p3_loadW(p, SWS, S)
    p3_main(p, sWV, SWS, SO, S)
    stamp(p, 6)
    if STAMP: p("s_waitcnt vmcnt(0)")
    stamp(p, 7)
    stamp_flush(p, 2, SWS, 8, sWV)
    p.label("K3_end")
    p("s_endpgm")
    p.pad()
    return p.text(), dict(name="k3_kernel", vgpr=256, sgpr=100, grid=256, block=512, lds=163840)
```

```python
import os
from asmlib import *
from gen import *
from gen1 import emit_p1
from gen23 import emit_p2, WS_FLG, LDS_RED
from gen3 import *

def gen_fused(name):
    p = Prog()
    header(p, name)
    p.stv = 231
    SWS, sWV, sNON = 20, 33, 94
    SPIN = 200000
    NWL = int(os.environ.get('NWL', '11')); LDSW = 70656
    def wdma():
        out = []
        for f in range(NWL):
            ks, j = divmod(f, 5)
            out.append([f"s_add_u32 m0, s29, {f*1024 - ks*1024}", "s_nop 0",
                        f"buffer_load_dwordx4 v248, {s(SWS,4)}, {s(24+j)} offen offset:{ks*1024} sc1 lds"])
        return out
    cnt = [0]
    def poll(voffs, sbase, lo, hi=0, setexec=True):
        cnt[0] += 1
        L = f"POLL{cnt[0]}"
        if setexec:
            p(f"s_mov_b32 exec_lo, {lo}")
            p(f"s_mov_b32 exec_hi, {hi}")
        p(f"s_mov_b32 s95, {SPIN}")
        p.label(L)
        for k, vo in enumerate(voffs):
            p.raw(f"    buffer_load_dword {v(232+k)}, {v(vo)}, {s(SWS,4)}, {sbase} offen sc1")
        p.raw("    s_waitcnt vmcnt(0)")
        p(f"v_xor_b32 v232, {s(sNON)}, v232")
        for k in range(1, len(voffs)):
            p(f"v_xor_b32 {v(232+k)}, {s(sNON)}, {v(232+k)}")
            p(f"v_or_b32 v232, v232, {v(232+k)}")
        p("v_cmp_ne_u32 vcc, 0, v232")
        p("s_sub_u32 s95, s95, 1")
        p("s_cmp_eq_u32 s95, 0")
        p(f"s_cbranch_scc1 {L}_out")
        p("s_nop 2")
        p(f"s_cbranch_vccz {L}_out")
        p("s_sleep 1")
        p(f"s_branch {L}")
        p.label(f"{L}_out")
        p("s_mov_b32 exec_lo, -1")
        p("s_mov_b32 exec_hi, -1")
    def publish(which):
        pass
    emit_p1(p, True)
    def sync1(sH, sR):
        p(f"s_lshr_b32 s36, {s(sH)}, 2")
        p(f"s_lshl_b32 s37, {s(sR)}, 1")
        p("s_sub_u32 s37, s37, 2")
        p("v_add_u32 v236, s37, v2")
        p("v_and_b32 v237, 7, v236")
        p("v_lshlrev_b32 v237, 5, v237")
        p("v_bfe_u32 v236, v236, 3, 1")
        p("v_lshl_add_u32 v237, v236, 2, v237")
        p("s_and_b32 s38, s36, 1")
        p("s_lshl_b32 s38, s38, 3")
        p("s_lshr_b32 s36, s36, 1")
        p("s_add_u32 s38, s38, s36")
        p("v_add_u32 v237, s38, v237")
        p("v_lshlrev_b32 v237, 7, v237")
        p("v_lshlrev_b32 v238, 7, v2")
        p("v_add_u32 v239, 8192, v238")
        p("v_add_u32 v240, 16384, v238")
        p("v_add_u32 v241, 24576, v238")
        p(f"s_mov_b32 s70, {WS_FLG}")
        p(f"s_cmp_eq_u32 {s(sR)}, 0")
        p("s_cselect_b32 s71, 0xffff000c, 0xffff000f") if False else None
        p("s_cselect_b32 s71, 12, 15")
        p("s_bfe_u32 s29, s2, 0x30003")
        p(f"s_mul_i32 s29, s29, {5*40960}")
        for j in range(5): p(f"s_add_u32 {s(24+j)}, s29, {WS_WF + j*40960}")
        p(f"s_lshr_b32 s29, {s(sWV)}, 2")
        p("s_lshl_b32 s29, s29, 12")
        p(f"s_lshl_b32 s30, {s(sWV)}, 12")
        p("s_add_u32 s29, s29, s30")
        p("v_lshlrev_b32 v248, 4, v2")
        p("v_add_u32 v248, s29, v248")
        p(f"s_mul_i32 s29, {s(sWV)}, {NWL*1024}")
        p(f"s_add_u32 s29, s29, {LDSW}")
        p("s_waitcnt vmcnt(0)")
        p("s_barrier")
        stamp(p, 7)
        p(f"s_cmp_lg_u32 {s(sWV)}, 0")
        p("s_cbranch_scc1 S1_touch")
        p(f"v_readfirstlane_b32 {s(sNON)}, v205")
        p(f"s_mov_b32 s95, {SPIN}")
        p.label("S1_tag")
        p(f"s_cmp_lg_u32 {s(sNON)}, 0")
        p("s_cbranch_scc1 S1_havetag")
        p("s_sub_u32 s95, s95, 1")
        p("s_cmp_eq_u32 s95, 0")
        p("s_cbranch_scc1 S1_havetag")
        p("s_sleep 1")
        p("v_mov_b32 v232, 0")
        p.raw("    global_load_dword v205, v232, s[96:97] sc1")
        p.raw("    s_waitcnt vmcnt(0)")
        p(f"v_readfirstlane_b32 {s(sNON)}, v205")
        p("s_branch S1_tag")
        p.label("S1_havetag")
        p(f"v_mov_b32 v232, {LDS_RED + 8192}")
        p("v_mov_b32 v233, 0")
        p.raw("    ds_write_b32 v232, v233")
        p("s_lshl_b32 s72, s2, 7")
        p("s_add_u32 s72, s72, s70")
        p(f"v_mov_b32 v232, {s(sNON)}")
        p("v_mov_b32 v233, 0")
        p("s_mov_b32 exec_lo, 1")
        p("s_mov_b32 exec_hi, 0")
        p.raw(f"    buffer_store_dword v232, v233, {s(SWS,4)}, s72 offen sc1")
        poll([237], "s70", "s71")
        p.raw("    s_waitcnt lgkmcnt(0)")
        p("s_branch S1_skip")
        p.label("S1_touch")
        p("s_lshr_b32 s74, s2, 3")
        p("s_mul_i32 s74, s74, 51200")
        p(f"s_sub_u32 s75, {s(sWV)}, 1")
        p("s_lshl_b32 s75, s75, 13")
        p("v_lshlrev_b32 v246, 7, v2")
        p("v_add_u32 v246, s75, v246")
        p("v_min_u32 v246, 51072, v246")
        p(f"s_add_u32 s74, s74, {WS_WF}")
        if os.environ.get('TOUCH', '0') == '1': p.raw(f"    buffer_load_dword v247, v246, {s(SWS,4)}, s74 offen")
        p.label("S1_skip")
        p("s_barrier")
        stamp(p, 8)
    def pre_all():
        p(f"s_cmp_lg_u32 {s(sWV)}, 0")
        p("s_cbranch_scc1 SM_skip")
        for k in range(4): p.raw(f"    buffer_load_dword {v(242+k)}, {v(238+k)}, {s(SWS,4)}, s70 offen sc1")
        p.label("SM_skip")
    def gateB():
        p(f"s_cmp_lg_u32 {s(sWV)}, 0")
        p("s_cbranch_scc1 SA_done")
        p.raw("    s_waitcnt vmcnt(0)")
        for k in range(4): p(f"v_xor_b32 {v(242+k)}, {s(sNON)}, {v(242+k)}")
        p("v_or3_b32 v242, v242, v243, v244")
        p("v_or_b32 v242, v242, v245")
        p("v_cmp_ne_u32 vcc, 0, v242")
        p("s_nop 4")
        p("s_cbranch_vccz SA_skip")
        poll([238, 239, 240, 241], "s70", "-1", "-1", setexec=False)
        p.label("SA_skip")
        p(f"v_mov_b32 v232, {LDS_RED + 8192}")
        p("v_mov_b32 v233, 1")
        p.raw("    ds_write_b32 v232, v233")
        p.raw("    s_waitcnt lgkmcnt(0)")
        p.label("SA_done")
    def waitB():
        p(f"v_mov_b32 v232, {LDS_RED + 8192}")
        p(f"s_mov_b32 s95, {SPIN*8}")
        p("s_waitcnt lgkmcnt(0)")
        p.label("WB_loop")
        p.raw("    ds_read_b32 v233, v232")
        p.raw("    s_waitcnt lgkmcnt(0)")
        p("v_readfirstlane_b32 s73, v233")
        p("s_sub_u32 s95, s95, 1")
        p("s_cmp_eq_u32 s95, 0")
        p("s_cbranch_scc1 WB_out")
        p("s_cmp_eq_u32 s73, 0")
        p("s_cbranch_scc0 WB_out")
        p("s_sleep 1")
        p("s_branch WB_loop")
        p.label("WB_out")
    emit_p2(p, dict(sync1=sync1, pre_all=pre_all, gateB=gateB, waitB=waitB, wdma=wdma))
    S = dict(RT=17, CT=18, A=40, B=44, t0=36, t1=37, T0=38, OB=39, TL=19)
    p("s_mov_b32 s30, s29")
    p("s_load_dwordx2 s[4:5], s[0:1], 56")
    p3_setup(p, sWV, S)
    p("s_and_b32 s50, s2, 3")
    p("s_lshl_b32 s50, s50, 6")
    p("s_bfe_u32 s51, s2, 0x10002")
    p("s_lshl_b32 s51, s51, 2")
    p("s_add_u32 s50, s50, s51")
    p("v_and_b32 v1, 7, v2")
    p("v_lshlrev_b32 v1, 3, v1")
    p("v_bfe_u32 v3, v2, 3, 2")
    p("v_add3_u32 v1, v1, v3, s50")
    p("v_lshlrev_b32 v237, 7, v1")
    p(f"s_add_u32 s70, s70, 32768")
    p("s_lshl_b32 s72, s2, 7")
    p("s_add_u32 s72, s72, s70")
    p(f"v_mov_b32 v232, {s(sNON)}")
    p("v_mov_b32 v233, 0")
    p("s_waitcnt lgkmcnt(0)")
    srd(p, 12, 4, 2048*1280)
    p("s_waitcnt vmcnt(0)")
    p("s_barrier")
    stamp(p, 18)
    p(f"s_cmp_lg_u32 {s(sWV)}, 0")
    p("s_cbranch_scc1 S2_a")
    p("s_mov_b32 exec_lo, 1")
    p("s_mov_b32 exec_hi, 0")
    p.raw(f"    buffer_store_dword v232, v233, {s(SWS,4)}, s72 offen sc1")
    p("s_mov_b32 exec_lo, -1")
    p("s_mov_b32 exec_hi, -1")
    p.label("S2_a")
    if NWL:
        p(f"v_add_u32 v1, s30, {v(P3_V+4)}")
        for f in range(NWL): p(f"ds_read_b128 {v(P3_W+4*f,4)}, v1 offset:{f*1024}")
    for f in range(NWL, 25):
        ks, j = divmod(f, 5)
        p(f"buffer_load_dwordx4 {v(P3_W+4*f,4)}, {v(P3_V + ks//4)}, {s(SWS,4)}, {s(S['B']+j)} offen offset:{(ks%4)*1024} sc1")
    p("s_waitcnt lgkmcnt(0)")
    p(f"s_cmp_lg_u32 {s(sWV)}, 0")
    p("s_cbranch_scc1 S2_skip")
    poll([237], "s70", "-1", "0")
    p.label("S2_skip")
    p("s_barrier")
    stamp(p, 19)
    if STAMP and os.environ.get('DBGOUT'):
        sel = (0, 1, 3, 4, 5, 6, 7, 8, 10, 12, 17, 18, 19)
        for i, ln in enumerate(sel):
            p(f"v_readlane_b32 {s(76+i)}, {v(p.stv)}, {ln}")
    if STAMP:
        stamp_flush(p, 0, SWS, 8, sWV)
        p("s_mov_b32 exec_lo, -1"); p("s_mov_b32 exec_hi, -1")
        p.stv = 3
    p3_main(p, sWV, SWS, 12, S, 'sc1')
    stamp(p, 6)
    if STAMP: p("s_waitcnt vmcnt(0)")
    stamp(p, 7)
    if STAMP and os.environ.get('DBGOUT'):
        p(f"s_sub_u32 s34, s2, {int(os.environ['DBGOUT'])}")
        p(f"s_or_b32 s34, s34, {s(sWV)}")
        p("s_cmp_lg_u32 s34, 0")
        p("s_cbranch_scc1 DBG_skip")
        p(f"v_readlane_b32 s89, {v(p.stv)}, 24")
        p(f"v_readlane_b32 s90, {v(p.stv)}, 7")
        for i in range(1, 15):
            p(f"s_sub_u32 s34, {s(76+i)}, s76")
            p(f"v_writelane_b32 v20, s34, {i}")
        p("v_mbcnt_lo_u32_b32 v21, -1, 0")
        p("v_lshlrev_b32 v21, 2, v21")
        p("s_mov_b32 exec_lo, 0x7ffe")
        p("s_mov_b32 exec_hi, 0")
        p("global_store_dword v21, v20, s[96:97]")
        p("s_mov_b32 exec_lo, -1")
        p("s_mov_b32 exec_hi, -1")
        p.label("DBG_skip")
    stamp_flush(p, 2, SWS, 8, sWV)
    p.label("K1_end")
    p("s_endpgm")
    p.pad()
    return p.text(), dict(name=name, vgpr=256, sgpr=100, grid=256, block=512, lds=163840)
```

```python
from asmlib import *
from gen import *
import os

KVP_STRIDE = 2304

def gen_k1():
    p = Prog()
    header(p, "k1_kernel")
    p.stv = 206
    emit_p1(p, False)
    p.pad()
    return p.text(), dict(name="k1_kernel", vgpr=207, sgpr=100, grid=256, block=512, lds=147456)

def emit_p1(p, fused):
    SX, SW, SWS, SWO, SGW = 12, 16, 20, 68, 72
    sRT, sHG, sBR, sKC, sOX, sOW, sWV = 24, 25, 26, 28, 29, 30, 33
    sMH, sNG = 41, 42
    sINIT, sSCL, sFLG = 44, 48, 52
    sM0X, sM0W = 56, 57
    IMG = 49152
    p("s_cmp_ge_u32 s2, 256")
    p("s_cbranch_scc1 K1_end")
    stamp(p, 0)
    p("s_load_dwordx4 s[4:7], s[0:1], 0")
    p("s_load_dwordx2 s[8:9], s[0:1], 32")
    p("s_load_dwordx2 s[10:11], s[0:1], 72")
    p("s_load_dwordx2 s[76:77], s[0:1], 16")
    p("s_load_dwordx4 s[80:83], s[0:1], 40")
    if fused: p("s_load_dwordx2 s[96:97], s[0:1], 64")
    p("v_lshrrev_b32 v1, 6, v0")
    p("v_and_b32 v2, 63, v0")
    p(f"v_readfirstlane_b32 {s(sWV)}, v1")
    p("s_and_b32 s34, s2, 7")
    p("s_lshr_b32 s35, s2, 3")
    p("s_lshr_b32 s36, s34, 2")
    p("s_and_b32 s37, s34, 3")
    if os.environ.get('AFIRST', '0') == '1':
        p("s_bfe_u32 s58, s35, 0x30001")
        p("s_lshr_b32 s59, s35, 4")
        p("s_lshl_b32 s59, s59, 1")
        p("s_and_b32 s38, s35, 1")
        p("s_or_b32 s59, s59, s38")
    else:
        p("s_lshr_b32 s58, s35, 2")
        p("s_and_b32 s59, s35, 3")
    p(f"s_lshl_b32 {s(sRT)}, s36, 3")
    p(f"s_add_u32 {s(sRT)}, {s(sRT)}, s58")
    if os.environ.get('XMAP', '0') == '1':
        p(f"s_lshr_b32 {s(sBR)}, s37, 1")
        p("s_and_b32 s40, s37, 1")
        p("s_lshl_b32 s40, s40, 2")
        p(f"s_add_u32 {s(sHG)}, s59, s40")
    else:
        p(f"s_lshr_b32 {s(sBR)}, s59, 1")
        p(f"s_and_b32 {s(sHG)}, s59, 1")
        p("s_lshl_b32 s40, s37, 1")
        p(f"s_add_u32 {s(sHG)}, {s(sHG)}, s40")
    p("s_lshl_b32 s43, s37, 2")
    p("s_add_u32 s43, s43, s59")
    vXO, vWO = 4, 6
    p("v_lshrrev_b32 v3, 3, v2")
    p("v_and_b32 v10, 7, v2")
    p("v_xor_b32 v10, v10, v3")
    p("v_lshlrev_b32 v10, 4, v10")
    p("s_movk_i32 s40, 1280")
    p(f"v_mad_u32_u24 {v(vXO)}, v3, s40, v10")
    p(f"s_lshl_b32 s34, {s(sRT)}, 7")
    p(f"s_lshl_b32 s35, {s(sWV)}, 4")
    p("s_add_u32 s34, s34, s35")
    p("s_mul_i32 s34, s34, 1280")
    p(f"v_add_u32 {v(vXO)}, s34, {v(vXO)}")
    p(f"v_add_u32 {v(vXO+1)}, 9216, {v(vXO)}")
    p("v_lshrrev_b32 v3, 5, v2")
    p("v_bfe_u32 v10, v2, 1, 4")
    p("v_and_b32 v11, 1, v2")
    p("v_lshlrev_b32 v11, 4, v11")
    p("s_movk_i32 s35, 3840")
    p("v_mad_u32_u24 v11, v3, s35, v11")
    p(f"s_and_b32 s36, {s(sWV)}, 1")
    p("s_lshl_b32 s36, s36, 2")
    p(f"s_mul_i32 s37, {s(sWV)}, {8*3840}")
    p(f"s_mul_i32 s38, {s(sHG)}, 160")
    p("s_add_u32 s37, s37, s38")
    p("v_mov_b32 v16, 0x40000000")
    for i in range(2):
        p(f"v_or_b32 v12, s36, v3")
        if i: p("v_or_b32 v12, 2, v12")
        p("v_xor_b32 v12, v12, v10")
        p("v_mul_u32_u24 v13, 52, v12")
        p("v_lshrrev_b32 v13, 8, v13")
        p("v_mul_u32_u24 v14, 5, v13")
        p("v_sub_u32 v14, v12, v14")
        p("v_lshl_add_u32 v14, v14, 5, v11")
        p("v_mad_u32_u24 v14, v13, s40, v14")
        p(f"v_add_u32 v14, s37, v14")
        if i: p(f"v_add_u32 v14, {2*3840-1024}, v14")
        p("v_cmp_eq_u32 vcc, 15, v12")
        p(f"v_cndmask_b32 {v(vWO+i)}, v14, v16, vcc")
        p(f"v_add_u32 {v(vWO+2+i)}, 13312, {v(vWO+i)}")
    p(f"s_lshl_b32 {s(sM0X)}, {s(sWV)}, 11")
    p(f"s_lshl_b32 {s(sM0W)}, {s(sWV)}, 12")
    p(f"s_add_u32 {s(sM0W)}, {s(sM0W)}, 16384")
    ROTG = int(os.environ.get('ROTG', '4'))
    if ROTG == 10:
        p(f"s_mul_i32 {s(sKC)}, s59, 3")
        p(f"s_add_u32 {s(sKC)}, {s(sKC)}, s58")
        p(f"s_sub_u32 s34, {s(sKC)}, 10")
        p(f"s_cmp_ge_u32 {s(sKC)}, 10")
        p(f"s_cselect_b32 {s(sKC)}, s34, {s(sKC)}")
    else:
        mg = {3: 86, 4: 64, 5: 52, 2: 128}[ROTG]
        p("s_add_u32 s34, s58, s59")
        p(f"s_mul_i32 s35, s34, {mg}")
        p("s_lshr_b32 s35, s35, 8")
        p(f"s_mul_i32 s35, s35, {ROTG}")
        p("s_sub_u32 s34, s34, s35")
        p("s_mul_i32 s34, s34, 10")
        p(f"s_mul_i32 s34, s34, {mg}")
        p(f"s_lshr_b32 {s(sKC)}, s34, 8")
    p(f"s_lshl_b32 {s(sOX)}, {s(sKC)}, 7")
    p(f"s_mul_i32 {s(sOW)}, {s(sKC)}, 245760")
    p(f"s_mov_b32 m0, {s(sM0X)}")
    p("s_waitcnt lgkmcnt(0)")
    srd(p, SX, 4, 2048*1280)
    p(f"s_cmp_eq_u32 {s(sBR)}, 0")
    p("s_cselect_b32 s6, s6, s8")
    p("s_cselect_b32 s7, s7, s9")
    srd(p, SW, 6, 640*3840)
    tags = {}
    sfx = ['']
    def issue_steps(st):
        slot = (st % 3) * 49152
        g = []
        first = [] if st == 0 else [f"s_add_u32 m0, {s(sM0X)}, {slot}", "s_nop 0"]
        g.append(first + [f"buffer_load_dwordx4 {v(vXO)}, {s(SX,4)}, {s(sOX)} offen lds"])
        g.append([f"buffer_load_dwordx4 {v(vXO+1)}, {s(SX,4)}, {s(sOX)} offen offset:1024 lds"])
        g.append([f"s_add_u32 m0, {s(sM0W)}, {slot}", f"s_add_u32 {s(sOX)}, {s(sOX)}, 128",
                  f"buffer_load_dwordx4 {v(vWO)}, {s(SW,4)}, {s(sOW)} offen lds"])
        for i in range(1, 4):
            g.append([f"buffer_load_dwordx4 {v(vWO+i)}, {s(SW,4)}, {s(sOW)} offen offset:{i*1024} lds"])
        g[-1] += [('tag', st)]
        if st < 9:
            g[-1] += [f"s_add_u32 {s(sOW)}, {s(sOW)}, 245760", f"s_add_u32 {s(sKC)}, {s(sKC)}, 1", f"s_cmp_eq_u32 {s(sKC)}, 10",
                      f"s_cselect_b32 {s(sOX)}, 0, {s(sOX)}", f"s_cselect_b32 {s(sOW)}, 0, {s(sOW)}"]
        return g
    def emit(t):
        if isinstance(t, tuple) and t[0] == 'raw': p.raw("    " + t[1])
        elif isinstance(t, tuple) and t[0] == 'label': p.label(t[1] + sfx[0])
        elif isinstance(t, tuple) and t[0] == 'br': p(t[1] + sfx[0])
        elif isinstance(t, tuple): tags[t[1]] = p.vmtag()
        elif isinstance(t, list):
            for x in t: emit(x)
        else: p(t)
    def issue(st):
        for g in issue_steps(st): emit(g)
    stamp(p, 1)
    issue(0)
    srd(p, SWS, 10, WS_SIZE)
    p("s_getpc_b64 s[60:61]")
    p.label("K1_pc")
    p(f"s_lshl_b32 s34, {s(sWV)}, 13")
    p("v_lshlrev_b32 v26, 7, v2")
    p("v_add_u32 v26, s34, v26")
    p("v_min_u32 v26, CODE_END-K1_pc-4, v26")
    p("global_load_dword v31, v26, s[60:61]")
    if fused:
        p(f"s_or_b32 s34, s2, {s(sWV)}")
        p("s_cmp_lg_u32 s34, 0")
        p("s_cbranch_scc1 P1_notag")
        p("s_memrealtime s[94:95]")
        p("v_mov_b32 v30, 0")
        p("s_waitcnt lgkmcnt(0)")
        p("s_or_b32 s94, s94, 1")
        p("v_mov_b32 v1, s94")
        p("s_mov_b32 exec_lo, 1")
        p("s_mov_b32 exec_hi, 0")
        p.raw("    global_store_dword v30, v1, s[96:97] sc1")
        p("s_mov_b32 exec_lo, -1")
        p("s_mov_b32 exec_hi, -1")
        p.label("P1_notag")
    stamp(p, 2)
    p(f"s_lshr_b32 {s(sMH)}, {s(sWV)}, 2")
    p(f"s_and_b32 {s(sNG)}, {s(sWV)}, 3")
    vXA = [10, 12, 14]; vWA = [16, 20, 24]
    vG, vM = 28, 29
    p(f"v_lshrrev_b32 {v(vG)}, 4, v2")
    p(f"v_and_b32 {v(vM)}, 15, v2")
    p("v_and_b32 v3, 7, v2")
    p(f"v_xor_b32 v3, v3, {v(vG)}")
    p("v_lshlrev_b32 v3, 4, v3")
    p(f"v_lshl_add_u32 v3, {v(vM)}, 7, v3")
    p(f"s_lshl_b32 s34, {s(sMH)}, 13")
    p(f"v_add_u32 {v(vXA[0])}, s34, v3")
    p(f"v_xor_b32 {v(vXA[0]+1)}, 64, {v(vXA[0])}")
    p("v_bfe_u32 v3, v2, 2, 2")
    p(f"v_and_b32 v1, 1, {v(vG)}")
    p("v_lshl_or_b32 v1, v1, 2, v3")
    p(f"v_lshl_add_u32 v30, {v(vG)}, 3, v3")
    p("v_lshlrev_b32 v30, 9, v30")
    p("v_and_b32 v3, 3, v2")
    p("v_lshl_add_u32 v30, v3, 3, v30")
    p("v_add_u32 v30, 16384, v30")
    for jj in range(4):
        p(f"s_add_u32 s35, {s(sNG)}, {4*jj}")
        p(f"v_xor_b32 v3, s35, v1")
        p(f"v_lshl_add_u32 {v(vWA[0]+jj)}, v3, 5, v30")
        p("s_sub_u32 s36, s35, 5")
        p("s_cmp_lt_u32 s36, 5")
        p(f"s_cselect_b32 {s(sFLG+jj)}, {s(sBR)}, 0")
        p(f"s_mul_i32 {s(sINIT+jj)}, {s(sFLG+jj)}, {f32(EPS)}")
        p("s_cmp_lt_u32 s35, 5")
        p("s_cselect_b32 s36, 1, 0")
        p(f"s_andn2_b32 {s(sSCL+jj)}, s36, {s(sBR)}")
    for sl in (1, 2):
        for k in range(2): p(f"v_add_u32 {v(vXA[sl]+k)}, {sl*49152}, {v(vXA[0]+k)}")
        for k in range(4): p(f"v_add_u32 {v(vWA[sl]+k)}, {sl*49152}, {v(vWA[0]+k)}")
    ACC = 32
    FX = [96, 128]; FW = [112, 144]
    for jj in range(4):
        for k in range(16):
            p(f"v_mov_b32 {v(ACC+jj*16+k)}, {s(sINIT+jj) if jj in (1,2) else 0}")
    issue(1)
    def rdx(st, ks, i): return f"ds_read_b128 {v(FX[ks]+4*i,4)}, {v(vXA[st%3]+ks)} offset:{i*2048}"
    def rdw(st, ks, jj, h): return f"ds_read_b64_tr_b16 {v(FW[ks]+4*jj+2*h,2)}, {v(vWA[st%3]+jj)} offset:{ks*16384+h*2048}"
    def mm(ks, jj, i):
        A = ACC + (jj*4+i)*4
        p(f"v_mfma_f32_16x16x32_bf16 {v(A,4)}, {v(FW[ks]+4*jj,4)}, {v(FX[ks]+4*i,4)}, {v(A,4)}")
    def readlist(st, ks, order=(0,1,2,3)):
        L = [rdw(st,ks,order[0],0), rdw(st,ks,order[0],1)]
        for i in range(4): L.append(rdx(st,ks,i))
        for jj in order[1:]:
            L.append(rdw(st,ks,jj,0)); L.append(rdw(st,ks,jj,1))
        return L
    GX, GWt, A0, WOR, WOH, vW0, vW1, vT0, vT1, vL16 = 160, 166, 172, 192, 196, 200, 201, 202, 203, 204
    sGR, sJOB, sWFo = 84, 85, 86
    F = {k: [] for k in range(20)}
    f = F[1]
    f += [f"v_lshlrev_b32 {v(vL16)}, 4, v2",
          f"s_lshl_b32 {s(sJOB)}, s2, 3", f"s_add_u32 {s(sJOB)}, {s(sJOB)}, {s(sWV)}",
          [f"s_cmp_ge_u32 {s(sJOB)}, 800", "s_cselect_b32 s76, s80, s76", "s_cselect_b32 s77, s81, s77",
           "s_cselect_b32 s87, 800, 0", "s_cselect_b32 s88, 20, 0"],
          f"s_mov_b32 {s(SWO)}, s76", f"s_and_b32 {s(SWO+1)}, s77, 0xffff", f"s_mov_b32 {s(SWO+2)}, {640*1280}", f"s_mov_b32 {s(SWO+3)}, 0x20000",
          f"s_mov_b32 {s(SGW)}, s82", f"s_and_b32 {s(SGW+1)}, s83, 0xffff", f"s_mov_b32 {s(SGW+2)}, 1280", f"s_mov_b32 {s(SGW+3)}, 0x20000",
          f"s_sub_u32 s87, {s(sJOB)}, s87", "s_mul_i32 s89, s87, 1639", "s_lshr_b32 s89, s89, 16",
          "s_mul_i32 s90, s89, 40", "s_sub_u32 s90, s87, s90", "s_lshl_b32 s91, s89, 2"]
    f = F[2]
    f += [f"v_add_u32 {v(vT0)}, s91, {v(vG)}",
          f"v_lshrrev_b32 {v(vT1)}, 1, {v(vT0)}", f"v_mul_u32_u24 {v(vT1)}, 20, {v(vT1)}",
          f"v_and_b32 {v(vW0)}, 1, {v(vT0)}", f"v_lshl_add_u32 {v(vT1)}, {v(vW0)}, 2, {v(vT1)}",
          f"v_mul_u32_u24 {v(vW1)}, 40, {v(vT0)}", f"v_subrev_u32 {v(vW1)}, {40*64-16}, {v(vW1)}",
          f"v_cmp_gt_u32 vcc, 64, {v(vT0)}", f"v_mov_b32 {v(vT0)}, 20", None,
          f"v_cndmask_b32 {v(vW1)}, {v(vW1)}, {v(vT1)}, vcc", f"v_cndmask_b32_e64 {v(vT0)}, {v(vT0)}, 8, vcc",
          f"v_lshlrev_b32 {v(vT1)}, 1, {v(vM)}",
          f"v_mad_u32_u24 {v(vW0)}, {v(vW1)}, s40, {v(vT1)}",
          f"v_mad_u32_u24 {v(vW1)}, {v(vT0)}, s40, {v(vW0)}"]
    f = F[3]
    f += ["s_lshl_b32 s91, s90, 5", "s_mul_i32 s90, s90, 40", "s_add_u32 s90, s90, s88", "s_add_u32 s90, s90, s89",
          "s_lshl_b32 s90, s90, 10", f"s_add_u32 s90, s90, {WS_WF}",
          [f"s_cmp_ge_u32 {s(sJOB)}, 1600", "s_cselect_b32 s91, 0x40000000, s91", f"s_cselect_b32 {s(sWFo)}, 0x40000000, s90"],
          f"s_lshl_b32 {s(sGR)}, {s(sRT)}, 4", f"s_add_u32 {s(sGR)}, {s(sGR)}, s43", f"s_lshl_b32 {s(sGR)}, {s(sGR)}, 3",
          f"s_add_u32 {s(sGR)}, {s(sGR)}, {s(sWV)}", f"s_mul_i32 s92, {s(sGR)}, 1280", f"v_lshlrev_b32 {v(vT0)}, 2, v2"]
    f = F[6]
    for k in range(2):
        for q in range(2):
            f.append(f"buffer_load_ushort {v(WOR+2*k+q)}, {v(vW0+k)}, {s(SWO,4)}, s91 offen offset:{2560*q}")
            f.append(f"buffer_load_ushort {v(WOH+2*k+q)}, {v(vW0+k)}, {s(SWO,4)}, s91 offen offset:{2560*q+1280}")
    f += [f"buffer_load_dwordx4 {v(GX,4)}, {v(vL16)}, {s(SX,4)}, s92 offen",
          f"buffer_load_dword {v(GX+4)}, {v(vT0)}, {s(SX,4)}, s92 offen offset:1024",
          f"buffer_load_dwordx4 {v(GWt,4)}, {v(vL16)}, {s(SGW,4)}, 0 offen",
          f"buffer_load_dword {v(GWt+4)}, {v(vT0)}, {s(SGW,4)}, 0 offen offset:1024"]
    if fused:
        F[8] += ["v_mov_b32 v208, 0", "global_load_dword v208, v208, s[96:97] sc1"]
    f = F[12]
    for k in range(4): f.append(f"v_lshl_or_b32 {v(WOR+k)}, {v(WOH+k)}, 16, {v(WOR+k)}")
    f.append(f"buffer_store_dwordx4 {v(WOR,4)}, {v(vL16)}, {s(SWS,4)}, {s(sWFo)} offen {SC}")
    for k in range(5):
        f += [f"v_lshlrev_b32 {v(A0+4*k)}, 16, {v(GX+k)}", f"v_and_b32 {v(A0+4*k+1)}, 0xffff0000, {v(GX+k)}",
              f"v_lshlrev_b32 {v(A0+4*k+2)}, 16, {v(GWt+k)}", f"v_and_b32 {v(A0+4*k+3)}, 0xffff0000, {v(GWt+k)}"]
    f = F[13]
    for k in range(5):
        f += [f"v_mul_f32 {v(A0+4*k)}, {v(A0+4*k)}, {v(A0+4*k+2)}", f"v_mul_f32 {v(A0+4*k+1)}, {v(A0+4*k+1)}, {v(A0+4*k+3)}"]
    for k in range(5): f.append(f"v_cvt_pk_bf16_f32 {v(A0+4*k+2)}, {v(A0+4*k)}, {v(A0+4*k+1)}")
    f = F[14]
    for k in range(5):
        f += [f"v_lshlrev_b32 {v(A0+4*k)}, 16, {v(A0+4*k+2)}", f"v_and_b32 {v(A0+4*k+1)}, 0xffff0000, {v(A0+4*k+2)}"]
    for k in range(5): f.append(f"v_add_f32 {v(A0+4*k)}, {v(A0+4*k)}, {v(A0+4*k+1)}")
    G = A0
    f += [f"v_add_f32 {v(A0)}, {v(A0)}, {v(A0+4)}", f"v_add_f32 {v(A0+8)}, {v(A0+8)}, {v(A0+12)}",
          f"v_add_f32 {v(A0)}, {v(A0)}, {v(A0+16)}", f"v_add_f32 {v(A0)}, {v(A0)}, {v(A0+8)}"]
    f = F[15]
    for sh in (1, 2, 4, 8): f += [f"v_add_f32_dpp {v(G)}, {v(G)}, {v(G)} row_shr:{sh} row_mask:0xf bank_mask:0xf", None]
    f += [f"v_add_f32_dpp {v(G)}, {v(G)}, {v(G)} row_bcast:15 row_mask:0xa bank_mask:0xf", None,
          f"v_add_f32_dpp {v(G)}, {v(G)}, {v(G)} row_bcast:31 row_mask:0xc bank_mask:0xf",
          f"s_mov_b32 s62, {f32(LOG2E)}", f"s_mov_b32 s63, {f32(LOG2E)}",
          f"v_cvt_pk_bf16_f32 {v(G)}, {v(G)}, {v(G)}", f"v_lshlrev_b32 {v(G)}, 16, {v(G)}",
          f"v_mul_f32 {v(G)}, s62, {v(G)}", f"v_exp_f32 {v(G)}, -{v(G)}", None, f"v_add_f32 {v(G)}, 1.0, {v(G)}",
          f"v_rcp_f32 {v(G)}, {v(G)}", None, f"v_cvt_pk_bf16_f32 {v(G)}, {v(G)}, {v(G)}"]
    f = F[16]
    f += [f"v_lshlrev_b32 {v(G)}, 16, {v(G)}", f"v_sub_f32 {v(G+1)}, 1.0, {v(G)}",
          f"v_cvt_pk_bf16_f32 {v(G+1)}, {v(G+1)}, {v(G+1)}", f"v_lshlrev_b32 {v(G+1)}, 16, {v(G+1)}",
          f"s_lshl_b32 s92, {s(sGR)}, 3", f"s_add_u32 s92, s92, {WS_G}", f"v_mov_b32 {v(vT0)}, 0",
          ["s_mov_b32 exec_lo, 0", "s_mov_b32 exec_hi, 0x80000000",
           f"buffer_store_dwordx2 {v(G,2)}, {v(vT0)}, {s(SWS,4)}, s92 offen {SC}", "s_mov_b32 exec_lo, -1", "s_mov_b32 exec_hi, -1"]]
    vIM = 4
    f += [f"s_lshl_b32 s34, {s(sMH)}, 6", f"v_add_u32 v3, s34, {v(vM)}", f"s_lshl_b32 s34, {s(sNG)}, 2"]
    f = F[17]
    sPD = 58
    for jj in range(4):
        f += [[f"s_add_u32 s35, {s(sNG)}, {4*jj}", "s_cmp_ge_u32 s35, 5", f"s_cselect_b32 {s(sPD+jj)}, {s(sBR)}, 0",
               f"s_cmp_eq_u32 {s(sPD+jj)}, 1", "s_cselect_b32 s36, 0x1800, 0x1400" if False else "s_cselect_b32 s36, 6, 5",
               "s_cselect_b32 s37, 48, 40", f"s_cselect_b32 s39, {IMG - 4096}, {IMG}" if False else "s_cselect_b32 s39, 44, 48",
               "s_lshl_b32 s36, s36, 10", "s_lshl_b32 s39, s39, 10"],
              f"s_add_u32 s35, s34, {16*jj}", f"v_add_u32 v8, s35, {v(vG)}", "v_mul_u32_u24 v9, 52, v8", "v_lshrrev_b32 v9, 8, v9",
              "v_mul_u32_u24 v1, 5, v9", "v_sub_u32 v1, v8, v1", "v_lshlrev_b32 v1, 3, v1", "v_mad_u32_u24 v1, v3, s37, v1",
              "v_mad_u32_u24 v1, v9, s36, v1", f"v_add_u32 {v(vIM+jj)}, s39, v1"]
    f = F[18]
    f += ["v_lshrrev_b32 v8, 7, v0", "v_and_b32 v9, 127, v0", "v_mul_u32_u24 v9, 48, v9", "s_movk_i32 s36, 6144", "v_mad_u32_u24 v8, v8, s36, v9",
          f"v_mov_b32 {v(vT0)}, 0x3f80", f"v_mov_b32 {v(vT1)}, 0", f"v_mov_b32 {v(vW0)}, 0", f"v_mov_b32 {v(vW1)}, 0",
          f"v_add_u32 v8, {IMG + 20480}, v8",
          [f"s_cmp_eq_u32 {s(sBR)}, 0", ('br', "s_cbranch_scc1 K1_nopad"),
           ('raw', f"ds_write_b64 v8, {v(vW0,2)} offset:40"), ('raw', f"ds_write_b64 v8, {v(vT0,2)} offset:{40+24576}"), ('label', 'K1_nopad')],
          f"s_mov_b32 s38, {f32(EPS)}", f"s_mov_b32 s64, {f32(QSCALE)}", f"s_mov_b32 s65, {f32(QSCALE)}",
          f"s_mul_i32 s93, {s(sWV)}, 640", f"v_add_u32 v30, s93, {v(vL16)}", f"v_add_u32 v31, {IMG}, v30",
          f"s_mul_i32 s93, {s(sHG)}, {4*81920}", f"s_mul_i32 s35, {s(sRT)}, 5120", "s_add_u32 s93, s93, s35",
          f"s_mul_i32 s35, {s(sBR)}, {3*0x300000}", "s_add_u32 s93, s93, s35"]
    def block(ks, L, steps, fill, order=(0,1,2,3), after=None):
        n = 0
        fill = list(fill)
        per = 2
        for jj in order:
            for i in range(4):
                mm(ks, jj, i)
                n += 1
                did = 0
                if L: p(L.pop(0)); did += 1
                if n % 2 == 0 and n >= 4 and steps: emit(steps.pop(0)); did += 1
                k = per - did if (L or steps) else per + 1
                left = 16 - n
                while fill and (k > 0 or len(fill) > left * (per + 1)):
                    t = fill.pop(0)
                    if t is None: break
                    emit(t); k -= 1
            if after: after(jj)
        for t in fill:
            if t is not None: emit(t)
        assert not L and not steps
    T = 160
    def epi(jj):
        A = ACC + jj*16
        if jj in (1, 2):
            p(f"s_cmp_eq_u32 {s(sFLG+jj)}, 0")
            p(f"s_cbranch_scc1 K1_nophi{jj}{sfx[0]}")
            for k in range(8): p(f"v_pk_mul_f32 {v(T+2*k,2)}, {v(A+2*k,2)}, s[62:63]")
            for k in range(16): p(f"v_exp_f32 {v(T+k)}, {v(T+k)} clamp")
            for k in range(16): p(f"v_max_f32 {v(A+k)}, s38, {v(A+k)}")
            for k in range(8): p(f"v_pk_add_f32 {v(A+2*k,2)}, {v(A+2*k,2)}, {v(T+2*k,2)}")
            p.label(f"K1_nophi{jj}{sfx[0]}")
        if jj in (0, 1):
            p(f"s_cmp_eq_u32 {s(sSCL+jj)}, 0")
            p(f"s_cbranch_scc1 K1_noscl{jj}{sfx[0]}")
            for k in range(8): p(f"v_pk_mul_f32 {v(A+2*k,2)}, {v(A+2*k,2)}, s[64:65]")
            p.label(f"K1_noscl{jj}{sfx[0]}")
        P = 96 + jj*8
        for k in range(8): p(f"v_cvt_pk_bf16_f32 {v(P+k)}, {v(A+2*k)}, {v(A+2*k+1)}")
        if jj == 0:
            for i in range(4): p(f"ds_write_b64 {v(vIM+jj)}, {v(P+2*i,2)} offset:{i*640}")
        else:
            p(f"s_cmp_eq_u32 {s(sPD+jj)}, 0")
            p(f"s_cbranch_scc1 K1_dn{jj}{sfx[0]}")
            for i in range(4): p(f"ds_write_b64 {v(vIM+jj)}, {v(P+2*i,2)} offset:{i*768}")
            p(f"s_branch K1_wr{jj}{sfx[0]}")
            p.label(f"K1_dn{jj}{sfx[0]}")
            for i in range(4): p.raw(f"    ds_write_b64 {v(vIM+jj)}, {v(P+2*i,2)} offset:{i*640}")
            p.label(f"K1_wr{jj}{sfx[0]}")
    if os.environ.get('EARLY', '0') == '1':
        for kf in (1, 2, 3, 6):
            for t in F[kf]:
                if t is not None: emit(t)
            F[kf] = []
        for a_, b_ in ((12, 6), (13, 7), (14, 8), (15, 9), (16, 10)):
            if a_ == 16:
                k_ = [i for i, t in enumerate(F[16]) if isinstance(t, str) and t.startswith(f"s_lshl_b32 s34, {s(sMH)}")][0]
                F[b_] = F[b_] + F[16][:k_]; F[16] = F[16][k_:]
            else:
                F[b_] = F[b_] + F[a_]; F[a_] = []
    UP3 = os.environ.get('UP3', '0') == '1'
    if UP3: issue(2)
    p.wait_vm_tag(tags[0])
    p("s_barrier")
    stamp(p, 3)
    stampc(p, 30)
    for t in readlist(0, 0): p(t)
    LAST = (1, 2, 0, 3)
    STAG = os.environ.get('STAG', '0') == '1'
    def loop(late):
        sfx[0] = 'L' if late else 'E'
        if not late and not UP3: issue(2)
        for st in range(10):
            block(0, readlist(st, 1, LAST if st == 9 else (0,1,2,3)), issue_steps(st+2) if (late and st+2 <= 9) else [], F[2*st])
            if st < 9:
                p.wait_vm_tag(tags[st+1], " lgkmcnt(0)")
                p("s_barrier")
                if STAMP > 1: stamp(p, 9 + st)
                block(1, readlist(st+1, 0), issue_steps(st+3) if (not late and st+3 <= 9) else [], F[2*st+1])
            else:
                def after(jj):
                    k = LAST.index(jj)
                    if k >= 1: epi(LAST[k-1])
                block(1, [], [], F[19], LAST, after)
                stamp(p, 4)
                stampc(p, 31)
                epi(LAST[3])
    if STAG:
        p(f"s_cmp_lt_u32 {s(sWV)}, 4")
        p("s_cbranch_scc0 K1_loopL")
        save = (list(p.lg), list(p.vm), p.vmcount, dict(tags))
        loop(False)
        p("s_branch K1_loopdone")
        p.label("K1_loopL")
        p.lg, p.vm, p.vmcount = list(save[0]), list(save[1]), save[2]
        tags.clear(); tags.update(save[3])
        loop(True)
        p.label("K1_loopdone")
    else:
        loop(False)
    p("s_waitcnt lgkmcnt(0)")
    p("s_barrier")
    stamp(p, 5)
    DEFER = fused and os.environ.get('DEFER', '0') == '1'
    p("s_mov_b32 exec_hi, 0xff")
    D = 32
    DR = lambda b: (192 + 4*b) if (DEFER and b < 4) else D + 4*b
    def rdblk(b):
        p(f"ds_read_b128 {v(DR(b),4)}, v31 offset:{b*5120}")
    def stblk(b):
        off = (b//4)*0x300000 + (b%4)*81920
        p(f"s_add_u32 s35, s93, {off}")
        p(f"buffer_store_dwordx4 {v(DR(b),4)}, v30, {s(SWS,4)}, s35 offen {SC}")
    for b in range(4): rdblk(b)
    p(f"s_cmp_eq_u32 {s(sBR)}, 0")
    p("s_cbranch_scc0 K1_bpath")
    p.begin_cond()
    for b in range(4,12): rdblk(b)
    for b in range(12): stblk(b)
    if fused:
        p("s_mov_b32 exec_hi, -1")
        p("s_mov_b32 s93, 0x40000000")
        p("s_mov_b32 s92, 0x40000000")
        p("s_branch P1_end")
    else:
        stamp(p, 6)
        if STAMP: p("s_waitcnt vmcnt(0)")
        stamp(p, 7)
        stamp_flush(p, 0, SWS, 8, sWV)
        p("s_endpgm")
    p.end_cond()
    p.label("K1_bpath")
    p("s_waitcnt lgkmcnt(0)")
    if not DEFER:
        for b in range(4): stblk(b)
    p("s_mov_b32 exec_hi, -1")
    p("s_mov_b32 s92, 0x40000000")
    p(f"s_cmp_gt_u32 {s(sWV)}, 3")
    p("s_cbranch_scc1 P1_end" if fused else "s_cbranch_scc1 K1_end")
    p("v_lshrrev_b32 v7, 5, v2")
    p("v_bfe_u32 v6, v2, 2, 2")
    p("v_lshl_add_u32 v5, v7, 3, v6")
    p("v_mul_u32_u24 v5, 48, v5")
    p("v_bfe_u32 v6, v2, 4, 1")
    p("v_lshl_add_u32 v5, v6, 5, v5")
    p("v_and_b32 v6, 3, v2")
    p("v_lshl_add_u32 v5, v6, 3, v5")
    p(f"s_mul_i32 s35, {s(sWV)}, 6144")
    p(f"s_add_u32 s35, s35, {IMG + 20480}")
    p("v_add_u32 v5, s35, v5")
    KV = 176 if DEFER else 96
    Fr = 112
    for t in range(8):
        for h in range(2): p(f"ds_read_b64_tr_b16 {v(Fr+8*t+2*h,2)}, v5 offset:{t*768+h*192}")
        for h in range(2): p(f"ds_read_b64_tr_b16 {v(Fr+8*t+4+2*h,2)}, v5 offset:{24576+t*768+h*192}")
        if t >= 2:
            tt = t-2
            p(f"v_mfma_f32_32x32x16_bf16 {v(KV,16)}, {v(Fr+8*tt,4)}, {v(Fr+8*tt+4,4)}, {'0' if tt==0 else v(KV,16)}")
    for tt in (6,7):
        p(f"v_mfma_f32_32x32x16_bf16 {v(KV,16)}, {v(Fr+8*tt,4)}, {v(Fr+8*tt+4,4)}, {v(KV,16)}")
    p(f"s_lshl_b32 s34, {s(sHG)}, 2")
    p(f"s_add_u32 s34, s34, {s(sWV)}")
    p("s_lshl_b32 s34, s34, 4")
    p(f"s_add_u32 s34, s34, {s(sRT)}")
    p(f"s_mul_i32 s34, s34, {KVP_STRIDE}")
    p(f"s_add_u32 s34, s34, {WS_KVP}")
    if DEFER:
        p("s_mov_b32 s92, s34")
    else:
        p("v_and_b32 v3, 31, v2")
        p("v_lshlrev_b32 v3, 4, v3")
        p("v_mul_u32_u24 v7, 384, v7")
        p("v_add_u32 v3, v3, v7")
        p("s_mov_b32 exec_lo, 0xffffff")
        p("s_mov_b32 exec_hi, 0xffffff")
        for q in range(3):
            p(f"buffer_store_dwordx4 {v(KV+4*q,4)}, v3, {s(SWS,4)}, s34 offen offset:{q*768} {SC}")
    if fused:
        p("s_mov_b32 exec_lo, -1")
        p("s_mov_b32 exec_hi, -1")
        p.label("P1_end")
        p.forget()
        stamp(p, 6)
        return
    stamp(p, 6)
    if STAMP: p("s_waitcnt vmcnt(0)")
    stamp(p, 7)
    stamp_flush(p, 0, SWS, 8, sWV)
    p.label("K1_end")
    p("s_endpgm")
```

```python
import re
from asmlib import *
from gen import *

LDS_V = 24576; LDS_RED = 49216
WS_FLG = 0x1520000
def gen_k2():
    p = Prog()
    header(p, "k2_kernel")
    p.stv = 230
    emit_p2(p, None)
    p.label("K2_end")
    p("s_endpgm")
    p.pad()
    return p.text(), dict(name="k2_kernel", vgpr=236, sgpr=100, grid=256, block=512, lds=LDS_RED + 8448 + 8*1536)

def emit_p2(p, fused):
    SWS = 20
    sH, sR, sWV = 32, 31, 33
    LD = 'sc1' if fused else ''
    SO_ = 8 if fused else 0
    if not fused:
        p("s_cmp_ge_u32 s2, 256")
        p("s_cbranch_scc1 K2_end")
        stamp(p, 0)
        p("s_load_dwordx2 s[12:13], s[0:1], 72")
        p("v_lshrrev_b32 v1, 6, v0")
        p("v_and_b32 v2, 63, v0")
        p(f"v_readfirstlane_b32 {s(sWV)}, v1")
    p("s_and_b32 s36, s2, 7")
    p("s_lshr_b32 s37, s2, 3")
    p("s_and_b32 s38, s36, 3")
    p("s_lshl_b32 s38, s38, 3")
    p("s_and_b32 s39, s37, 7")
    p(f"s_add_u32 {s(sH)}, s38, s39")
    p("s_lshr_b32 s38, s36, 2")
    p("s_lshl_b32 s38, s38, 2")
    p("s_lshr_b32 s39, s37, 3")
    p(f"s_add_u32 {s(sR)}, s38, s39")
    Q0, Q1 = 16, 20
    PQR = 24
    MU, ML = 32, 48
    SB = [64, 80]
    KF = [96, 104]
    VF = [112, 120]
    PB = [128, 136]
    O = 144
    CM = 160
    PAR = 176
    WOR = 229
    WOH = 204
    PQ = 208
    GX, GWt = 64, 70
    vL16, vQA, vHH = 3, 4, 5
    vQo, vPQo, vK0, vK1, vV, vM = 6, 7, 8, 9, 10, 11
    vDM, vW0, vW1, vOo, vOt = 216, 217, 218, 219, 220
    p(f"v_lshlrev_b32 {v(vL16)}, 4, v2")
    p(f"v_and_b32 {v(vQA)}, 31, v2")
    p(f"v_lshrrev_b32 {v(vHH)}, 5, v2")
    sRow = 35
    p(f"s_lshl_b32 {s(sRow)}, {s(sH)}, 11")
    p(f"s_lshl_b32 s36, {s(sR)}, 8")
    p(f"s_add_u32 {s(sRow)}, {s(sRow)}, s36")
    p(f"s_mul_i32 s40, {s(sWV)}, 3072")
    p(f"v_add_u32 {v(vDM)}, s40, {v(vL16)}")
    p(f"s_mul_i32 s41, {s(sRow)}, 40")
    p(f"s_mul_i32 s36, {s(sWV)}, 2560")
    p("s_add_u32 s36, s36, s41")
    p(f"s_add_u32 s42, s36, {WS_KA - 10240}")
    p(f"s_add_u32 s43, s36, {WS_VA - 10240}")
    vD3 = 232 if not fused else 249
    for i in range(3):
        p(f"v_add_u32 v12, {64*i}, v2")
        p("v_mul_u32_u24 v13, 171, v12")
        p("v_lshrrev_b32 v13, 9, v13")
        p("v_mul_u32_u24 v14, 3, v13")
        p("v_sub_u32 v14, v12, v14")
        p("v_lshlrev_b32 v14, 4, v14")
        p(f"v_mad_u32_u24 {v(vD3+i)}, v13, 40, v14")
    sFILL = 55
    p(f"s_lshr_b32 {s(sFILL)}, {s(sWV)}, 2")
    p(f"s_or_b32 {s(sFILL)}, {s(sFILL)}, {s(sR)}")
    p(f"s_cmp_eq_u32 {s(sFILL)}, 0")
    p("s_cselect_b32 s42, 0x40000000, s42")
    p("s_cselect_b32 s43, 0x40000000, s43")
    p(f"s_lshl_b32 s36, {s(sWV)}, 5")
    p(f"v_add_u32 v12, s36, {v(vQA)}")
    p("v_mul_u32_u24 v12, 40, v12")
    p(f"v_lshl_add_u32 {v(vQo)}, {v(vHH)}, 4, v12")
    p(f"v_lshl_add_u32 {v(vPQo)}, {v(vHH)}, 3, v12")
    p(f"s_add_u32 s44, s41, {WS_QB}")
    for k in range(4): p(f"v_mov_b32 {v(Q1+k)}, 0")
    p("s_mov_b32 exec_hi, 0")
    p(f"v_mov_b32 {v(Q1+2)}, 0x3f80")
    p("s_mov_b32 exec_hi, -1")
    tg = {}
    def loads():
        p("s_mov_b32 m0, s40")
        if not fused:
            p("s_waitcnt lgkmcnt(0)")
            srd(p, SWS, 12, WS_SIZE)
            stamp(p, 1)
        else:
            p("s_nop 0")
        for i in range(3):
            if i: p(f"s_add_u32 m0, s40, {i*1024}")
            p(f"buffer_load_dwordx4 {v(vD3+i)}, {s(SWS,4)}, s42 offen {LD} lds")
        p(f"buffer_load_dwordx4 {v(Q0,4)}, {v(vQo)}, {s(SWS,4)}, s41 offen {LD}")
        p("s_mov_b32 exec_hi, 0")
        p(f"buffer_load_dwordx2 {v(Q1,2)}, {v(vQo)}, {s(SWS,4)}, s41 offen offset:32 {LD}")
        p("s_mov_b32 exec_hi, -1")
        tg['K'] = p.vmtag()
        for i in range(3):
            p(f"s_add_u32 m0, s40, {LDS_V + i*1024}")
            p(f"buffer_load_dwordx4 {v(vD3+i)}, {s(SWS,4)}, s43 offen {LD} lds")
        tg['V'] = p.vmtag()
        if fused: fused['deferred']()

    if not fused: loads()
    p(f"s_cmp_ge_u32 {s(sWV)}, 3")
    p("s_cselect_b32 s37, 8, 0")
    p("s_cselect_b32 s38, 3, 0")
    p(f"s_sub_u32 s38, {s(sWV)}, s38")
    p(f"s_lshl_b32 s66, {s(sH)}, 4")
    p("s_add_u32 s66, s66, s37")
    p("s_mul_i32 s66, s66, 2304")
    p("s_mul_i32 s38, s38, 768")
    p("s_add_u32 s66, s66, s38")
    p(f"s_add_u32 s66, s66, {WS_KVP}")
    p(f"s_cmp_ge_u32 {s(sWV)}, 6")
    p("s_cselect_b32 s66, 0x40000000, s66")
    p(f"v_mul_u32_u24 v12, 384, {v(vHH)}")
    p(f"v_min_u32 v13, 23, {v(vQA)}")
    p(f"v_lshl_add_u32 {v(vW0)}, v13, 4, v12")
    p(f"v_add_u32 {v(vW0)}, {LDS_RED}, {v(vW0)}")
    p("s_lshr_b32 s46, s2, 3")
    p("s_lshl_b32 s46, s46, 3")
    p(f"s_add_u32 s46, s46, {s(sWV)}")
    p("s_mul_i32 s46, s46, 6400")
    p(f"s_add_u32 s46, s46, {WS_WF}")
    p(f"v_min_u32 {v(vW1)}, 49, v2")
    p(f"v_lshlrev_b32 {v(vW1)}, 7, {v(vW1)}")
    p(f"s_mul_i32 s36, {s(sWV)}, 1536")
    p(f"v_mul_u32_u24 v12, 48, {v(vQA)}")
    p("v_add_u32 v12, s36, v12")
    p(f"v_lshl_add_u32 {v(vK0)}, {v(vHH)}, 4, v12")
    p(f"v_add_u32 {v(vK1)}, 32, v12")
    p("v_bfe_u32 v12, v2, 2, 2")
    p(f"v_lshl_add_u32 v12, {v(vHH)}, 2, v12")
    p("v_mul_u32_u24 v12, 48, v12")
    p("v_bfe_u32 v13, v2, 4, 1")
    p("v_lshl_add_u32 v12, v13, 5, v12")
    p("v_and_b32 v14, 3, v2")
    p("v_lshl_add_u32 v12, v14, 3, v12")
    p(f"s_add_u32 s36, s36, {LDS_V}")
    p(f"v_add_u32 {v(vV)}, s36, v12")
    sOM, sOT = 68, 69
    p(f"s_lshl_b32 s36, {s(sR)}, 4")
    p(f"s_lshl_b32 s37, {s(sWV)}, 1")
    p("s_add_u32 s36, s36, s37")
    p("s_mul_i32 s36, s36, 40960")
    p(f"s_add_u32 s36, s36, {WS_OF}")
    p(f"s_lshl_b32 s39, {s(sH)}, 9")
    p(f"s_add_u32 {s(sOM)}, s39, s36")
    p(f"s_lshl_b32 s37, {s(sH)}, 7")
    p("s_add_u32 s37, s37, 16384")
    p(f"s_add_u32 {s(sOT)}, s37, s36")
    p("s_mov_b32 s38, 40960")
    p("v_and_b32 v14, 15, v2")
    p("v_mul_u32_u24 v13, v13, s38") if False else p("v_mul_lo_u32 v13, v13, s38")
    p(f"v_lshl_add_u32 {v(vOt)}, v14, 3, v13")
    p("v_lshl_add_u32 v13, v14, 4, v13")
    p(f"v_lshl_add_u32 {v(vOo)}, {v(vHH)}, 8, v13")
    p(f"v_lshlrev_b32 v12, 2, {v(vHH)}")
    p(f"v_sub_u32 v12, {v(vQA)}, v12")
    p(f"v_mov_b32 v13, {f32(NEG)}")
    for r0 in range(0, 16, 4):
        for r in range(r0, r0+4):
            kb = 8*(r >> 2) + (r & 3)
            p(f"v_cmp_le_i32 {s(56+2*(r&3),2)}, {kb}, v12")
        for r in range(r0, r0+4):
            p(f"v_cndmask_b32 {v(ML+r)}, v13, 0, {s(56+2*(r&3),2)}")
            p(f"v_cndmask_b32 {v(MU+r)}, 0, v13, {s(56+2*(r&3),2)}")
    LB = 221
    p("v_mov_b32 v14, 0xffff")
    p("v_mov_b32 v15, 0xffff0000")
    for k0 in range(0, 8, 2):
        for k in (k0, k0+1):
            for hb in range(2):
                r = 2*k + hb
                kb = 8*(r >> 2) + (r & 3)
                p(f"v_cmp_le_i32 {s(56+2*(r&3),2)}, {kb}, v12")
        for k in (k0, k0+1):
            p(f"v_cndmask_b32 {v(LB+k)}, 0, v14, {s(56+2*((2*k)&3),2)}")
            p(f"v_cndmask_b32 v13, 0, v15, {s(56+2*((2*k+1)&3),2)}")
            p(f"v_or_b32 {v(LB+k)}, {v(LB+k)}, v13")
    MX = [vM, 13, 14, 15]
    for r in MX: p(f"v_mov_b32 {v(r)}, {f32(-3e38)}")
    p(f"v_mul_u32_u24 {v(CM)}, 48, v0")
    p(f"s_cmp_eq_u32 {s(sFILL)}, 0")
    p("s_cselect_b32 s36, 0xf149, 0")
    p(f"v_mov_b32 {v(CM+2)}, s36")
    p(f"v_mov_b32 {v(CM+3)}, 0")
    p(f"v_mov_b32 {v(CM+4)}, 0x3f80")
    p(f"v_mov_b32 {v(CM+5)}, 0")
    if fused:
        fused['sync1'](sH, sR)
        loads()
    stamp(p, 2 + SO_*0 if not fused else 9)
    p.wait_vm_tag(tg['K'])
    p(f"ds_write_b64 {v(CM)}, {v(CM+2,2)} offset:40")
    p("s_waitcnt lgkmcnt(0)")
    p("s_barrier")
    stamp(p, (10 if fused else 3)); stampc(p, 20)
    def rdK(t):
        b = KF[t & 1]
        p(f"ds_read_b128 {v(b,4)}, {v(vK0)} offset:{t*1536}")
        p(f"ds_read_b128 {v(b+4,4)}, {v(vK1)} offset:{t*1536}")
    def rdV(t):
        b = VF[t & 1]
        for c in range(2):
            for hsel in range(2):
                p(f"ds_read_b64_tr_b16 {v(b+4*c+2*hsel,2)}, {v(vV)} offset:{t*1536 + c*768 + hsel*384}")
    def qk(t, half, C):
        S = SB[t & 1]; b = KF[t & 1]
        if half == 0: p(f"v_mfma_f32_32x32x16_bf16 {v(S,16)}, {v(b,4)}, {v(Q0,4)}, {C}")
        else: p(f"v_mfma_f32_32x32x16_bf16 {v(S,16)}, {v(b+4,4)}, {v(Q1,4)}, {v(S,16)}")
    sec = []
    def pe(t):
        for x in (t if isinstance(t, list) else [t]):
            if isinstance(x, tuple): tg[x[1]] = p.vmtag()
            else: p(x)
    sec2 = []
    for k in range(8):
        g_ = [f"buffer_load_dwordx4 {v(PAR+4*k,4)}, {v(vL16)}, {s(SWS,4)}, s66 offen offset:{2304*(k&1)} {LD}"]
        if k & 1: g_.append("s_add_u32 s66, s66, 4608")
        sec2.append(g_)
    LDS_PQ = LDS_RED + 8448
    sec2.insert(0, [f"s_mul_i32 s45, {s(sWV)}, 1280", f"s_add_u32 m0, s45, {LDS_PQ}", "s_add_u32 s45, s45, s44",
                    f"buffer_load_dwordx4 {v(vL16)}, {s(SWS,4)}, s45 offen {LD} lds"])
    sec2.insert(1, ["s_mov_b32 exec_lo, 0xffff", "s_mov_b32 exec_hi, 0", f"buffer_load_dwordx4 {v(vL16)}, {s(SWS,4)}, s45 offen offset:1024 {LD} lds",
                    "s_mov_b32 exec_lo, -1", "s_mov_b32 exec_hi, -1", ('tag', 'PQ')])
    if not fused: sec2.append(f"buffer_load_dword {v(WOR)}, {v(vW1)}, {s(SWS,4)}, s46 offen")
    if fused: sec2 += fused['wdma']()
    def C1(t): return v(MU,16) if t == 0 else (v(ML,16) if t == 8 else '0')
    S3 = [SB[0], SB[1], O]; K3 = [KF[0], KF[1], VF[0]]
    def rdK3(t):
        p(f"ds_read_b128 {v(K3[t%3],4)}, {v(vK0)} offset:{t*1536}")
        p(f"ds_read_b128 {v(K3[t%3]+4,4)}, {v(vK1)} offset:{t*1536}")
    def qk3(t, half):
        if half == 0: p(f"v_mfma_f32_32x32x16_bf16 {v(S3[t%3],16)}, {v(K3[t%3],4)}, {v(Q0,4)}, {C1(t)}")
        else: p(f"v_mfma_f32_32x32x16_bf16 {v(S3[t%3],16)}, {v(K3[t%3]+4,4)}, {v(Q1,4)}, {v(S3[t%3],16)}")
    rdK3(0); rdK3(1); rdK3(2)
    if fused and not fused['defer']: fused['pub_late']()
    qk3(0,0); qk3(0,1); qk3(1,0); qk3(1,1)
    for t in range(9):
        S = S3[t % 3]
        if t+2 <= 8: qk3(t+2, 0)
        for k in range(4): p(f"v_max3_f32 {v(MX[k&3])}, {v(MX[k&3])}, {v(S+2*k)}, {v(S+2*k+1)}")
        if t+2 <= 8: qk3(t+2, 1)
        for k in range(4, 8): p(f"v_max3_f32 {v(MX[k&3])}, {v(MX[k&3])}, {v(S+2*k)}, {v(S+2*k+1)}")
        if t+3 <= 8: rdK3(t+3)
        if t == 3:
            if fused and fused['defer']:
                p("s_waitcnt vmcnt(0)")
            elif fused:
                p(f"s_cmp_eq_u32 {s(sWV)}, 0")
                p("s_cbranch_scc1 P2_vw")
                p.wait_vm_tag(tg['V'])
                p.label("P2_vw")
                p.raw("    s_waitcnt vmcnt(1)")
            else:
                p.wait_vm_tag(tg['V'])
            p(f"ds_write_b64 {v(CM)}, {v(CM+4,2)} offset:{LDS_V + 40}")
            p("s_waitcnt lgkmcnt(0)")
            p("s_barrier")
            stamp(p, 11); stampc(p, 21)
            if fused and fused['defer']: fused['pub_late']()
            if fused and not fused['defer']: fused['pre_all']()
        if t == 7 and fused and fused['defer']: fused['pre_all']()
    assert not sec
    p(f"ds_read_b128 {v(KF[0],4)}, {v(vK0)} offset:0")
    p(f"ds_read_b128 {v(KF[0]+4,4)}, {v(vK1)} offset:0")
    p(f"ds_read_b128 {v(KF[1],4)}, {v(vK0)} offset:{8*1536}")
    p(f"ds_read_b128 {v(KF[1]+4,4)}, {v(vK1)} offset:{8*1536}")
    p(f"v_max3_f32 {v(vM)}, {v(vM)}, v13, v14")
    p(f"v_max_f32 {v(vM)}, {v(vM)}, v15")
    p(f"v_mov_b32 v12, {v(vM)}")
    p(f"v_permlane32_swap_b32 {v(vM)}, v12")
    p(f"v_max_f32 {v(vM)}, {v(vM)}, v12")
    p(f"v_sub_f32 {v(CM)}, 0, {v(vM)}")
    p(f"v_sub_f32 {v(CM+1)}, 0, {v(vM)}")
    for k in range(8): p(f"v_pk_add_f32 {v(MU+2*k,2)}, {v(MU+2*k,2)}, {v(CM,2)}")
    for k in range(2, 16): p(f"v_mov_b32 {v(CM+k)}, {v(CM)}")
    for k in range(8): p(f"v_pk_add_f32 {v(ML+2*k,2)}, {v(ML+2*k,2)}, {v(CM,2)}")
    stamp(p, (12 if fused else 4)); stampc(p, 22)
    if fused: fused['gateB']()
    def rdKb(t, b):
        p(f"ds_read_b128 {v(KF[b],4)}, {v(vK0)} offset:{t*1536}")
        p(f"ds_read_b128 {v(KF[b]+4,4)}, {v(vK1)} offset:{t*1536}")
    def rdVb(t, b):
        for c in range(2):
            for hsel in range(2):
                p(f"ds_read_b64_tr_b16 {v(VF[b]+4*c+2*hsel,2)}, {v(vV)} offset:{t*1536 + c*768 + hsel*384}")
    def qkb(kb, sb, half, C):
        if half == 0: p(f"v_mfma_f32_32x32x16_bf16 {v(SB[sb],16)}, {v(KF[kb],4)}, {v(Q0,4)}, {C}")
        else: p(f"v_mfma_f32_32x32x16_bf16 {v(SB[sb],16)}, {v(KF[kb]+4,4)}, {v(Q1,4)}, {v(SB[sb],16)}")
    first = [True]
    def pvb(vb, pb, c):
        p(f"v_mfma_f32_32x32x16_bf16 {v(O,16)}, {v(VF[vb]+4*c,4)}, {v(PB[pb]+4*c,4)}, {'0' if first[0] else v(O,16)}")
        first[0] = False
    qkb(0,0,0,v(MU,16)); qkb(0,0,1,None)
    qkb(1,1,0,v(ML,16)); qkb(1,1,1,None)
    rdKb(1,0); rdKb(2,1)
    rdVb(0,0); rdVb(8,1)
    for k in range(16): p(f"v_max_f32 {v(SB[0]+k)}, {v(SB[0]+k)}, {v(SB[1]+k)}")
    for k in range(16):
        p(f"v_exp_f32 {v(SB[0]+k)}, {v(SB[0]+k)}")
        if k == 0: qkb(0,1,0,v(CM,16))
        if k == 4: qkb(0,1,1,None)
        if k == 5: rdKb(3,0)
    for k in range(8): p(f"v_cvt_pk_bf16_f32 {v(PB[0]+k)}, {v(SB[0]+2*k)}, {v(SB[0]+2*k+1)}")
    for k in range(8): p(f"v_and_b32 {v(PB[1]+k)}, {v(PB[0]+k)}, {v(LB+k)}")
    for k in range(8): p(f"v_xor_b32 {v(PB[0]+k)}, {v(PB[0]+k)}, {v(PB[1]+k)}")
    if fused: fused['waitB']()
    for t in range(1, 8):
        S = SB[t & 1]
        for k in range(16):
            p(f"v_exp_f32 {v(S+k)}, {v(S+k)}")
            if k == 0 and t+1 <= 7: qkb(t & 1, (t+1) & 1, 0, v(CM,16))
            if k == 3 and t+1 <= 7: qkb(t & 1, (t+1) & 1, 1, None)
            if k == 4 and t+3 <= 7: rdKb(t+3, t & 1)
            if k in (2, 5, 7, 11, 14, 13) and sec2: pe(sec2.pop(0))
            if t == 1:
                if k == 6: pvb(0,0,0)
                if k == 9: pvb(0,0,1)
                if k == 10: rdVb(1, 0)
                if k == 12: pvb(1,1,0)
                if k == 15: pvb(1,1,1)
            else:
                if k == 1: rdVb(t, (t+1) & 1)
                if k == 8: pvb(t & 1, t & 1, 0)
                if k == 12: pvb(t & 1, t & 1, 1)
        for k in range(8): p(f"v_cvt_pk_bf16_f32 {v(PB[(t+1)&1]+k)}, {v(S+2*k)}, {v(S+2*k+1)}")
        if t == 5:
            for st_ in (1, 2, 4):
                for w2 in range(0, 8, 2*st_):
                    for k in range(2): p(f"v_pk_add_f32 {v(PAR+4*w2+2*k,2)}, {v(PAR+4*w2+2*k,2)}, {v(PAR+4*(w2+st_)+2*k,2)}")
            p(f"s_lshl_b32 s36, {s(sWV)}, 10")
            p(f"s_add_u32 s36, s36, {LDS_RED}")
            p(f"v_add_u32 v12, s36, {v(vL16)}")
            p(f"ds_write_b128 v12, {v(PAR,4)}")
        if t == 6:
            p("s_waitcnt lgkmcnt(0)")
            p("s_barrier")
            p.wait_vm_tag(tg['PQ'])
            p(f"v_add_u32 v12, {LDS_PQ}, {v(vPQo)}")
            for k in range(3): p(f"ds_read_b64 {v(PQR+2*k,2)}, v12 offset:{16*k}")
        if t == 7:
            T = 176; U = 188
            p(f"s_mov_b32 s53, {f32(LOG2E)}")
            p(f"s_mov_b32 s54, {f32(EPS)}")
            for k in range(6):
                p(f"v_lshlrev_b32 {v(T+2*k)}, 16, {v(PQR+k)}")
                p(f"v_and_b32 {v(T+2*k+1)}, 0xffff0000, {v(PQR+k)}")
            for k in range(12): p(f"v_mul_f32 {v(U+k)}, s53, {v(T+k)}")
            for k in range(12): p(f"v_exp_f32 {v(U+k)}, {v(U+k)} clamp")
            for k in range(12): p(f"v_max_f32 {v(T+k)}, 0, {v(T+k)}")
            for k in range(12): p(f"v_add_f32 {v(T+k)}, {v(T+k)}, {v(U+k)}")
            for k in range(12): p(f"v_add_f32 {v(T+k)}, s54, {v(T+k)}")
            for k in range(6): p(f"v_cvt_pk_bf16_f32 {v(PQ+k)}, {v(T+2*k)}, {v(T+2*k+1)}")
            p(f"v_mov_b32 {v(PQ+6)}, 0"); p(f"v_mov_b32 {v(PQ+7)}, 0")
            p("s_mov_b32 exec_lo, 0")
            p(f"v_mov_b32 {v(PQ+4)}, 0"); p(f"v_mov_b32 {v(PQ+5)}, 0")
            p("s_mov_b32 exec_lo, -1")
    assert not sec2
    pvb(0,0,0); pvb(0,0,1)
    stamp(p, (13 if fused else 5)); stampc(p, 23)
    RB = 32
    for w2 in range(6): p(f"ds_read_b128 {v(RB+4*w2,4)}, {v(vW0)} offset:{w2*1024}")
    def oepi(A, s_main, s_tail, eps, E):
        p(f"v_mov_b32 v13, {v(A+8)}")
        p(f"v_mov_b32 v14, {v(A+8)}")
        p("v_permlane32_swap_b32 v13, v14")
        if eps: p(f"v_add_f32 v14, {f32(EPS)}, v14")
        p("v_rcp_f32 v14, v14")
        p("s_nop 0")
        p("v_mov_b32 v15, v14")
        for k in range(6): p(f"v_pk_mul_f32 {v(A+2*k,2)}, {v(A+2*k,2)}, v[14:15]")
        for k in range(6): p(f"v_cvt_pk_bf16_f32 {v(E+k)}, {v(A+2*k)}, {v(A+2*k+1)}")
        p(f"buffer_store_dwordx4 {v(E,4)}, {v(vOo)}, {s(SWS,4)}, {s(s_main)} offen {SC}")
        p("s_mov_b32 exec_hi, 0")
        p(f"buffer_store_dwordx2 {v(E+4,2)}, {v(vOt)}, {s(SWS,4)}, {s(s_tail)} offen {SC}")
        p("s_mov_b32 exec_hi, -1")
    oepi(O, sOM, sOT, False, 128)
    stamp(p, (15 if fused else 9))
    for k in range(6): p(f"v_pk_add_f32 {v(RB+2*k,2)}, {v(RB+2*k,2)}, {v(RB+12+2*k,2)}")
    KVF = 136
    for k in range(6): p(f"v_cvt_pk_bf16_f32 {v(KVF+k)}, {v(RB+2*k)}, {v(RB+2*k+1)}")
    p(f"v_mov_b32 {v(KVF+6)}, 0"); p(f"v_mov_b32 {v(KVF+7)}, 0")
    N = 160
    p(f"v_mfma_f32_32x32x16_bf16 {v(N,16)}, {v(KVF,4)}, {v(PQ,4)}, 0")
    p(f"v_mfma_f32_32x32x16_bf16 {v(N,16)}, {v(KVF+4,4)}, {v(PQ+4,4)}, {v(N,16)}")
    stamp(p, (16 if fused else 10))
    p(f"s_add_u32 {s(sOM)}, {s(sOM)}, 20480")
    p(f"s_add_u32 {s(sOT)}, {s(sOT)}, 20480")
    oepi(N, sOM, sOT, True, 176)
    if fused:
        stamp(p, 17)
        return
    stamp(p, 6)
    if STAMP: p("s_waitcnt vmcnt(0)")
    stamp(p, 7)
    stamp_flush(p, 1, SWS, 8, sWV)

def gen_k3():
    p = Prog()
    header(p, "k3_kernel")
    p.stv = 227
    SWS, SO = 8, 12
    sWV, sRT, sCT = 16, 17, 18
    p("s_cmp_ge_u32 s2, 256")
    p("s_cbranch_scc1 K3_end")
    stamp(p, 0)
    p("s_load_dwordx2 s[4:5], s[0:1], 56")
    p("s_load_dwordx2 s[6:7], s[0:1], 72")
    p("v_lshrrev_b32 v1, 6, v0")
    p("v_and_b32 v2, 63, v0")
    p(f"v_readfirstlane_b32 {s(sWV)}, v1")
    p("s_and_b32 s20, s2, 7")
    p("s_lshr_b32 s21, s2, 3")
    p("s_lshl_b32 s22, s20, 2")
    p("s_lshr_b32 s23, s21, 3")
    p(f"s_add_u32 {s(sRT)}, s22, s23")
    p(f"s_and_b32 {s(sCT)}, s21, 7")
    p(f"s_mul_i32 s20, {s(sWV)}, 10240")
    p("v_lshlrev_b32 v3, 4, v2")
    p("v_add_u32 v3, s20, v3")
    p("v_add_u32 v4, 4096, v3")
    p("v_add_u32 v5, 8192, v3")
    sA, sB = 24, 28
    p(f"s_mul_i32 s20, {s(sRT)}, {4*40960}")
    for i in range(4): p(f"s_add_u32 {s(sA+i)}, s20, {WS_OF + i*40960}")
    p(f"s_mul_i32 s20, {s(sCT)}, {5*40960}")
    for j in range(5): p(f"s_add_u32 {s(sB+j)}, s20, {WS_WF + j*40960}")
    p("s_waitcnt lgkmcnt(0)")
    srd(p, SWS, 6, WS_SIZE)
    NB = 6
    FB = 8
    def ld(ks):
        b = FB + 36*(ks % NB)
        vo = v(3 + ks // 4); im = (ks % 4) * 1024
        for j in range(5):
            if j < 4: p(f"buffer_load_dwordx4 {v(b+4*j,4)}, {vo}, {s(SWS,4)}, {s(sA+j)} offen offset:{im}")
            p(f"buffer_load_dwordx4 {v(b+16+4*j,4)}, {vo}, {s(SWS,4)}, {s(sB+j)} offen offset:{im}")
    stamp(p, 1)
    for ks in range(NB): ld(ks)
    stamp(p, 2)
    srd(p, SO, 4, 2048*1280)
    vGT = 6
    p("v_lshrrev_b32 v1, 2, v0")
    p("v_lshlrev_b32 v224, 3, v1") if False else None
    p(f"s_lshl_b32 s20, {s(sRT)}, 9")
    p(f"s_add_u32 s20, s20, {WS_G}")
    GV = FB + 36*NB
    p(f"v_lshlrev_b32 {v(GV+2)}, 3, v1")
    p(f"buffer_load_dwordx2 {v(GV,2)}, {v(GV+2)}, {s(SWS,4)}, s20 offen")
    for ks in range(10):
        b = FB + 36*(ks % NB)
        for j in range(5):
            for i in range(4):
                A = (j*4+i)*4
                p(f"v_mfma_f32_16x16x32_bf16 {a(A,4)}, {v(b+16+4*j,4)}, {v(b+4*i,4)}, {'0' if ks==0 else a(A,4)}")
        if ks + NB < 10: ld(ks + NB)
        if ks == 0: stamp(p, 3)
    stamp(p, 4)
    RS = 336
    p("v_and_b32 v3, 15, v2")
    p(f"v_mul_u32_u24 v3, {RS}, v3")
    p("v_lshrrev_b32 v4, 4, v2")
    p("v_lshl_add_u32 v3, v4, 4, v3")
    p(f"s_mul_i32 s20, {s(sWV)}, {64*RS}")
    p("v_add_u32 v3, s20, v3")
    for j in range(5):
        for i in range(4):
            A = (j*4+i)*4
            p(f"ds_write_b128 v3, {a(A,4)} offset:{i*16*RS + j*64}")
    p(f"v_mul_u32_u24 v4, {RS}, v1")
    p("v_and_b32 v5, 3, v0")
    p("v_mul_u32_u24 v7, 80, v5")
    p("v_add_u32 v4, v4, v7")
    p(f"v_add_u32 v7, {2*64*RS}, v4")
    p("s_waitcnt lgkmcnt(0)")
    p("s_barrier")
    stamp(p, 5)
    R = 8
    for w in range(4):
        for c in range(5):
            p(f"ds_read_b128 {v(R+20*w+4*c,4)}, {v(4 if w < 2 else 7)} offset:{(w&1)*64*RS + 16*c}")
    p("s_movk_i32 s20, 1280")
    p("v_mul_u32_u24 v5, 40, v5")
    p("v_mad_u32_u24 v5, v1, s20, v5")
    p(f"s_mul_i32 s21, {s(sRT)}, {64*1280}")
    p(f"s_mul_i32 s22, {s(sCT)}, 160")
    p("s_add_u32 s21, s21, s22")
    for k in range(20): p(f"v_add_f32 {v(R+k)}, {v(R+k)}, {v(R+20+k)}")
    for k in range(20): p(f"v_mul_f32 {v(R+k)}, {v(GV)}, {v(R+k)}")
    for k in range(20): p(f"v_add_f32 {v(R+40+k)}, {v(R+40+k)}, {v(R+60+k)}")
    for k in range(20): p(f"v_fmac_f32 {v(R+k)}, {v(GV+1)}, {v(R+40+k)}")
    E = 96
    for k in range(10): p(f"v_cvt_pk_bf16_f32 {v(E+k)}, {v(R+2*k)}, {v(R+2*k+1)}")
    p(f"buffer_store_dwordx4 {v(E,4)}, v5, {s(SO,4)}, s21 offen")
    p(f"buffer_store_dwordx4 {v(E+4,4)}, v5, {s(SO,4)}, s21 offen offset:16")
    p(f"buffer_store_dwordx2 {v(E+8,2)}, v5, {s(SO,4)}, s21 offen offset:32")
    stamp(p, 6)
    if STAMP: p("s_waitcnt vmcnt(0)")
    stamp(p, 7)
    stamp_flush(p, 2, SWS, 8, sWV)
    p.label("K3_end")
    p("s_endpgm")
    p.pad()
    return p.text(), dict(name="k3_kernel", vgpr=228+80, arch=228, sgpr=100, grid=256, block=256, lds=4*64*RS)
```

```python
import os
from asmlib import *
from gen import *
from gen1 import emit_p1
from gen23 import emit_p2, WS_FLG, LDS_RED
from gen3 import *

def gen_fused(name):
    p = Prog()
    header(p, name)
    p.stv = 231
    SWS, sWV, sNON = 20, 33, 94
    SPIN = 200000
    BWORD = 161792
    DEFER = os.environ.get('DEFER', '0') == '1'
    BLATE = os.environ.get('BLATE', '0') == '1'
    NWL = int(os.environ.get('NWL', '11')); LDSW = 70656
    def wdma():
        out = []
        for f in range(NWL):
            ks, j = divmod(f, 5)
            out.append([f"s_add_u32 m0, s29, {f*1024 - ks*1024}", "s_nop 0",
                        f"buffer_load_dwordx4 v248, {s(SWS,4)}, {s(24+j)} offen offset:{ks*1024} sc1 lds"])
        return out
    cnt = [0]
    def poll(voffs, sbase, lo, hi=0, setexec=True):
        cnt[0] += 1
        L = f"POLL{cnt[0]}"
        if setexec:
            p(f"s_mov_b32 exec_lo, {lo}")
            p(f"s_mov_b32 exec_hi, {hi}")
        p(f"s_mov_b32 s95, {SPIN}")
        if len(voffs) == 1 and os.environ.get('PPOLL', '0') == '1':
            ld = lambda r: p.raw(f"    buffer_load_dword {v(r)}, {v(voffs[0])}, {s(SWS,4)}, {sbase} offen sc1")
            ld(232)
            p("s_sleep 9")
            p.label(L)
            for (rn, rc) in ((233, 232), (232, 233)):
                ld(rn)
                p.raw("    s_waitcnt vmcnt(1)")
                p(f"v_cmp_ne_u32 vcc, {s(sNON)}, {v(rc)}")
                p("s_sub_u32 s95, s95, 1")
                p("s_cmp_eq_u32 s95, 0")
                p(f"s_cbranch_scc1 {L}_out")
                p("s_nop 2")
                p(f"s_cbranch_vccz {L}_out")
            p(f"s_branch {L}")
        else:
            p.label(L)
            for k, vo in enumerate(voffs):
                p.raw(f"    buffer_load_dword {v(232+k)}, {v(vo)}, {s(SWS,4)}, {sbase} offen sc1")
            p.raw("    s_waitcnt vmcnt(0)")
            p(f"v_xor_b32 v232, {s(sNON)}, v232")
            for k in range(1, len(voffs)):
                p(f"v_xor_b32 {v(232+k)}, {s(sNON)}, {v(232+k)}")
                p(f"v_or_b32 v232, v232, {v(232+k)}")
            p("v_cmp_ne_u32 vcc, 0, v232")
            p("s_sub_u32 s95, s95, 1")
            p("s_cmp_eq_u32 s95, 0")
            p(f"s_cbranch_scc1 {L}_out")
            p("s_nop 2")
            p(f"s_cbranch_vccz {L}_out")
            p("s_sleep 1")
            p(f"s_branch {L}")
        p.label(f"{L}_out")
        p("s_mov_b32 exec_lo, -1")
        p("s_mov_b32 exec_hi, -1")
    def publish(which):
        pass
    emit_p1(p, True)
    def publish1():
        p(f"s_mov_b32 s70, {WS_FLG}")
        p("s_lshl_b32 s72, s2, 7")
        p("s_add_u32 s72, s72, s70")
        p("s_mov_b32 s75, s26")
        if DEFER:
            p("s_cmp_lg_u32 s75, 0")
            p("s_cbranch_scc1 S1_nodrain")
        p("s_waitcnt vmcnt(0)")
        p("s_barrier")
        p.label("S1_nodrain")
        stamp(p, 7)
        p(f"s_cmp_lg_u32 {s(sWV)}, 0")
        p("s_cbranch_scc1 S1_pubdone")
        p(f"v_readfirstlane_b32 {s(sNON)}, v208")
        p(f"s_mov_b32 s95, {SPIN}")
        p.label("S1_tag")
        p(f"s_cmp_lg_u32 {s(sNON)}, 0")
        p("s_cbranch_scc1 S1_havetag")
        p("s_sub_u32 s95, s95, 1")
        p("s_cmp_eq_u32 s95, 0")
        p("s_cbranch_scc1 S1_havetag")
        p("s_sleep 1")
        p("v_mov_b32 v232, 0")
        p.raw("    global_load_dword v208, v232, s[96:97] sc1")
        p.raw("    s_waitcnt vmcnt(0)")
        p(f"v_readfirstlane_b32 {s(sNON)}, v208")
        p("s_branch S1_tag")
        p.label("S1_havetag")
        p(f"v_mov_b32 v232, {s(sNON)}")
        p("v_mov_b32 v233, 0")
        p(f"v_mov_b32 v234, {BWORD}")
        p("s_mov_b32 exec_lo, 1")
        p("s_mov_b32 exec_hi, 0")
        p("s_cmp_lg_u32 s75, 0")
        p("s_cselect_b32 s76, 0x40000000, s72" if DEFER else "s_mov_b32 s76, s72")
        p.raw(f"    buffer_store_dword v232, v233, {s(SWS,4)}, s76 offen sc1")
        p.raw("    ds_write_b32 v234, v233")
        p("s_mov_b32 exec_lo, -1")
        p("s_mov_b32 exec_hi, -1")
        p.label("S1_pubdone")
    def sync1(sH, sR):
        p(f"s_lshr_b32 s36, {s(sH)}, 2")
        p(f"s_lshl_b32 s37, {s(sR)}, 1")
        p("s_sub_u32 s37, s37, 2")
        p("v_add_u32 v236, s37, v2")
        p("v_and_b32 v237, 7, v236")
        p("v_lshlrev_b32 v237, 5, v237")
        p("v_bfe_u32 v236, v236, 3, 1")
        p("v_lshl_add_u32 v237, v236, 2, v237")
        p("s_and_b32 s38, s36, 1")
        p("s_lshl_b32 s38, s38, 3")
        p("s_lshr_b32 s36, s36, 1")
        p("s_add_u32 s38, s38, s36")
        p("v_add_u32 v237, s38, v237")
        p("v_lshlrev_b32 v237, 7, v237")
        p(f"s_cmp_eq_u32 {s(sR)}, 0")
        p("s_cselect_b32 s71, 12, 15")
        p("v_and_b32 v31, 31, v2")
        p("v_lshlrev_b32 v31, 4, v31")
        p("v_lshrrev_b32 v236, 5, v2")
        p("v_mul_u32_u24 v236, 384, v236")
        p("v_add_u32 v31, v31, v236")
        p("v_lshlrev_b32 v238, 7, v2")
        p("v_add_u32 v239, 8192, v238")
        p("v_add_u32 v240, 16384, v238")
        p("v_add_u32 v241, 24576, v238")
        p("s_bfe_u32 s29, s2, 0x30003")
        p(f"s_mul_i32 s29, s29, {5*40960}")
        for j in range(5): p(f"s_add_u32 {s(24+j)}, s29, {WS_WF + j*40960}")
        p(f"s_lshr_b32 s29, {s(sWV)}, 2")
        p("s_lshl_b32 s29, s29, 12")
        p(f"s_lshl_b32 s30, {s(sWV)}, 12")
        p("s_add_u32 s29, s29, s30")
        p("v_lshlrev_b32 v248, 4, v2")
        p("v_add_u32 v248, s29, v248")
        p(f"s_mul_i32 s29, {s(sWV)}, {NWL*1024}")
        p(f"s_add_u32 s29, s29, {LDSW}")
        p(f"s_cmp_lg_u32 {s(sWV)}, 0")
        p("s_cbranch_scc1 S1_skip")
        poll([237], "s70", "s71")
        p.raw("    s_waitcnt lgkmcnt(0)")
        p.label("S1_skip")
        p("s_barrier")
        stamp(p, 8)
    def deferred():
        if not DEFER: return
        p("s_mov_b32 exec_hi, 0xff")
        for b in range(4):
            p(f"s_add_u32 s36, s93, {b*81920}")
            p(f"buffer_store_dwordx4 {v(192+4*b,4)}, v30, {s(SWS,4)}, s36 offen sc1")
        p("s_mov_b32 exec_lo, 0xffffff")
        p("s_mov_b32 exec_hi, 0xffffff")
        for q in range(3):
            p(f"buffer_store_dwordx4 {v(176+4*q,4)}, v31, {s(SWS,4)}, s92 offen offset:{q*768} sc1")
        p("s_mov_b32 exec_lo, -1")
        p("s_mov_b32 exec_hi, -1")
    def pub_late():
        p(f"s_cmp_lg_u32 {s(sWV)}, 0")
        p("s_cbranch_scc1 SM_nopub")
        p("s_cmp_eq_u32 s75, 0")
        p(f"s_cselect_b32 s76, 0x40000000, s72" if DEFER else "s_mov_b32 s76, 0x40000000")
        p(f"v_mov_b32 v232, {s(sNON)}")
        p("v_mov_b32 v233, 0")
        p("s_mov_b32 exec_lo, 1")
        p("s_mov_b32 exec_hi, 0")
        p.raw(f"    buffer_store_dword v232, v233, {s(SWS,4)}, s76 offen sc1")
        p("s_mov_b32 exec_lo, -1")
        p("s_mov_b32 exec_hi, -1")
        p.label("SM_nopub")
    def pre_all():
        p(f"s_cmp_lg_u32 {s(sWV)}, 0")
        p("s_cbranch_scc1 SM_skip")
        for k in range(4): p.raw(f"    buffer_load_dword {v(242+k)}, {v(238+k)}, {s(SWS,4)}, s70 offen sc1")
        p.label("SM_skip")
    def gateB():
        p(f"s_cmp_lg_u32 {s(sWV)}, 0")
        p("s_cbranch_scc1 SA_done")
        p.raw("    s_waitcnt vmcnt(0)")
        for k in range(4): p(f"v_xor_b32 {v(242+k)}, {s(sNON)}, {v(242+k)}")
        p("v_or3_b32 v242, v242, v243, v244")
        p("v_or_b32 v242, v242, v245")
        p("v_cmp_ne_u32 vcc, 0, v242")
        p("s_nop 4")
        p("s_cbranch_vccz SA_skip")
        poll([238, 239, 240, 241], "s70", "-1", "-1", setexec=False)
        p.label("SA_skip")
        p(f"v_mov_b32 v232, {BWORD}")
        p("v_mov_b32 v233, 1")
        p.raw("    ds_write_b32 v232, v233")
        p.raw("    s_waitcnt lgkmcnt(0)")
        p.label("SA_done")
    def waitB():
        p(f"v_mov_b32 v232, {BWORD}")
        p(f"s_mov_b32 s95, {SPIN*8}")
        p("s_waitcnt lgkmcnt(0)")
        p.label("WB_loop")
        p.raw("    ds_read_b32 v233, v232")
        p.raw("    s_waitcnt lgkmcnt(0)")
        p("v_readfirstlane_b32 s73, v233")
        p("s_sub_u32 s95, s95, 1")
        p("s_cmp_eq_u32 s95, 0")
        p("s_cbranch_scc1 WB_out")
        p("s_cmp_eq_u32 s73, 0")
        p("s_cbranch_scc0 WB_out")
        p("s_sleep 1")
        p("s_branch WB_loop")
        p.label("WB_out")
    PUBFIRST = os.environ.get('PUBFIRST', '1') == '1'
    if PUBFIRST: publish1()
    def sync1w(sH, sR):
        if not PUBFIRST: publish1()
        sync1(sH, sR)
    emit_p2(p, dict(sync1=sync1w, pre_all=pre_all, pub_late=pub_late, gateB=gateB, waitB=waitB, wdma=wdma, deferred=deferred, defer=DEFER))
    S = dict(RT=17, CT=18, A=40, B=44, t0=36, t1=37, T0=38, OB=39, TL=19)
    p("s_mov_b32 s30, s29")
    p("s_load_dwordx2 s[4:5], s[0:1], 56")
    p3_setup(p, sWV, S)
    p("s_and_b32 s50, s2, 3")
    p("s_lshl_b32 s50, s50, 6")
    p("s_bfe_u32 s51, s2, 0x10002")
    p("s_lshl_b32 s51, s51, 2")
    p("s_add_u32 s50, s50, s51")
    p("v_and_b32 v1, 7, v2")
    p("v_lshlrev_b32 v1, 3, v1")
    p("v_bfe_u32 v3, v2, 3, 2")
    p("v_add3_u32 v1, v1, v3, s50")
    p("v_lshlrev_b32 v237, 7, v1")
    p(f"s_add_u32 s70, s70, 32768")
    p("s_lshl_b32 s72, s2, 7")
    p("s_add_u32 s72, s72, s70")
    p(f"v_mov_b32 v232, {s(sNON)}")
    p("v_mov_b32 v233, 0")
    p("s_waitcnt lgkmcnt(0)")
    srd(p, 12, 4, 2048*1280)
    p("s_waitcnt vmcnt(0)")
    p("s_barrier")
    stamp(p, 18)
    p(f"s_cmp_lg_u32 {s(sWV)}, 0")
    p("s_cbranch_scc1 S2_a")
    p("s_mov_b32 exec_lo, 1")
    p("s_mov_b32 exec_hi, 0")
    p.raw(f"    buffer_store_dword v232, v233, {s(SWS,4)}, s72 offen sc1")
    p("s_mov_b32 exec_lo, -1")
    p("s_mov_b32 exec_hi, -1")
    p.label("S2_a")
    if NWL:
        p(f"v_add_u32 v1, s30, {v(P3_V+4)}")
        for f in range(NWL): p(f"ds_read_b128 {v(P3_W+4*f,4)}, v1 offset:{f*1024}")
    for f in range(NWL, 25):
        ks, j = divmod(f, 5)
        p(f"buffer_load_dwordx4 {v(P3_W+4*f,4)}, {v(P3_V + ks//4)}, {s(SWS,4)}, {s(S['B']+j)} offen offset:{(ks%4)*1024} sc1")
    p("s_waitcnt lgkmcnt(0)")
    p(f"s_cmp_lg_u32 {s(sWV)}, 0")
    p("s_cbranch_scc1 S2_skip")
    poll([237], "s70", "-1", "0")
    p.label("S2_skip")
    p("s_barrier")
    stamp(p, 19)
    if STAMP and os.environ.get('DBGOUT'):
        sel = (0, 1, 3, 4, 5, 6, 7, 8, 10, 12, 17, 18, 19)
        for i, ln in enumerate(sel):
            p(f"v_readlane_b32 {s(76+i)}, {v(p.stv)}, {ln}")
    if STAMP:
        stamp_flush(p, 0, SWS, 8, sWV)
        p("s_mov_b32 exec_lo, -1"); p("s_mov_b32 exec_hi, -1")
        p.stv = 3
    p3_main(p, sWV, SWS, 12, S, 'sc1')
    stamp(p, 6)
    if STAMP: p("s_waitcnt vmcnt(0)")
    stamp(p, 7)
    if STAMP and os.environ.get('DBGOUT'):
        p(f"s_sub_u32 s34, s2, {int(os.environ['DBGOUT'])}")
        p(f"s_or_b32 s34, s34, {s(sWV)}")
        p("s_cmp_lg_u32 s34, 0")
        p("s_cbranch_scc1 DBG_skip")
        p(f"v_readlane_b32 s89, {v(p.stv)}, 24")
        p(f"v_readlane_b32 s90, {v(p.stv)}, 7")
        for i in range(1, 15):
            p(f"s_sub_u32 s34, {s(76+i)}, s76")
            p(f"v_writelane_b32 v20, s34, {i}")
        p("v_mbcnt_lo_u32_b32 v21, -1, 0")
        p("v_lshlrev_b32 v21, 2, v21")
        p("s_mov_b32 exec_lo, 0x7ffe")
        p("s_mov_b32 exec_hi, 0")
        p("global_store_dword v21, v20, s[96:97]")
        p("s_mov_b32 exec_lo, -1")
        p("s_mov_b32 exec_hi, -1")
        p.label("DBG_skip")
    stamp_flush(p, 2, SWS, 8, sWV)
    p.label("K1_end")
    p("s_endpgm")
    p.pad()
    return p.text(), dict(name=name, vgpr=256, sgpr=100, grid=256, block=512, lds=163840)
```

```python
from asmlib import *
from gen import *
import os

KVP_STRIDE = 2304

def gen_k1():
    p = Prog()
    header(p, "k1_kernel")
    p.stv = 206
    emit_p1(p, False)
    p.pad()
    return p.text(), dict(name="k1_kernel", vgpr=207, sgpr=100, grid=256, block=512, lds=163840)

def emit_p1(p, fused):
    SX, SW, SWS, SWO, SGW = 12, 16, 20, 68, 72
    sRT, sHG, sBR, sKC, sOX, sOW, sWV = 24, 25, 26, 28, 29, 30, 33
    sMH, sNG = 41, 42
    sINIT, sSCL, sFLG = 44, 48, 52
    sM0X, sM0W = 56, 57
    IMG = 49152
    p("s_cmp_ge_u32 s2, 256")
    p("s_cbranch_scc1 K1_end")
    stamp(p, 0)
    p("s_load_dwordx4 s[4:7], s[0:1], 0")
    p("s_load_dwordx2 s[8:9], s[0:1], 32")
    p("s_load_dwordx2 s[10:11], s[0:1], 72")
    p("s_load_dwordx2 s[76:77], s[0:1], 16")
    p("s_load_dwordx4 s[80:83], s[0:1], 40")
    if fused: p("s_load_dwordx2 s[96:97], s[0:1], 64")
    p("v_lshrrev_b32 v1, 6, v0")
    p("v_and_b32 v2, 63, v0")
    p(f"v_readfirstlane_b32 {s(sWV)}, v1")
    p("s_and_b32 s34, s2, 7")
    p("s_lshr_b32 s35, s2, 3")
    p("s_lshr_b32 s36, s34, 2")
    p("s_and_b32 s37, s34, 3")
    if os.environ.get('AFIRST', '0') == '1':
        p("s_bfe_u32 s58, s35, 0x30001")
        p("s_lshr_b32 s59, s35, 4")
        p("s_lshl_b32 s59, s59, 1")
        p("s_and_b32 s38, s35, 1")
        p("s_or_b32 s59, s59, s38")
    else:
        p("s_lshr_b32 s58, s35, 2")
        p("s_and_b32 s59, s35, 3")
    p(f"s_lshl_b32 {s(sRT)}, s36, 3")
    p(f"s_add_u32 {s(sRT)}, {s(sRT)}, s58")
    if os.environ.get('XMAP', '0') == '1':
        p(f"s_lshr_b32 {s(sBR)}, s37, 1")
        p("s_and_b32 s40, s37, 1")
        p("s_lshl_b32 s40, s40, 2")
        p(f"s_add_u32 {s(sHG)}, s59, s40")
    else:
        p(f"s_lshr_b32 {s(sBR)}, s59, 1")
        p(f"s_and_b32 {s(sHG)}, s59, 1")
        p("s_lshl_b32 s40, s37, 1")
        p(f"s_add_u32 {s(sHG)}, {s(sHG)}, s40")
    p("s_lshl_b32 s43, s37, 2")
    p("s_add_u32 s43, s43, s59")
    vXO, vWO = 4, 6
    p("v_lshrrev_b32 v3, 3, v2")
    p("v_and_b32 v10, 7, v2")
    p("v_xor_b32 v10, v10, v3")
    p("v_lshlrev_b32 v10, 4, v10")
    p("s_movk_i32 s40, 1280")
    p(f"v_mad_u32_u24 {v(vXO)}, v3, s40, v10")
    p(f"s_lshl_b32 s34, {s(sRT)}, 7")
    p(f"s_lshl_b32 s35, {s(sWV)}, 4")
    p("s_add_u32 s34, s34, s35")
    p("s_mul_i32 s34, s34, 1280")
    p(f"v_add_u32 {v(vXO)}, s34, {v(vXO)}")
    p(f"v_add_u32 {v(vXO+1)}, 9216, {v(vXO)}")
    p("v_lshrrev_b32 v3, 5, v2")
    p("v_bfe_u32 v10, v2, 1, 4")
    p("v_and_b32 v11, 1, v2")
    p("v_lshlrev_b32 v11, 4, v11")
    p("s_movk_i32 s35, 3840")
    p("v_mad_u32_u24 v11, v3, s35, v11")
    p(f"s_and_b32 s36, {s(sWV)}, 1")
    p("s_lshl_b32 s36, s36, 2")
    p(f"s_mul_i32 s37, {s(sWV)}, {8*3840}")
    ACON = os.environ.get('ACON', '1') == '1'
    if ACON:
        p(f"s_cmp_eq_u32 {s(sBR)}, 0")
        p("s_movk_i32 s39, 160")
        p("s_cselect_b32 s38, 480, s39")
        p("s_cselect_b32 s39, s39, s40")
        p(f"s_mul_i32 s38, {s(sHG)}, s38")
    else:
        p(f"s_mul_i32 s38, {s(sHG)}, 160")
        p("s_mov_b32 s39, 1280")
    p("s_add_u32 s37, s37, s38")
    p("v_mov_b32 v16, 0x40000000")
    for i in range(2):
        p(f"v_or_b32 v12, s36, v3")
        if i: p("v_or_b32 v12, 2, v12")
        p("v_xor_b32 v12, v12, v10")
        p("v_mul_u32_u24 v13, 52, v12")
        p("v_lshrrev_b32 v13, 8, v13")
        p("v_mul_u32_u24 v14, 5, v13")
        p("v_sub_u32 v14, v12, v14")
        p("v_lshl_add_u32 v14, v14, 5, v11")
        p("v_mad_u32_u24 v14, v13, s39, v14")
        p(f"v_add_u32 v14, s37, v14")
        if i: p(f"v_add_u32 v14, {2*3840-1024}, v14")
        p("v_cmp_eq_u32 vcc, 15, v12")
        p(f"v_cndmask_b32 {v(vWO+i)}, v14, v16, vcc")
        p(f"v_add_u32 {v(vWO+2+i)}, 13312, {v(vWO+i)}")
    p(f"s_lshl_b32 {s(sM0X)}, {s(sWV)}, 11")
    p(f"s_lshl_b32 {s(sM0W)}, {s(sWV)}, 12")
    p(f"s_add_u32 {s(sM0W)}, {s(sM0W)}, 16384")
    ROTG = int(os.environ.get('ROTG', '4'))
    if ROTG == 1:
        p(f"s_mov_b32 {s(sKC)}, 0")
    elif ROTG == 10:
        p(f"s_mul_i32 {s(sKC)}, s59, 3")
        p(f"s_add_u32 {s(sKC)}, {s(sKC)}, s58")
        p(f"s_sub_u32 s34, {s(sKC)}, 10")
        p(f"s_cmp_ge_u32 {s(sKC)}, 10")
        p(f"s_cselect_b32 {s(sKC)}, s34, {s(sKC)}")
    else:
        mg = {3: 86, 4: 64, 5: 52, 2: 128}[ROTG]
        p("s_add_u32 s34, s58, s59")
        p(f"s_mul_i32 s35, s34, {mg}")
        p("s_lshr_b32 s35, s35, 8")
        p(f"s_mul_i32 s35, s35, {ROTG}")
        p("s_sub_u32 s34, s34, s35")
        p("s_mul_i32 s34, s34, 10")
        p(f"s_mul_i32 s34, s34, {mg}")
        p(f"s_lshr_b32 {s(sKC)}, s34, 8")
    p(f"s_lshl_b32 {s(sOX)}, {s(sKC)}, 7")
    p(f"s_mul_i32 {s(sOW)}, {s(sKC)}, 245760")
    p(f"s_mov_b32 m0, {s(sM0X)}")
    p("s_waitcnt lgkmcnt(0)")
    srd(p, SX, 4, 2048*1280)
    p(f"s_cmp_eq_u32 {s(sBR)}, 0")
    p("s_cselect_b32 s6, s6, s8")
    p("s_cselect_b32 s7, s7, s9")
    srd(p, SW, 6, 640*3840)
    tags = {}
    sfx = ['']
    def issue_steps(st):
        slot = (st % 3) * 49152
        g = []
        first = [] if st == 0 else [f"s_add_u32 m0, {s(sM0X)}, {slot}", "s_nop 0"]
        g.append(first + [f"buffer_load_dwordx4 {v(vXO)}, {s(SX,4)}, {s(sOX)} offen lds"])
        g.append([f"buffer_load_dwordx4 {v(vXO+1)}, {s(SX,4)}, {s(sOX)} offen offset:1024 lds"])
        g.append([f"s_add_u32 m0, {s(sM0W)}, {slot}", f"s_add_u32 {s(sOX)}, {s(sOX)}, 128",
                  f"buffer_load_dwordx4 {v(vWO)}, {s(SW,4)}, {s(sOW)} offen lds"])
        for i in range(1, 4):
            g.append([f"buffer_load_dwordx4 {v(vWO+i)}, {s(SW,4)}, {s(sOW)} offen offset:{i*1024} lds"])
        g[-1] += [('tag', st)]
        if st < 9:
            g[-1] += [f"s_add_u32 {s(sOW)}, {s(sOW)}, 245760", f"s_add_u32 {s(sKC)}, {s(sKC)}, 1", f"s_cmp_eq_u32 {s(sKC)}, 10",
                      f"s_cselect_b32 {s(sOX)}, 0, {s(sOX)}", f"s_cselect_b32 {s(sOW)}, 0, {s(sOW)}"]
        return g
    def emit(t):
        if isinstance(t, tuple) and t[0] == 'raw': p.raw("    " + t[1])
        elif isinstance(t, tuple) and t[0] == 'label': p.label(t[1] + sfx[0])
        elif isinstance(t, tuple) and t[0] == 'br': p(t[1] + sfx[0])
        elif isinstance(t, tuple): tags[t[1]] = p.vmtag()
        elif isinstance(t, list):
            for x in t: emit(x)
        else: p(t)
    def issue(st):
        for g in issue_steps(st): emit(g)
    stamp(p, 1)
    issue(0)
    srd(p, SWS, 10, WS_SIZE)
    p("s_getpc_b64 s[60:61]")
    p.label("K1_pc")
    p(f"s_lshl_b32 s34, {s(sWV)}, 13")
    p("v_lshlrev_b32 v26, 7, v2")
    p("v_add_u32 v26, s34, v26")
    p("v_min_u32 v26, CODE_END-K1_pc-4, v26")
    p("global_load_dword v31, v26, s[60:61]")
    if fused:
        p(f"s_or_b32 s34, s2, {s(sWV)}")
        p("s_cmp_lg_u32 s34, 0")
        p("s_cbranch_scc1 P1_notag")
        p("s_memrealtime s[94:95]")
        p("v_mov_b32 v30, 0")
        p("s_waitcnt lgkmcnt(0)")
        p("s_or_b32 s94, s94, 1")
        p("v_mov_b32 v1, s94")
        p("s_mov_b32 exec_lo, 1")
        p("s_mov_b32 exec_hi, 0")
        p.raw("    global_store_dword v30, v1, s[96:97] sc1")
        p("s_mov_b32 exec_lo, -1")
        p("s_mov_b32 exec_hi, -1")
        p.label("P1_notag")
    stamp(p, 2)
    p(f"s_lshr_b32 {s(sMH)}, {s(sWV)}, 2")
    p(f"s_and_b32 {s(sNG)}, {s(sWV)}, 3")
    vXA = [10, 12, 14]; vWA = [16, 20, 24]
    vG, vM = 28, 29
    p(f"v_lshrrev_b32 {v(vG)}, 4, v2")
    p(f"v_and_b32 {v(vM)}, 15, v2")
    p("v_and_b32 v3, 7, v2")
    p(f"v_xor_b32 v3, v3, {v(vG)}")
    p("v_lshlrev_b32 v3, 4, v3")
    p(f"v_lshl_add_u32 v3, {v(vM)}, 7, v3")
    p(f"s_lshl_b32 s34, {s(sMH)}, 13")
    p(f"v_add_u32 {v(vXA[0])}, s34, v3")
    p(f"v_xor_b32 {v(vXA[0]+1)}, 64, {v(vXA[0])}")
    p("v_bfe_u32 v3, v2, 2, 2")
    p(f"v_and_b32 v1, 1, {v(vG)}")
    p("v_lshl_or_b32 v1, v1, 2, v3")
    p(f"v_lshl_add_u32 v30, {v(vG)}, 3, v3")
    p("v_lshlrev_b32 v30, 9, v30")
    p("v_and_b32 v3, 3, v2")
    p("v_lshl_add_u32 v30, v3, 3, v30")
    p("v_add_u32 v30, 16384, v30")
    for jj in range(4):
        p(f"s_add_u32 s35, {s(sNG)}, {4*jj}")
        p(f"v_xor_b32 v3, s35, v1")
        p(f"v_lshl_add_u32 {v(vWA[0]+jj)}, v3, 5, v30")
        p("s_sub_u32 s36, s35, 5")
        p("s_cmp_lt_u32 s36, 5")
        p(f"s_cselect_b32 {s(sFLG+jj)}, {s(sBR)}, 0")
        p(f"s_mul_i32 {s(sINIT+jj)}, {s(sFLG+jj)}, {f32(EPS)}")
        if ACON:
            p(f"s_mul_i32 s36, {s(sHG)}, 15")
            p("s_add_u32 s36, s36, s35")
            p("s_cmp_lt_u32 s36, 40")
        else:
            p("s_cmp_lt_u32 s35, 5")
        p("s_cselect_b32 s36, 1, 0")
        p(f"s_andn2_b32 {s(sSCL+jj)}, s36, {s(sBR)}")
    for sl in (1, 2):
        for k in range(2): p(f"v_add_u32 {v(vXA[sl]+k)}, {sl*49152}, {v(vXA[0]+k)}")
        for k in range(4): p(f"v_add_u32 {v(vWA[sl]+k)}, {sl*49152}, {v(vWA[0]+k)}")
    ACC = 32
    FX = [96, 128]; FW = [112, 144]
    for jj in range(4):
        for k in range(16):
            p(f"v_mov_b32 {v(ACC+jj*16+k)}, {s(sINIT+jj) if jj in (1,2) else 0}")
    issue(1)
    def rdx(st, ks, i): return f"ds_read_b128 {v(FX[ks]+4*i,4)}, {v(vXA[st%3]+ks)} offset:{i*2048}"
    def rdw(st, ks, jj, h): return f"ds_read_b64_tr_b16 {v(FW[ks]+4*jj+2*h,2)}, {v(vWA[st%3]+jj)} offset:{ks*16384+h*2048}"
    def mm(ks, jj, i):
        A = ACC + (jj*4+i)*4
        p(f"v_mfma_f32_16x16x32_bf16 {v(A,4)}, {v(FW[ks]+4*jj,4)}, {v(FX[ks]+4*i,4)}, {v(A,4)}")
    def readlist(st, ks, order=(0,1,2,3)):
        L = [rdw(st,ks,order[0],0), rdw(st,ks,order[0],1)]
        for i in range(4): L.append(rdx(st,ks,i))
        for jj in order[1:]:
            L.append(rdw(st,ks,jj,0)); L.append(rdw(st,ks,jj,1))
        return L
    GX, GWt, A0, WOR, WOH, vW0, vW1, vT0, vT1, vL16 = 160, 166, 172, 192, 196, 200, 201, 202, 203, 204
    sGR, sJOB, sWFo = 84, 85, 86
    F = {k: [] for k in range(20)}
    f = F[1]
    f += [f"v_lshlrev_b32 {v(vL16)}, 4, v2",
          f"s_lshl_b32 {s(sJOB)}, s2, 3", f"s_add_u32 {s(sJOB)}, {s(sJOB)}, {s(sWV)}",
          [f"s_cmp_ge_u32 {s(sJOB)}, 800", "s_cselect_b32 s76, s80, s76", "s_cselect_b32 s77, s81, s77",
           "s_cselect_b32 s87, 800, 0", "s_cselect_b32 s88, 20, 0"],
          f"s_mov_b32 {s(SWO)}, s76", f"s_and_b32 {s(SWO+1)}, s77, 0xffff", f"s_mov_b32 {s(SWO+2)}, {640*1280}", f"s_mov_b32 {s(SWO+3)}, 0x20000",
          f"s_mov_b32 {s(SGW)}, s82", f"s_and_b32 {s(SGW+1)}, s83, 0xffff", f"s_mov_b32 {s(SGW+2)}, 1280", f"s_mov_b32 {s(SGW+3)}, 0x20000",
          f"s_sub_u32 s87, {s(sJOB)}, s87", "s_mul_i32 s89, s87, 1639", "s_lshr_b32 s89, s89, 16",
          "s_mul_i32 s90, s89, 40", "s_sub_u32 s90, s87, s90", "s_lshl_b32 s91, s89, 2"]
    WLIN = os.environ.get('WLIN', '1') == '1'
    LDSX, GWL = 147456, 155648
    if WLIN:
        f = F[2]
        f += [f"s_lshr_b32 s34, {s(sWV)}, 1", "s_add_u32 s91, s91, s34",
              "s_lshr_b32 s34, s91, 1", "s_mul_i32 s34, s34, 20", "s_and_b32 s35, s91, 1", "s_lshl_b32 s35, s35, 2", "s_add_u32 s34, s34, s35",
              "s_mul_i32 s35, s91, 40", f"s_sub_u32 s35, s35, {40*64-16}",
              ["s_cmp_lt_u32 s91, 64", "s_cselect_b32 s34, s34, s35", "s_cselect_b32 s35, 8, 20"],
              f"s_and_b32 s36, {s(sWV)}, 1", "s_mul_i32 s35, s35, s36", "s_add_u32 s34, s34, s35", "s_mul_i32 s34, s34, 1280",
              f"s_sub_u32 s35, s90, {s(sWV)}", "s_lshl_b32 s35, s35, 5", "s_add_u32 s91, s34, s35",
              f"v_lshlrev_b32 {v(vT1)}, 4, {v(vM)}", f"v_mad_u32_u24 {v(vW0)}, {v(vG)}, s40, {v(vT1)}",
              f"v_bfe_u32 {v(vT1)}, v2, 2, 2", f"v_lshl_add_u32 {v(vT1)}, {v(vG)}, 3, {v(vT1)}", f"v_lshlrev_b32 {v(vT1)}, 8, {v(vT1)}",
              f"v_and_b32 {v(vW1)}, 3, v2", f"v_lshl_add_u32 {v(vW1)}, {v(vW1)}, 3, {v(vT1)}",
              f"s_lshl_b32 s34, {s(sWV)}, 5", f"s_add_u32 s34, s34, {LDSX}", f"v_add_u32 {v(vW1)}, s34, {v(vW1)}"]
        f = F[3]
        f += ["s_mul_i32 s90, s90, 40", "s_add_u32 s90, s90, s88", "s_add_u32 s90, s90, s89",
              "s_lshl_b32 s90, s90, 10", f"s_add_u32 s90, s90, {WS_WF}",
              [f"s_cmp_ge_u32 {s(sJOB)}, 1600", "s_cselect_b32 s91, 0x40000000, s91", f"s_cselect_b32 {s(sWFo)}, 0x40000000, s90"],
              f"s_lshl_b32 {s(sGR)}, {s(sRT)}, 4", f"s_add_u32 {s(sGR)}, {s(sGR)}, s43", f"s_lshl_b32 {s(sGR)}, {s(sGR)}, 3",
              f"s_add_u32 {s(sGR)}, {s(sGR)}, {s(sWV)}", f"s_mul_i32 s92, {s(sGR)}, 1280", f"v_lshlrev_b32 {v(vT0)}, 2, v2",
              f"s_lshl_b32 s87, {s(sWV)}, 10"]
        f = F[6]
        f += [[f"s_add_u32 m0, s87, {LDSX}", "s_nop 0", f"buffer_load_dwordx4 {v(vW0)}, {s(SWO,4)}, s91 offen lds"],
              [f"s_add_u32 m0, s87, {GWL}", "s_nop 0", f"buffer_load_dwordx4 {v(vL16)}, {s(SGW,4)}, s87 offen lds"],
              f"buffer_load_dwordx4 {v(GX,4)}, {v(vL16)}, {s(SX,4)}, s92 offen",
              f"buffer_load_dword {v(GX+4)}, {v(vT0)}, {s(SX,4)}, s92 offen offset:1024"]
        if fused:
            F[8] += ["v_mov_b32 v208, 0", "global_load_dword v208, v208, s[96:97] sc1"]
        f = F[11]
        f += [f"ds_read_b64_tr_b16 {v(WOR,2)}, {v(vW1)}", f"ds_read_b64_tr_b16 {v(WOR+2,2)}, {v(vW1)} offset:1024",
              f"v_add_u32 {v(vW0)}, {GWL}, {v(vL16)}", f"v_add_u32 {v(vT1)}, {GWL}, {v(vT0)}",
              f"ds_read_b128 {v(GWt,4)}, {v(vW0)}", f"ds_read_b32 {v(GWt+4)}, {v(vT1)} offset:1024"]
        f = F[12]
        f.append(f"buffer_store_dwordx4 {v(WOR,4)}, {v(vL16)}, {s(SWS,4)}, {s(sWFo)} offen {SC}")
        for k in range(5):
            f += [f"v_lshlrev_b32 {v(A0+4*k)}, 16, {v(GX+k)}", f"v_and_b32 {v(A0+4*k+1)}, 0xffff0000, {v(GX+k)}",
                  f"v_lshlrev_b32 {v(A0+4*k+2)}, 16, {v(GWt+k)}", f"v_and_b32 {v(A0+4*k+3)}, 0xffff0000, {v(GWt+k)}"]
    else:
        f = F[2]
        f += [f"v_add_u32 {v(vT0)}, s91, {v(vG)}",
              f"v_lshrrev_b32 {v(vT1)}, 1, {v(vT0)}", f"v_mul_u32_u24 {v(vT1)}, 20, {v(vT1)}",
              f"v_and_b32 {v(vW0)}, 1, {v(vT0)}", f"v_lshl_add_u32 {v(vT1)}, {v(vW0)}, 2, {v(vT1)}",
              f"v_mul_u32_u24 {v(vW1)}, 40, {v(vT0)}", f"v_subrev_u32 {v(vW1)}, {40*64-16}, {v(vW1)}",
              f"v_cmp_gt_u32 vcc, 64, {v(vT0)}", f"v_mov_b32 {v(vT0)}, 20", None,
              f"v_cndmask_b32 {v(vW1)}, {v(vW1)}, {v(vT1)}, vcc", f"v_cndmask_b32_e64 {v(vT0)}, {v(vT0)}, 8, vcc",
              f"v_lshlrev_b32 {v(vT1)}, 1, {v(vM)}",
              f"v_mad_u32_u24 {v(vW0)}, {v(vW1)}, s40, {v(vT1)}",
              f"v_mad_u32_u24 {v(vW1)}, {v(vT0)}, s40, {v(vW0)}"]
        f = F[3]
        f += ["s_lshl_b32 s91, s90, 5", "s_mul_i32 s90, s90, 40", "s_add_u32 s90, s90, s88", "s_add_u32 s90, s90, s89",
              "s_lshl_b32 s90, s90, 10", f"s_add_u32 s90, s90, {WS_WF}",
              [f"s_cmp_ge_u32 {s(sJOB)}, 1600", "s_cselect_b32 s91, 0x40000000, s91", f"s_cselect_b32 {s(sWFo)}, 0x40000000, s90"],
              f"s_lshl_b32 {s(sGR)}, {s(sRT)}, 4", f"s_add_u32 {s(sGR)}, {s(sGR)}, s43", f"s_lshl_b32 {s(sGR)}, {s(sGR)}, 3",
              f"s_add_u32 {s(sGR)}, {s(sGR)}, {s(sWV)}", f"s_mul_i32 s92, {s(sGR)}, 1280", f"v_lshlrev_b32 {v(vT0)}, 2, v2"]
        f = F[6]
        for k in range(2):
            for q in range(2):
                f.append(f"buffer_load_ushort {v(WOR+2*k+q)}, {v(vW0+k)}, {s(SWO,4)}, s91 offen offset:{2560*q}")
                f.append(f"buffer_load_ushort {v(WOH+2*k+q)}, {v(vW0+k)}, {s(SWO,4)}, s91 offen offset:{2560*q+1280}")
        f += [f"buffer_load_dwordx4 {v(GX,4)}, {v(vL16)}, {s(SX,4)}, s92 offen",
              f"buffer_load_dword {v(GX+4)}, {v(vT0)}, {s(SX,4)}, s92 offen offset:1024",
              f"buffer_load_dwordx4 {v(GWt,4)}, {v(vL16)}, {s(SGW,4)}, 0 offen",
              f"buffer_load_dword {v(GWt+4)}, {v(vT0)}, {s(SGW,4)}, 0 offen offset:1024"]
        if fused:
            F[8] += ["v_mov_b32 v208, 0", "global_load_dword v208, v208, s[96:97] sc1"]
        f = F[12]
        for k in range(4): f.append(f"v_lshl_or_b32 {v(WOR+k)}, {v(WOH+k)}, 16, {v(WOR+k)}")
        f.append(f"buffer_store_dwordx4 {v(WOR,4)}, {v(vL16)}, {s(SWS,4)}, {s(sWFo)} offen {SC}")
        for k in range(5):
            f += [f"v_lshlrev_b32 {v(A0+4*k)}, 16, {v(GX+k)}", f"v_and_b32 {v(A0+4*k+1)}, 0xffff0000, {v(GX+k)}",
                  f"v_lshlrev_b32 {v(A0+4*k+2)}, 16, {v(GWt+k)}", f"v_and_b32 {v(A0+4*k+3)}, 0xffff0000, {v(GWt+k)}"]
    f = F[13]
    for k in range(5):
        f += [f"v_mul_f32 {v(A0+4*k)}, {v(A0+4*k)}, {v(A0+4*k+2)}", f"v_mul_f32 {v(A0+4*k+1)}, {v(A0+4*k+1)}, {v(A0+4*k+3)}"]
    for k in range(5): f.append(f"v_cvt_pk_bf16_f32 {v(A0+4*k+2)}, {v(A0+4*k)}, {v(A0+4*k+1)}")
    f = F[14]
    for k in range(5):
        f += [f"v_lshlrev_b32 {v(A0+4*k)}, 16, {v(A0+4*k+2)}", f"v_and_b32 {v(A0+4*k+1)}, 0xffff0000, {v(A0+4*k+2)}"]
    for k in range(5): f.append(f"v_add_f32 {v(A0+4*k)}, {v(A0+4*k)}, {v(A0+4*k+1)}")
    G = A0
    f += [f"v_add_f32 {v(A0)}, {v(A0)}, {v(A0+4)}", f"v_add_f32 {v(A0+8)}, {v(A0+8)}, {v(A0+12)}",
          f"v_add_f32 {v(A0)}, {v(A0)}, {v(A0+16)}", f"v_add_f32 {v(A0)}, {v(A0)}, {v(A0+8)}"]
    f = F[15]
    for sh in (1, 2, 4, 8): f += [f"v_add_f32_dpp {v(G)}, {v(G)}, {v(G)} row_shr:{sh} row_mask:0xf bank_mask:0xf", None]
    f += [f"v_add_f32_dpp {v(G)}, {v(G)}, {v(G)} row_bcast:15 row_mask:0xa bank_mask:0xf", None,
          f"v_add_f32_dpp {v(G)}, {v(G)}, {v(G)} row_bcast:31 row_mask:0xc bank_mask:0xf",
          f"s_mov_b32 s62, {f32(LOG2E)}", f"s_mov_b32 s63, {f32(LOG2E)}",
          f"v_cvt_pk_bf16_f32 {v(G)}, {v(G)}, {v(G)}", f"v_lshlrev_b32 {v(G)}, 16, {v(G)}",
          f"v_mul_f32 {v(G)}, s62, {v(G)}", f"v_exp_f32 {v(G)}, -{v(G)}", None, f"v_add_f32 {v(G)}, 1.0, {v(G)}",
          f"v_rcp_f32 {v(G)}, {v(G)}", None, f"v_cvt_pk_bf16_f32 {v(G)}, {v(G)}, {v(G)}"]
    f = F[16]
    f += [f"v_lshlrev_b32 {v(G)}, 16, {v(G)}", f"v_sub_f32 {v(G+1)}, 1.0, {v(G)}",
          f"v_cvt_pk_bf16_f32 {v(G+1)}, {v(G+1)}, {v(G+1)}", f"v_lshlrev_b32 {v(G+1)}, 16, {v(G+1)}",
          f"s_lshl_b32 s92, {s(sGR)}, 3", f"s_add_u32 s92, s92, {WS_G}", f"v_mov_b32 {v(vT0)}, 0",
          ["s_mov_b32 exec_lo, 0", "s_mov_b32 exec_hi, 0x80000000",
           f"buffer_store_dwordx2 {v(G,2)}, {v(vT0)}, {s(SWS,4)}, s92 offen {SC}", "s_mov_b32 exec_lo, -1", "s_mov_b32 exec_hi, -1"]]
    vIM = 4
    f += [f"s_lshl_b32 s34, {s(sMH)}, 6", f"v_add_u32 v3, s34, {v(vM)}", f"s_lshl_b32 s34, {s(sNG)}, 2"]
    f = F[17]
    sPD = 58
    for jj in range(4):
        f += [[f"s_add_u32 s35, {s(sNG)}, {4*jj}", "s_cmp_ge_u32 s35, 5", f"s_cselect_b32 {s(sPD+jj)}, {s(sBR)}, 0",
               f"s_cmp_eq_u32 {s(sPD+jj)}, 1", "s_cselect_b32 s36, 0x1800, 0x1400" if False else "s_cselect_b32 s36, 6, 5",
               "s_cselect_b32 s37, 48, 40", f"s_cselect_b32 s39, {IMG - 4096}, {IMG}" if False else "s_cselect_b32 s39, 44, 48",
               "s_lshl_b32 s36, s36, 10", "s_lshl_b32 s39, s39, 10"],
              f"s_add_u32 s35, s34, {16*jj}", f"v_add_u32 v8, s35, {v(vG)}", "v_mul_u32_u24 v9, 52, v8", "v_lshrrev_b32 v9, 8, v9",
              "v_mul_u32_u24 v1, 5, v9", "v_sub_u32 v1, v8, v1", "v_lshlrev_b32 v1, 3, v1", "v_mad_u32_u24 v1, v3, s37, v1",
              "v_mad_u32_u24 v1, v9, s36, v1", f"v_add_u32 {v(vIM+jj)}, s39, v1"]
    f = F[18]
    f += ["v_lshrrev_b32 v8, 7, v0", "v_and_b32 v9, 127, v0", "v_mul_u32_u24 v9, 48, v9", "s_movk_i32 s36, 6144", "v_mad_u32_u24 v8, v8, s36, v9",
          f"v_mov_b32 {v(vT0)}, 0x3f80", f"v_mov_b32 {v(vT1)}, 0", f"v_mov_b32 {v(vW0)}, 0", f"v_mov_b32 {v(vW1)}, 0",
          f"v_add_u32 v8, {IMG + 20480}, v8",
          [f"s_cmp_eq_u32 {s(sBR)}, 0", ('br', "s_cbranch_scc1 K1_nopad"),
           ('raw', f"ds_write_b64 v8, {v(vW0,2)} offset:40"), ('raw', f"ds_write_b64 v8, {v(vT0,2)} offset:{40+24576}"), ('label', 'K1_nopad')],
          f"s_mov_b32 s38, {f32(EPS)}", f"s_mov_b32 s64, {f32(QSCALE)}", f"s_mov_b32 s65, {f32(QSCALE)}",
          f"s_mul_i32 s93, {s(sWV)}, 640", f"v_add_u32 v30, s93, {v(vL16)}", f"v_add_u32 v31, {IMG}, v30",
          f"s_mul_i32 s93, {s(sHG)}, {4*81920}", f"s_mul_i32 s35, {s(sRT)}, 5120", "s_add_u32 s93, s93, s35",
          f"s_mul_i32 s35, {s(sBR)}, {3*0x300000}", "s_add_u32 s93, s93, s35"]
    def block(ks, L, steps, fill, order=(0,1,2,3), after=None):
        n = 0
        fill = list(fill)
        per = 2
        for jj in order:
            for i in range(4):
                mm(ks, jj, i)
                n += 1
                did = 0
                if L: p(L.pop(0)); did += 1
                if n % 2 == 0 and n >= 4 and steps: emit(steps.pop(0)); did += 1
                k = per - did if (L or steps) else per + 1
                left = 16 - n
                while fill and (k > 0 or len(fill) > left * (per + 1)):
                    t = fill.pop(0)
                    if t is None: break
                    emit(t); k -= 1
            if after: after(jj)
        for t in fill:
            if t is not None: emit(t)
        assert not L and not steps
    T = 160
    def epi(jj):
        A = ACC + jj*16
        if jj in (1, 2):
            p(f"s_cmp_eq_u32 {s(sFLG+jj)}, 0")
            p(f"s_cbranch_scc1 K1_nophi{jj}{sfx[0]}")
            for k in range(8): p(f"v_pk_mul_f32 {v(T+2*k,2)}, {v(A+2*k,2)}, s[62:63]")
            for k in range(16): p(f"v_exp_f32 {v(T+k)}, {v(T+k)} clamp")
            for k in range(16): p(f"v_max_f32 {v(A+k)}, s38, {v(A+k)}")
            for k in range(8): p(f"v_pk_add_f32 {v(A+2*k,2)}, {v(A+2*k,2)}, {v(T+2*k,2)}")
            p.label(f"K1_nophi{jj}{sfx[0]}")
        if jj in (0, 1) or ACON:
            p(f"s_cmp_eq_u32 {s(sSCL+jj)}, 0")
            p(f"s_cbranch_scc1 K1_noscl{jj}{sfx[0]}")
            for k in range(8): p(f"v_pk_mul_f32 {v(A+2*k,2)}, {v(A+2*k,2)}, s[64:65]")
            p.label(f"K1_noscl{jj}{sfx[0]}")
        P = 96 + jj*8
        for k in range(8): p(f"v_cvt_pk_bf16_f32 {v(P+k)}, {v(A+2*k)}, {v(A+2*k+1)}")
        if jj == 0:
            for i in range(4): p(f"ds_write_b64 {v(vIM+jj)}, {v(P+2*i,2)} offset:{i*640}")
        else:
            p(f"s_cmp_eq_u32 {s(sPD+jj)}, 0")
            p(f"s_cbranch_scc1 K1_dn{jj}{sfx[0]}")
            for i in range(4): p(f"ds_write_b64 {v(vIM+jj)}, {v(P+2*i,2)} offset:{i*768}")
            p(f"s_branch K1_wr{jj}{sfx[0]}")
            p.label(f"K1_dn{jj}{sfx[0]}")
            for i in range(4): p.raw(f"    ds_write_b64 {v(vIM+jj)}, {v(P+2*i,2)} offset:{i*640}")
            p.label(f"K1_wr{jj}{sfx[0]}")
    if os.environ.get('EARLY', '0') == '1':
        for kf in (1, 2, 3, 6):
            for t in F[kf]:
                if t is not None: emit(t)
            F[kf] = []
        for a_, b_ in ((12, 6), (13, 7), (14, 8), (15, 9), (16, 10)):
            if a_ == 16:
                k_ = [i for i, t in enumerate(F[16]) if isinstance(t, str) and t.startswith(f"s_lshl_b32 s34, {s(sMH)}")][0]
                F[b_] = F[b_] + F[16][:k_]; F[16] = F[16][k_:]
            else:
                F[b_] = F[b_] + F[a_]; F[a_] = []
    UP3 = os.environ.get('UP3', '0') == '1'
    if UP3: issue(2)
    p.wait_vm_tag(tags[0])
    p("s_barrier")
    stamp(p, 3)
    stampc(p, 30)
    for t in readlist(0, 0): p(t)
    LAST = (1, 2, 0, 3)
    STAG = os.environ.get('STAG', '0') == '1'
    def loop(late):
        sfx[0] = 'L' if late else 'E'
        if not late and not UP3: issue(2)
        for st in range(10):
            block(0, readlist(st, 1, LAST if st == 9 else (0,1,2,3)), issue_steps(st+2) if (late and st+2 <= 9) else [], F[2*st])
            if st < 9:
                p.wait_vm_tag(tags[st+1], " lgkmcnt(0)")
                p("s_barrier")
                if STAMP > 1: stamp(p, 9 + st)
                block(1, readlist(st+1, 0), issue_steps(st+3) if (not late and st+3 <= 9) else [], F[2*st+1])
            else:
                def after(jj):
                    k = LAST.index(jj)
                    if k >= 1: epi(LAST[k-1])
                block(1, [], [], F[19], LAST, after)
                stamp(p, 4)
                stampc(p, 31)
                epi(LAST[3])
    if STAG:
        p(f"s_cmp_lt_u32 {s(sWV)}, 4")
        p("s_cbranch_scc0 K1_loopL")
        save = (list(p.lg), list(p.vm), p.vmcount, dict(tags))
        loop(False)
        p("s_branch K1_loopdone")
        p.label("K1_loopL")
        p.lg, p.vm, p.vmcount = list(save[0]), list(save[1]), save[2]
        tags.clear(); tags.update(save[3])
        loop(True)
        p.label("K1_loopdone")
    else:
        loop(False)
    p("s_waitcnt lgkmcnt(0)")
    p("s_barrier")
    stamp(p, 5)
    DEFER = fused and os.environ.get('DEFER', '0') == '1'
    p("s_mov_b32 exec_hi, 0xff")
    D = 32
    DR = lambda b: (192 + 4*b) if (DEFER and b < 4) else D + 4*b
    def rdblk(b):
        p(f"ds_read_b128 {v(DR(b),4)}, v31 offset:{b*5120}")
    def stblkA(b):
        p(f"s_add_u32 s36, s91, {b}")
        p("s_lshr_b32 s37, s36, 5")
        p("s_mul_i32 s37, s37, 0x80000")
        p("s_mul_i32 s36, s36, 81920")
        p("s_add_u32 s35, s36, s37")
        p("s_add_u32 s35, s35, s90")
        p(f"buffer_store_dwordx4 {v(DR(b),4)}, v30, {s(SWS,4)}, s35 offen {SC}")
    def stblk(b):
        off = (b//4)*0x300000 + (b%4)*81920
        p(f"s_add_u32 s35, s93, {off}")
        p(f"buffer_store_dwordx4 {v(DR(b),4)}, v30, {s(SWS,4)}, s35 offen {SC}")
    for b in range(4): rdblk(b)
    p(f"s_cmp_eq_u32 {s(sBR)}, 0")
    p("s_cbranch_scc0 K1_bpath")
    p.begin_cond()
    for b in range(4,12): rdblk(b)
    if ACON:
        p(f"s_mul_i32 s91, {s(sHG)}, 12")
        p(f"s_mul_i32 s90, {s(sRT)}, 5120")
    for b in range(12): (stblkA if ACON else stblk)(b)
    if fused:
        p("s_mov_b32 exec_hi, -1")
        p("s_mov_b32 s93, 0x40000000")
        p("s_mov_b32 s92, 0x40000000")
        p("s_branch P1_end")
    else:
        stamp(p, 6)
        if STAMP: p("s_waitcnt vmcnt(0)")
        stamp(p, 7)
        stamp_flush(p, 0, SWS, 8, sWV)
        p("s_endpgm")
    p.end_cond()
    p.label("K1_bpath")
    p("s_waitcnt lgkmcnt(0)")
    if not DEFER:
        for b in range(4): stblk(b)
    p("s_mov_b32 exec_hi, -1")
    p("s_mov_b32 s92, 0x40000000")
    p(f"s_cmp_gt_u32 {s(sWV)}, 3")
    p("s_cbranch_scc1 P1_end" if fused else "s_cbranch_scc1 K1_end")
    p("v_lshrrev_b32 v7, 5, v2")
    p("v_bfe_u32 v6, v2, 2, 2")
    p("v_lshl_add_u32 v5, v7, 3, v6")
    p("v_mul_u32_u24 v5, 48, v5")
    p("v_bfe_u32 v6, v2, 4, 1")
    p("v_lshl_add_u32 v5, v6, 5, v5")
    p("v_and_b32 v6, 3, v2")
    p("v_lshl_add_u32 v5, v6, 3, v5")
    p(f"s_mul_i32 s35, {s(sWV)}, 6144")
    p(f"s_add_u32 s35, s35, {IMG + 20480}")
    p("v_add_u32 v5, s35, v5")
    KV = 176 if DEFER else 96
    Fr = 112
    for t in range(8):
        for h in range(2): p(f"ds_read_b64_tr_b16 {v(Fr+8*t+2*h,2)}, v5 offset:{t*768+h*192}")
        for h in range(2): p(f"ds_read_b64_tr_b16 {v(Fr+8*t+4+2*h,2)}, v5 offset:{24576+t*768+h*192}")
        if t >= 2:
            tt = t-2
            p(f"v_mfma_f32_32x32x16_bf16 {v(KV,16)}, {v(Fr+8*tt,4)}, {v(Fr+8*tt+4,4)}, {'0' if tt==0 else v(KV,16)}")
    for tt in (6,7):
        p(f"v_mfma_f32_32x32x16_bf16 {v(KV,16)}, {v(Fr+8*tt,4)}, {v(Fr+8*tt+4,4)}, {v(KV,16)}")
    p(f"s_lshl_b32 s34, {s(sHG)}, 2")
    p(f"s_add_u32 s34, s34, {s(sWV)}")
    p("s_lshl_b32 s34, s34, 4")
    p(f"s_add_u32 s34, s34, {s(sRT)}")
    p(f"s_mul_i32 s34, s34, {KVP_STRIDE}")
    p(f"s_add_u32 s34, s34, {WS_KVP}")
    if DEFER:
        p("s_mov_b32 s92, s34")
    else:
        p("v_and_b32 v3, 31, v2")
        p("v_lshlrev_b32 v3, 4, v3")
        p("v_mul_u32_u24 v7, 384, v7")
        p("v_add_u32 v3, v3, v7")
        p("s_mov_b32 exec_lo, 0xffffff")
        p("s_mov_b32 exec_hi, 0xffffff")
        for q in range(3):
            p(f"buffer_store_dwordx4 {v(KV+4*q,4)}, v3, {s(SWS,4)}, s34 offen offset:{q*768} {SC}")
    if fused:
        p("s_mov_b32 exec_lo, -1")
        p("s_mov_b32 exec_hi, -1")
        p.label("P1_end")
        p.forget()
        stamp(p, 6)
        return
    stamp(p, 6)
    if STAMP: p("s_waitcnt vmcnt(0)")
    stamp(p, 7)
    stamp_flush(p, 0, SWS, 8, sWV)
    p.label("K1_end")
    p("s_endpgm")
```

```python
import os
from asmlib import *
from gen import *
from gen1 import emit_p1
from gen23 import emit_p2, WS_FLG, LDS_RED
from gen3 import *

def gen_fused(name):
    p = Prog()
    header(p, name)
    p.stv = 231
    SWS, sWV, sNON = 20, 33, 94
    SPIN = 200000
    BWORD = 161792
    DEFER = os.environ.get('DEFER', '0') == '1'
    BLATE = os.environ.get('BLATE', '0') == '1'
    NWL = int(os.environ.get('NWL', '11')); LDSW = 70656
    def wdma():
        out = []
        for f in range(NWL):
            ks, j = divmod(f, 5)
            out.append([f"s_add_u32 m0, s29, {f*1024 - ks*1024}", "s_nop 0",
                        f"buffer_load_dwordx4 v248, {s(SWS,4)}, {s(24+j)} offen offset:{ks*1024} sc1 lds"])
        return out
    cnt = [0]
    def poll(voffs, sbase, lo, hi=0, setexec=True):
        cnt[0] += 1
        L = f"POLL{cnt[0]}"
        if setexec:
            p(f"s_mov_b32 exec_lo, {lo}")
            p(f"s_mov_b32 exec_hi, {hi}")
        p(f"s_mov_b32 s95, {SPIN}")
        if len(voffs) == 1 and os.environ.get('PPOLL', '0') == '1':
            ld = lambda r: p.raw(f"    buffer_load_dword {v(r)}, {v(voffs[0])}, {s(SWS,4)}, {sbase} offen sc1")
            ld(232)
            p("s_sleep 9")
            p.label(L)
            for (rn, rc) in ((233, 232), (232, 233)):
                ld(rn)
                p.raw("    s_waitcnt vmcnt(1)")
                p(f"v_cmp_ne_u32 vcc, {s(sNON)}, {v(rc)}")
                p("s_sub_u32 s95, s95, 1")
                p("s_cmp_eq_u32 s95, 0")
                p(f"s_cbranch_scc1 {L}_out")
                p("s_nop 2")
                p(f"s_cbranch_vccz {L}_out")
            p(f"s_branch {L}")
        else:
            p.label(L)
            for k, vo in enumerate(voffs):
                p.raw(f"    buffer_load_dword {v(232+k)}, {v(vo)}, {s(SWS,4)}, {sbase} offen sc1")
            p.raw("    s_waitcnt vmcnt(0)")
            p(f"v_xor_b32 v232, {s(sNON)}, v232")
            for k in range(1, len(voffs)):
                p(f"v_xor_b32 {v(232+k)}, {s(sNON)}, {v(232+k)}")
                p(f"v_or_b32 v232, v232, {v(232+k)}")
            p("v_cmp_ne_u32 vcc, 0, v232")
            p("s_sub_u32 s95, s95, 1")
            p("s_cmp_eq_u32 s95, 0")
            p(f"s_cbranch_scc1 {L}_out")
            p("s_nop 2")
            p(f"s_cbranch_vccz {L}_out")
            p("s_sleep 1")
            p(f"s_branch {L}")
        p.label(f"{L}_out")
        p("s_mov_b32 exec_lo, -1")
        p("s_mov_b32 exec_hi, -1")
    def publish(which):
        pass
    emit_p1(p, True)
    def publish1():
        p(f"s_mov_b32 s70, {WS_FLG}")
        p("s_lshl_b32 s72, s2, 7")
        p("s_add_u32 s72, s72, s70")
        p("s_mov_b32 s75, s26")
        if DEFER:
            p("s_cmp_lg_u32 s75, 0")
            p("s_cbranch_scc1 S1_nodrain")
        p("s_waitcnt vmcnt(0)")
        p("s_barrier")
        p.label("S1_nodrain")
        stamp(p, 7)
        p(f"s_cmp_lg_u32 {s(sWV)}, 0")
        p("s_cbranch_scc1 S1_pubdone")
        p(f"v_readfirstlane_b32 {s(sNON)}, v208")
        p(f"s_mov_b32 s95, {SPIN}")
        p.label("S1_tag")
        p(f"s_cmp_lg_u32 {s(sNON)}, 0")
        p("s_cbranch_scc1 S1_havetag")
        p("s_sub_u32 s95, s95, 1")
        p("s_cmp_eq_u32 s95, 0")
        p("s_cbranch_scc1 S1_havetag")
        p("s_sleep 1")
        p("v_mov_b32 v232, 0")
        p.raw("    global_load_dword v208, v232, s[96:97] sc1")
        p.raw("    s_waitcnt vmcnt(0)")
        p(f"v_readfirstlane_b32 {s(sNON)}, v208")
        p("s_branch S1_tag")
        p.label("S1_havetag")
        p(f"v_mov_b32 v232, {s(sNON)}")
        p("v_mov_b32 v233, 0")
        p(f"v_mov_b32 v234, {BWORD}")
        p("s_mov_b32 exec_lo, 1")
        p("s_mov_b32 exec_hi, 0")
        p("s_cmp_lg_u32 s75, 0")
        p("s_cselect_b32 s76, 0x40000000, s72" if DEFER else "s_mov_b32 s76, s72")
        p.raw(f"    buffer_store_dword v232, v233, {s(SWS,4)}, s76 offen sc1")
        p.raw("    ds_write_b32 v234, v233")
        p("s_mov_b32 exec_lo, -1")
        p("s_mov_b32 exec_hi, -1")
        p.label("S1_pubdone")
    def sync1(sH, sR):
        if os.environ.get('ACON', '1') == '1':
            p(f"s_lshl_b32 s37, {s(sR)}, 1")
            p("s_sub_u32 s37, s37, 2")
            p("v_and_b32 v236, 3, v2")
            p("v_add_u32 v236, s37, v236")
            p("v_lshrrev_b32 v238, 2, v2")
            p("v_lshlrev_b32 v238, 5, v238")
            p(f"v_add_u32 v238, {s(sH)}, v238")
            p("v_mul_u32_u24 v238, 43, v238")
            p("v_lshrrev_b32 v238, 9, v238")
            p("v_and_b32 v237, 7, v236")
            p("v_lshlrev_b32 v237, 5, v237")
            p("v_bfe_u32 v236, v236, 3, 1")
            p("v_lshl_add_u32 v237, v236, 2, v237")
            p("v_and_b32 v236, 1, v238")
            p("v_lshl_add_u32 v237, v236, 3, v237")
            p("v_lshrrev_b32 v238, 1, v238")
            p("v_add_u32 v237, v237, v238")
            p("v_lshlrev_b32 v237, 7, v237")
            p(f"s_cmp_eq_u32 {s(sR)}, 0")
            p("s_cselect_b32 s71, 0xccc, 0xffc") if False else None
            p("s_movk_i32 s36, 0xccc")
            p("s_movk_i32 s37, 0xffc")
            p("s_cselect_b32 s71, s36, s37")
        else:
            p(f"s_lshr_b32 s36, {s(sH)}, 2")
            p(f"s_lshl_b32 s37, {s(sR)}, 1")
            p("s_sub_u32 s37, s37, 2")
            p("v_add_u32 v236, s37, v2")
            p("v_and_b32 v237, 7, v236")
            p("v_lshlrev_b32 v237, 5, v237")
            p("v_bfe_u32 v236, v236, 3, 1")
            p("v_lshl_add_u32 v237, v236, 2, v237")
            p("s_and_b32 s38, s36, 1")
            p("s_lshl_b32 s38, s38, 3")
            p("s_lshr_b32 s36, s36, 1")
            p("s_add_u32 s38, s38, s36")
            p("v_add_u32 v237, s38, v237")
            p("v_lshlrev_b32 v237, 7, v237")
            p(f"s_cmp_eq_u32 {s(sR)}, 0")
            p("s_cselect_b32 s71, 12, 15")
        p("v_and_b32 v31, 31, v2")
        p("v_lshlrev_b32 v31, 4, v31")
        p("v_lshrrev_b32 v236, 5, v2")
        p("v_mul_u32_u24 v236, 384, v236")
        p("v_add_u32 v31, v31, v236")
        p("v_lshlrev_b32 v238, 7, v2")
        p("v_add_u32 v239, 8192, v238")
        p("v_add_u32 v240, 16384, v238")
        p("v_add_u32 v241, 24576, v238")
        p("s_bfe_u32 s29, s2, 0x30003")
        p(f"s_mul_i32 s29, s29, {5*40960}")
        for j in range(5): p(f"s_add_u32 {s(24+j)}, s29, {WS_WF + j*40960}")
        p(f"s_lshr_b32 s29, {s(sWV)}, 2")
        p("s_lshl_b32 s29, s29, 12")
        p(f"s_lshl_b32 s30, {s(sWV)}, 12")
        p("s_add_u32 s29, s29, s30")
        p("v_lshlrev_b32 v248, 4, v2")
        p("v_add_u32 v248, s29, v248")
        p(f"s_mul_i32 s29, {s(sWV)}, {NWL*1024}")
        p(f"s_add_u32 s29, s29, {LDSW}")
        p(f"s_cmp_lg_u32 {s(sWV)}, 0")
        p("s_cbranch_scc1 S1_skip")
        poll([237], "s70", "s71")
        p.raw("    s_waitcnt lgkmcnt(0)")
        p.label("S1_skip")
        p("s_barrier")
        stamp(p, 8)
    def deferred():
        if not DEFER: return
        p("s_mov_b32 exec_hi, 0xff")
        for b in range(4):
            p(f"s_add_u32 s36, s93, {b*81920}")
            p(f"buffer_store_dwordx4 {v(192+4*b,4)}, v30, {s(SWS,4)}, s36 offen sc1")
        p("s_mov_b32 exec_lo, 0xffffff")
        p("s_mov_b32 exec_hi, 0xffffff")
        for q in range(3):
            p(f"buffer_store_dwordx4 {v(176+4*q,4)}, v31, {s(SWS,4)}, s92 offen offset:{q*768} sc1")
        p("s_mov_b32 exec_lo, -1")
        p("s_mov_b32 exec_hi, -1")
    def pub_late():
        p(f"s_cmp_lg_u32 {s(sWV)}, 0")
        p("s_cbranch_scc1 SM_nopub")
        p("s_cmp_eq_u32 s75, 0")
        p(f"s_cselect_b32 s76, 0x40000000, s72" if DEFER else "s_mov_b32 s76, 0x40000000")
        p(f"v_mov_b32 v232, {s(sNON)}")
        p("v_mov_b32 v233, 0")
        p("s_mov_b32 exec_lo, 1")
        p("s_mov_b32 exec_hi, 0")
        p.raw(f"    buffer_store_dword v232, v233, {s(SWS,4)}, s76 offen sc1")
        p("s_mov_b32 exec_lo, -1")
        p("s_mov_b32 exec_hi, -1")
        p.label("SM_nopub")
    def pre_all():
        p(f"s_cmp_lg_u32 {s(sWV)}, 0")
        p("s_cbranch_scc1 SM_skip")
        for k in range(4): p.raw(f"    buffer_load_dword {v(242+k)}, {v(238+k)}, {s(SWS,4)}, s70 offen sc1")
        p.label("SM_skip")
    def gateB():
        p(f"s_cmp_lg_u32 {s(sWV)}, 0")
        p("s_cbranch_scc1 SA_done")
        p.raw("    s_waitcnt vmcnt(0)")
        for k in range(4): p(f"v_xor_b32 {v(242+k)}, {s(sNON)}, {v(242+k)}")
        p("v_or3_b32 v242, v242, v243, v244")
        p("v_or_b32 v242, v242, v245")
        p("v_cmp_ne_u32 vcc, 0, v242")
        p("s_nop 4")
        p("s_cbranch_vccz SA_skip")
        poll([238, 239, 240, 241], "s70", "-1", "-1", setexec=False)
        p.label("SA_skip")
        p(f"v_mov_b32 v232, {BWORD}")
        p("v_mov_b32 v233, 1")
        p.raw("    ds_write_b32 v232, v233")
        p.raw("    s_waitcnt lgkmcnt(0)")
        p.label("SA_done")
    def waitB():
        p(f"v_mov_b32 v232, {BWORD}")
        p(f"s_mov_b32 s95, {SPIN*8}")
        p("s_waitcnt lgkmcnt(0)")
        p.label("WB_loop")
        p.raw("    ds_read_b32 v233, v232")
        p.raw("    s_waitcnt lgkmcnt(0)")
        p("v_readfirstlane_b32 s73, v233")
        p("s_sub_u32 s95, s95, 1")
        p("s_cmp_eq_u32 s95, 0")
        p("s_cbranch_scc1 WB_out")
        p("s_cmp_eq_u32 s73, 0")
        p("s_cbranch_scc0 WB_out")
        p("s_sleep 1")
        p("s_branch WB_loop")
        p.label("WB_out")
    PUBFIRST = os.environ.get('PUBFIRST', '1') == '1'
    if PUBFIRST: publish1()
    def sync1w(sH, sR):
        if not PUBFIRST: publish1()
        sync1(sH, sR)
    emit_p2(p, dict(sync1=sync1w, pre_all=pre_all, pub_late=pub_late, gateB=gateB, waitB=waitB, wdma=wdma, deferred=deferred, defer=DEFER))
    S = dict(RT=17, CT=18, A=40, B=44, t0=36, t1=37, T0=38, OB=39, TL=19)
    p("s_mov_b32 s30, s29")
    p("s_load_dwordx2 s[4:5], s[0:1], 56")
    p3_setup(p, sWV, S)
    p("s_and_b32 s50, s2, 3")
    p("s_lshl_b32 s50, s50, 6")
    p("s_bfe_u32 s51, s2, 0x10002")
    p("s_lshl_b32 s51, s51, 2")
    p("s_add_u32 s50, s50, s51")
    p("v_and_b32 v1, 7, v2")
    p("v_lshlrev_b32 v1, 3, v1")
    p("v_bfe_u32 v3, v2, 3, 2")
    p("v_add3_u32 v1, v1, v3, s50")
    p("v_lshlrev_b32 v237, 7, v1")
    p(f"s_add_u32 s70, s70, 32768")
    p("s_lshl_b32 s72, s2, 7")
    p("s_add_u32 s72, s72, s70")
    p(f"v_mov_b32 v232, {s(sNON)}")
    p("v_mov_b32 v233, 0")
    p("s_waitcnt lgkmcnt(0)")
    srd(p, 12, 4, 2048*1280)
    p("s_waitcnt vmcnt(0)")
    p("s_barrier")
    stamp(p, 18)
    p(f"s_cmp_lg_u32 {s(sWV)}, 0")
    p("s_cbranch_scc1 S2_a")
    p("s_mov_b32 exec_lo, 1")
    p("s_mov_b32 exec_hi, 0")
    p.raw(f"    buffer_store_dword v232, v233, {s(SWS,4)}, s72 offen sc1")
    p("s_mov_b32 exec_lo, -1")
    p("s_mov_b32 exec_hi, -1")
    p.label("S2_a")
    if NWL:
        p(f"v_add_u32 v1, s30, {v(P3_V+4)}")
        for f in range(NWL): p(f"ds_read_b128 {v(P3_W+4*f,4)}, v1 offset:{f*1024}")
    for f in range(NWL, 25):
        ks, j = divmod(f, 5)
        p(f"buffer_load_dwordx4 {v(P3_W+4*f,4)}, {v(P3_V + ks//4)}, {s(SWS,4)}, {s(S['B']+j)} offen offset:{(ks%4)*1024} sc1")
    p("s_waitcnt lgkmcnt(0)")
    p(f"s_cmp_lg_u32 {s(sWV)}, 0")
    p("s_cbranch_scc1 S2_skip")
    poll([237], "s70", "-1", "0")
    p.label("S2_skip")
    p("s_barrier")
    stamp(p, 19)
    if STAMP and os.environ.get('DBGOUT'):
        sel = (0, 1, 3, 4, 5, 6, 7, 8, 10, 12, 17, 18, 19)
        for i, ln in enumerate(sel):
            p(f"v_readlane_b32 {s(76+i)}, {v(p.stv)}, {ln}")
    if STAMP:
        stamp_flush(p, 0, SWS, 8, sWV)
        p("s_mov_b32 exec_lo, -1"); p("s_mov_b32 exec_hi, -1")
        p.stv = 3
    p3_main(p, sWV, SWS, 12, S, 'sc1')
    stamp(p, 6)
    if STAMP: p("s_waitcnt vmcnt(0)")
    stamp(p, 7)
    if STAMP and os.environ.get('DBGOUT'):
        p(f"s_sub_u32 s34, s2, {int(os.environ['DBGOUT'])}")
        p(f"s_or_b32 s34, s34, {s(sWV)}")
        p("s_cmp_lg_u32 s34, 0")
        p("s_cbranch_scc1 DBG_skip")
        p(f"v_readlane_b32 s89, {v(p.stv)}, 24")
        p(f"v_readlane_b32 s90, {v(p.stv)}, 7")
        for i in range(1, 15):
            p(f"s_sub_u32 s34, {s(76+i)}, s76")
            p(f"v_writelane_b32 v20, s34, {i}")
        p("v_mbcnt_lo_u32_b32 v21, -1, 0")
        p("v_lshlrev_b32 v21, 2, v21")
        p("s_mov_b32 exec_lo, 0x7ffe")
        p("s_mov_b32 exec_hi, 0")
        p("global_store_dword v21, v20, s[96:97]")
        p("s_mov_b32 exec_lo, -1")
        p("s_mov_b32 exec_hi, -1")
        p.label("DBG_skip")
    stamp_flush(p, 2, SWS, 8, sWV)
    p.label("K1_end")
    p("s_endpgm")
    p.pad()
    return p.text(), dict(name=name, vgpr=256, sgpr=100, grid=256, block=512, lds=163840)
```

```python
from asmlib import *
from gen import *
import os

KVP_STRIDE = 2304

def gen_k1():
    p = Prog()
    header(p, "k1_kernel")
    p.stv = 206
    emit_p1(p, False)
    p.pad()
    return p.text(), dict(name="k1_kernel", vgpr=207, sgpr=100, grid=256, block=512, lds=163840)

def emit_p1(p, fused):
    SX, SW, SWS, SWO, SGW = 12, 16, 20, 68, 72
    sRT, sHG, sBR, sKC, sOX, sOW, sWV = 24, 25, 26, 28, 29, 30, 33
    sMH, sNG = 41, 42
    sINIT, sSCL, sFLG = 44, 48, 52
    sM0X, sM0W = 56, 57
    IMG = 49152
    p("s_cmp_ge_u32 s2, 256")
    p("s_cbranch_scc1 K1_end")
    stamp(p, 0)
    p("s_load_dwordx4 s[4:7], s[0:1], 0")
    p("s_load_dwordx2 s[8:9], s[0:1], 32")
    p("s_load_dwordx2 s[10:11], s[0:1], 72")
    p("s_load_dwordx2 s[76:77], s[0:1], 16")
    p("s_load_dwordx4 s[80:83], s[0:1], 40")
    if fused: p("s_load_dwordx2 s[96:97], s[0:1], 64")
    p("v_lshrrev_b32 v1, 6, v0")
    p("v_and_b32 v2, 63, v0")
    p(f"v_readfirstlane_b32 {s(sWV)}, v1")
    p("s_and_b32 s34, s2, 7")
    p("s_lshr_b32 s35, s2, 3")
    p("s_lshr_b32 s36, s34, 2")
    p("s_and_b32 s37, s34, 3")
    if os.environ.get('AFIRST', '0') == '1':
        p("s_bfe_u32 s58, s35, 0x30001")
        p("s_lshr_b32 s59, s35, 4")
        p("s_lshl_b32 s59, s59, 1")
        p("s_and_b32 s38, s35, 1")
        p("s_or_b32 s59, s59, s38")
    else:
        p("s_lshr_b32 s58, s35, 2")
        p("s_and_b32 s59, s35, 3")
    p(f"s_lshl_b32 {s(sRT)}, s36, 3")
    p(f"s_add_u32 {s(sRT)}, {s(sRT)}, s58")
    if os.environ.get('XMAP', '0') == '1':
        p(f"s_lshr_b32 {s(sBR)}, s37, 1")
        p("s_and_b32 s40, s37, 1")
        p("s_lshl_b32 s40, s40, 2")
        p(f"s_add_u32 {s(sHG)}, s59, s40")
    else:
        p(f"s_lshr_b32 {s(sBR)}, s59, 1")
        p(f"s_and_b32 {s(sHG)}, s59, 1")
        p("s_lshl_b32 s40, s37, 1")
        p(f"s_add_u32 {s(sHG)}, {s(sHG)}, s40")
    p("s_lshl_b32 s43, s37, 2")
    p("s_add_u32 s43, s43, s59")
    vXO, vWO = 4, 6
    p("v_lshrrev_b32 v3, 3, v2")
    p("v_and_b32 v10, 7, v2")
    p("v_xor_b32 v10, v10, v3")
    p("v_lshlrev_b32 v10, 4, v10")
    p("s_movk_i32 s40, 1280")
    p(f"v_mad_u32_u24 {v(vXO)}, v3, s40, v10")
    p(f"s_lshl_b32 s34, {s(sRT)}, 7")
    p(f"s_lshl_b32 s35, {s(sWV)}, 4")
    p("s_add_u32 s34, s34, s35")
    p("s_mul_i32 s34, s34, 1280")
    p(f"v_add_u32 {v(vXO)}, s34, {v(vXO)}")
    p(f"v_add_u32 {v(vXO+1)}, 9216, {v(vXO)}")
    p("v_lshrrev_b32 v3, 5, v2")
    p("v_bfe_u32 v10, v2, 1, 4")
    p("v_and_b32 v11, 1, v2")
    p("v_lshlrev_b32 v11, 4, v11")
    p("s_movk_i32 s35, 3840")
    p("v_mad_u32_u24 v11, v3, s35, v11")
    p(f"s_and_b32 s36, {s(sWV)}, 1")
    p("s_lshl_b32 s36, s36, 2")
    p(f"s_mul_i32 s37, {s(sWV)}, {8*3840}")
    ACON = os.environ.get('ACON', '1') == '1'
    if ACON:
        p(f"s_cmp_eq_u32 {s(sBR)}, 0")
        p("s_movk_i32 s39, 160")
        p("s_cselect_b32 s38, 480, s39")
        p("s_cselect_b32 s39, s39, s40")
        p(f"s_mul_i32 s38, {s(sHG)}, s38")
    else:
        p(f"s_mul_i32 s38, {s(sHG)}, 160")
        p("s_mov_b32 s39, 1280")
    p("s_add_u32 s37, s37, s38")
    p("v_mov_b32 v16, 0x40000000")
    for i in range(2):
        p(f"v_or_b32 v12, s36, v3")
        if i: p("v_or_b32 v12, 2, v12")
        p("v_xor_b32 v12, v12, v10")
        p("v_mul_u32_u24 v13, 52, v12")
        p("v_lshrrev_b32 v13, 8, v13")
        p("v_mul_u32_u24 v14, 5, v13")
        p("v_sub_u32 v14, v12, v14")
        p("v_lshl_add_u32 v14, v14, 5, v11")
        p("v_mad_u32_u24 v14, v13, s39, v14")
        p(f"v_add_u32 v14, s37, v14")
        if i: p(f"v_add_u32 v14, {2*3840-1024}, v14")
        p("v_cmp_eq_u32 vcc, 15, v12")
        p(f"v_cndmask_b32 {v(vWO+i)}, v14, v16, vcc")
        p(f"v_add_u32 {v(vWO+2+i)}, 13312, {v(vWO+i)}")
    p(f"s_lshl_b32 {s(sM0X)}, {s(sWV)}, 11")
    p(f"s_lshl_b32 {s(sM0W)}, {s(sWV)}, 12")
    p(f"s_add_u32 {s(sM0W)}, {s(sM0W)}, 16384")
    ROTG = int(os.environ.get('ROTG', '3'))
    if ROTG == 1:
        p(f"s_mov_b32 {s(sKC)}, 0")
    elif ROTG == 10:
        p(f"s_mul_i32 {s(sKC)}, s59, 3")
        p(f"s_add_u32 {s(sKC)}, {s(sKC)}, s58")
        p(f"s_sub_u32 s34, {s(sKC)}, 10")
        p(f"s_cmp_ge_u32 {s(sKC)}, 10")
        p(f"s_cselect_b32 {s(sKC)}, s34, {s(sKC)}")
    else:
        mg = {3: 86, 4: 64, 5: 52, 2: 128}[ROTG]
        p("s_add_u32 s34, s58, s59")
        p(f"s_mul_i32 s35, s34, {mg}")
        p("s_lshr_b32 s35, s35, 8")
        p(f"s_mul_i32 s35, s35, {ROTG}")
        p("s_sub_u32 s34, s34, s35")
        p("s_mul_i32 s34, s34, 10")
        p(f"s_mul_i32 s34, s34, {mg}")
        p(f"s_lshr_b32 {s(sKC)}, s34, 8")
    p(f"s_lshl_b32 {s(sOX)}, {s(sKC)}, 7")
    p(f"s_mul_i32 {s(sOW)}, {s(sKC)}, 245760")
    p(f"s_mov_b32 m0, {s(sM0X)}")
    p("s_waitcnt lgkmcnt(0)")
    srd(p, SX, 4, 2048*1280)
    p(f"s_cmp_eq_u32 {s(sBR)}, 0")
    p("s_cselect_b32 s6, s6, s8")
    p("s_cselect_b32 s7, s7, s9")
    srd(p, SW, 6, 640*3840)
    tags = {}
    sfx = ['']
    def issue_steps(st):
        slot = (st % 3) * 49152
        g = []
        first = [] if st == 0 else [f"s_add_u32 m0, {s(sM0X)}, {slot}", "s_nop 0"]
        g.append(first + [f"buffer_load_dwordx4 {v(vXO)}, {s(SX,4)}, {s(sOX)} offen lds"])
        g.append([f"buffer_load_dwordx4 {v(vXO+1)}, {s(SX,4)}, {s(sOX)} offen offset:1024 lds"])
        g.append([f"s_add_u32 m0, {s(sM0W)}, {slot}", f"s_add_u32 {s(sOX)}, {s(sOX)}, 128",
                  f"buffer_load_dwordx4 {v(vWO)}, {s(SW,4)}, {s(sOW)} offen lds"])
        for i in range(1, 4):
            g.append([f"buffer_load_dwordx4 {v(vWO+i)}, {s(SW,4)}, {s(sOW)} offen offset:{i*1024} lds"])
        g[-1] += [('tag', st)]
        if st < 9:
            g[-1] += [f"s_add_u32 {s(sOW)}, {s(sOW)}, 245760", f"s_add_u32 {s(sKC)}, {s(sKC)}, 1", f"s_cmp_eq_u32 {s(sKC)}, 10",
                      f"s_cselect_b32 {s(sOX)}, 0, {s(sOX)}", f"s_cselect_b32 {s(sOW)}, 0, {s(sOW)}"]
        return g
    def emit(t):
        if isinstance(t, tuple) and t[0] == 'raw': p.raw("    " + t[1])
        elif isinstance(t, tuple) and t[0] == 'label': p.label(t[1] + sfx[0])
        elif isinstance(t, tuple) and t[0] == 'br': p(t[1] + sfx[0])
        elif isinstance(t, tuple): tags[t[1]] = p.vmtag()
        elif isinstance(t, list):
            for x in t: emit(x)
        else: p(t)
    def issue(st):
        for g in issue_steps(st): emit(g)
    stamp(p, 1)
    issue(0)
    srd(p, SWS, 10, WS_SIZE)
    p("s_getpc_b64 s[60:61]")
    p.label("K1_pc")
    p(f"s_lshl_b32 s34, {s(sWV)}, 13")
    p("v_lshlrev_b32 v26, 7, v2")
    p("v_add_u32 v26, s34, v26")
    p("v_min_u32 v26, CODE_END-K1_pc-4, v26")
    p("global_load_dword v31, v26, s[60:61]")
    if fused:
        p(f"s_or_b32 s34, s2, {s(sWV)}")
        p("s_cmp_lg_u32 s34, 0")
        p("s_cbranch_scc1 P1_notag")
        p("s_memrealtime s[94:95]")
        p("v_mov_b32 v30, 0")
        p("s_waitcnt lgkmcnt(0)")
        p("s_or_b32 s94, s94, 1")
        p("v_mov_b32 v1, s94")
        p("s_mov_b32 exec_lo, 1")
        p("s_mov_b32 exec_hi, 0")
        p.raw("    global_store_dword v30, v1, s[96:97] sc1")
        p("s_mov_b32 exec_lo, -1")
        p("s_mov_b32 exec_hi, -1")
        p.label("P1_notag")
    stamp(p, 2)
    p(f"s_lshr_b32 {s(sMH)}, {s(sWV)}, 2")
    p(f"s_and_b32 {s(sNG)}, {s(sWV)}, 3")
    vXA = [10, 12, 14]; vWA = [16, 20, 24]
    vG, vM = 28, 29
    p(f"v_lshrrev_b32 {v(vG)}, 4, v2")
    p(f"v_and_b32 {v(vM)}, 15, v2")
    p("v_and_b32 v3, 7, v2")
    p(f"v_xor_b32 v3, v3, {v(vG)}")
    p("v_lshlrev_b32 v3, 4, v3")
    p(f"v_lshl_add_u32 v3, {v(vM)}, 7, v3")
    p(f"s_lshl_b32 s34, {s(sMH)}, 13")
    p(f"v_add_u32 {v(vXA[0])}, s34, v3")
    p(f"v_xor_b32 {v(vXA[0]+1)}, 64, {v(vXA[0])}")
    p("v_bfe_u32 v3, v2, 2, 2")
    p(f"v_and_b32 v1, 1, {v(vG)}")
    p("v_lshl_or_b32 v1, v1, 2, v3")
    p(f"v_lshl_add_u32 v30, {v(vG)}, 3, v3")
    p("v_lshlrev_b32 v30, 9, v30")
    p("v_and_b32 v3, 3, v2")
    p("v_lshl_add_u32 v30, v3, 3, v30")
    p("v_add_u32 v30, 16384, v30")
    for jj in range(4):
        p(f"s_add_u32 s35, {s(sNG)}, {4*jj}")
        p(f"v_xor_b32 v3, s35, v1")
        p(f"v_lshl_add_u32 {v(vWA[0]+jj)}, v3, 5, v30")
        p("s_sub_u32 s36, s35, 5")
        p("s_cmp_lt_u32 s36, 5")
        p(f"s_cselect_b32 {s(sFLG+jj)}, {s(sBR)}, 0")
        p(f"s_mul_i32 {s(sINIT+jj)}, {s(sFLG+jj)}, {f32(EPS)}")
        if ACON:
            p(f"s_mul_i32 s36, {s(sHG)}, 15")
            p("s_add_u32 s36, s36, s35")
            p("s_cmp_lt_u32 s36, 40")
        else:
            p("s_cmp_lt_u32 s35, 5")
        p("s_cselect_b32 s36, 1, 0")
        p(f"s_andn2_b32 {s(sSCL+jj)}, s36, {s(sBR)}")
    for sl in (1, 2):
        for k in range(2): p(f"v_add_u32 {v(vXA[sl]+k)}, {sl*49152}, {v(vXA[0]+k)}")
        for k in range(4): p(f"v_add_u32 {v(vWA[sl]+k)}, {sl*49152}, {v(vWA[0]+k)}")
    ACC = 32
    FX = [96, 128]; FW = [112, 144]
    for jj in range(4):
        for k in range(16):
            p(f"v_mov_b32 {v(ACC+jj*16+k)}, {s(sINIT+jj) if jj in (1,2) else 0}")
    UP1 = os.environ.get('UP1', '0') == '1'
    if not UP1: issue(1)
    def rdx(st, ks, i): return f"ds_read_b128 {v(FX[ks]+4*i,4)}, {v(vXA[st%3]+ks)} offset:{i*2048}"
    def rdw(st, ks, jj, h): return f"ds_read_b64_tr_b16 {v(FW[ks]+4*jj+2*h,2)}, {v(vWA[st%3]+jj)} offset:{ks*16384+h*2048}"
    def mm(ks, jj, i):
        A = ACC + (jj*4+i)*4
        p(f"v_mfma_f32_16x16x32_bf16 {v(A,4)}, {v(FW[ks]+4*jj,4)}, {v(FX[ks]+4*i,4)}, {v(A,4)}")
    def readlist(st, ks, order=(0,1,2,3)):
        L = [rdw(st,ks,order[0],0), rdw(st,ks,order[0],1)]
        for i in range(4): L.append(rdx(st,ks,i))
        for jj in order[1:]:
            L.append(rdw(st,ks,jj,0)); L.append(rdw(st,ks,jj,1))
        return L
    GX, GWt, A0, WOR, WOH, vW0, vW1, vT0, vT1, vL16 = 160, 166, 172, 192, 196, 200, 201, 202, 203, 204
    sGR, sJOB, sWFo = 84, 85, 86
    F = {k: [] for k in range(20)}
    f = F[1]
    f += [f"v_lshlrev_b32 {v(vL16)}, 4, v2",
          f"s_lshl_b32 {s(sJOB)}, s2, 3", f"s_add_u32 {s(sJOB)}, {s(sJOB)}, {s(sWV)}",
          [f"s_cmp_ge_u32 {s(sJOB)}, 800", "s_cselect_b32 s76, s80, s76", "s_cselect_b32 s77, s81, s77",
           "s_cselect_b32 s87, 800, 0", "s_cselect_b32 s88, 20, 0"],
          f"s_mov_b32 {s(SWO)}, s76", f"s_and_b32 {s(SWO+1)}, s77, 0xffff", f"s_mov_b32 {s(SWO+2)}, {640*1280}", f"s_mov_b32 {s(SWO+3)}, 0x20000",
          f"s_mov_b32 {s(SGW)}, s82", f"s_and_b32 {s(SGW+1)}, s83, 0xffff", f"s_mov_b32 {s(SGW+2)}, 1280", f"s_mov_b32 {s(SGW+3)}, 0x20000",
          f"s_sub_u32 s87, {s(sJOB)}, s87", "s_mul_i32 s89, s87, 1639", "s_lshr_b32 s89, s89, 16",
          "s_mul_i32 s90, s89, 40", "s_sub_u32 s90, s87, s90", "s_lshl_b32 s91, s89, 2"]
    WLIN = os.environ.get('WLIN', '1') == '1'
    LDSX, GWL = 147456, 155648
    if WLIN:
        f = F[2]
        f += [f"s_lshr_b32 s34, {s(sWV)}, 1", "s_add_u32 s91, s91, s34",
              "s_lshr_b32 s34, s91, 1", "s_mul_i32 s34, s34, 20", "s_and_b32 s35, s91, 1", "s_lshl_b32 s35, s35, 2", "s_add_u32 s34, s34, s35",
              "s_mul_i32 s35, s91, 40", f"s_sub_u32 s35, s35, {40*64-16}",
              ["s_cmp_lt_u32 s91, 64", "s_cselect_b32 s34, s34, s35", "s_cselect_b32 s35, 8, 20"],
              f"s_and_b32 s36, {s(sWV)}, 1", "s_mul_i32 s35, s35, s36", "s_add_u32 s34, s34, s35", "s_mul_i32 s34, s34, 1280",
              f"s_sub_u32 s35, s90, {s(sWV)}", "s_lshl_b32 s35, s35, 5", "s_add_u32 s91, s34, s35",
              f"v_lshlrev_b32 {v(vT1)}, 4, {v(vM)}", f"v_mad_u32_u24 {v(vW0)}, {v(vG)}, s40, {v(vT1)}",
              f"v_bfe_u32 {v(vT1)}, v2, 2, 2", f"v_lshl_add_u32 {v(vT1)}, {v(vG)}, 3, {v(vT1)}", f"v_lshlrev_b32 {v(vT1)}, 8, {v(vT1)}",
              f"v_and_b32 {v(vW1)}, 3, v2", f"v_lshl_add_u32 {v(vW1)}, {v(vW1)}, 3, {v(vT1)}",
              f"s_lshl_b32 s34, {s(sWV)}, 5", f"s_add_u32 s34, s34, {LDSX}", f"v_add_u32 {v(vW1)}, s34, {v(vW1)}"]
        f = F[3]
        f += ["s_mul_i32 s90, s90, 40", "s_add_u32 s90, s90, s88", "s_add_u32 s90, s90, s89",
              "s_lshl_b32 s90, s90, 10", f"s_add_u32 s90, s90, {WS_WF}",
              [f"s_cmp_ge_u32 {s(sJOB)}, 1600", "s_cselect_b32 s91, 0x40000000, s91", f"s_cselect_b32 {s(sWFo)}, 0x40000000, s90"],
              f"s_lshl_b32 {s(sGR)}, {s(sRT)}, 4", f"s_add_u32 {s(sGR)}, {s(sGR)}, s43", f"s_lshl_b32 {s(sGR)}, {s(sGR)}, 3",
              f"s_add_u32 {s(sGR)}, {s(sGR)}, {s(sWV)}", f"s_mul_i32 s92, {s(sGR)}, 1280", f"v_lshlrev_b32 {v(vT0)}, 2, v2",
              f"s_lshl_b32 s87, {s(sWV)}, 10"]
        f = F[6]
        f += [[f"s_add_u32 m0, s87, {LDSX}", "s_nop 0", f"buffer_load_dwordx4 {v(vW0)}, {s(SWO,4)}, s91 offen lds"],
              [f"s_add_u32 m0, s87, {GWL}", "s_nop 0", f"buffer_load_dwordx4 {v(vL16)}, {s(SGW,4)}, s87 offen lds"],
              f"buffer_load_dwordx4 {v(GX,4)}, {v(vL16)}, {s(SX,4)}, s92 offen",
              f"buffer_load_dword {v(GX+4)}, {v(vT0)}, {s(SX,4)}, s92 offen offset:1024"]
        if fused:
            F[8] += ["v_mov_b32 v208, 0", "global_load_dword v208, v208, s[96:97] sc1"]
        f = F[11]
        f += [f"ds_read_b64_tr_b16 {v(WOR,2)}, {v(vW1)}", f"ds_read_b64_tr_b16 {v(WOR+2,2)}, {v(vW1)} offset:1024",
              f"v_add_u32 {v(vW0)}, {GWL}, {v(vL16)}", f"v_add_u32 {v(vT1)}, {GWL}, {v(vT0)}",
              f"ds_read_b128 {v(GWt,4)}, {v(vW0)}", f"ds_read_b32 {v(GWt+4)}, {v(vT1)} offset:1024"]
        f = F[12]
        f.append(f"buffer_store_dwordx4 {v(WOR,4)}, {v(vL16)}, {s(SWS,4)}, {s(sWFo)} offen {SC}")
        for k in range(5):
            f += [f"v_lshlrev_b32 {v(A0+4*k)}, 16, {v(GX+k)}", f"v_and_b32 {v(A0+4*k+1)}, 0xffff0000, {v(GX+k)}",
                  f"v_lshlrev_b32 {v(A0+4*k+2)}, 16, {v(GWt+k)}", f"v_and_b32 {v(A0+4*k+3)}, 0xffff0000, {v(GWt+k)}"]
    else:
        f = F[2]
        f += [f"v_add_u32 {v(vT0)}, s91, {v(vG)}",
              f"v_lshrrev_b32 {v(vT1)}, 1, {v(vT0)}", f"v_mul_u32_u24 {v(vT1)}, 20, {v(vT1)}",
              f"v_and_b32 {v(vW0)}, 1, {v(vT0)}", f"v_lshl_add_u32 {v(vT1)}, {v(vW0)}, 2, {v(vT1)}",
              f"v_mul_u32_u24 {v(vW1)}, 40, {v(vT0)}", f"v_subrev_u32 {v(vW1)}, {40*64-16}, {v(vW1)}",
              f"v_cmp_gt_u32 vcc, 64, {v(vT0)}", f"v_mov_b32 {v(vT0)}, 20", None,
              f"v_cndmask_b32 {v(vW1)}, {v(vW1)}, {v(vT1)}, vcc", f"v_cndmask_b32_e64 {v(vT0)}, {v(vT0)}, 8, vcc",
              f"v_lshlrev_b32 {v(vT1)}, 1, {v(vM)}",
              f"v_mad_u32_u24 {v(vW0)}, {v(vW1)}, s40, {v(vT1)}",
              f"v_mad_u32_u24 {v(vW1)}, {v(vT0)}, s40, {v(vW0)}"]
        f = F[3]
        f += ["s_lshl_b32 s91, s90, 5", "s_mul_i32 s90, s90, 40", "s_add_u32 s90, s90, s88", "s_add_u32 s90, s90, s89",
              "s_lshl_b32 s90, s90, 10", f"s_add_u32 s90, s90, {WS_WF}",
              [f"s_cmp_ge_u32 {s(sJOB)}, 1600", "s_cselect_b32 s91, 0x40000000, s91", f"s_cselect_b32 {s(sWFo)}, 0x40000000, s90"],
              f"s_lshl_b32 {s(sGR)}, {s(sRT)}, 4", f"s_add_u32 {s(sGR)}, {s(sGR)}, s43", f"s_lshl_b32 {s(sGR)}, {s(sGR)}, 3",
              f"s_add_u32 {s(sGR)}, {s(sGR)}, {s(sWV)}", f"s_mul_i32 s92, {s(sGR)}, 1280", f"v_lshlrev_b32 {v(vT0)}, 2, v2"]
        f = F[6]
        for k in range(2):
            for q in range(2):
                f.append(f"buffer_load_ushort {v(WOR+2*k+q)}, {v(vW0+k)}, {s(SWO,4)}, s91 offen offset:{2560*q}")
                f.append(f"buffer_load_ushort {v(WOH+2*k+q)}, {v(vW0+k)}, {s(SWO,4)}, s91 offen offset:{2560*q+1280}")
        f += [f"buffer_load_dwordx4 {v(GX,4)}, {v(vL16)}, {s(SX,4)}, s92 offen",
              f"buffer_load_dword {v(GX+4)}, {v(vT0)}, {s(SX,4)}, s92 offen offset:1024",
              f"buffer_load_dwordx4 {v(GWt,4)}, {v(vL16)}, {s(SGW,4)}, 0 offen",
              f"buffer_load_dword {v(GWt+4)}, {v(vT0)}, {s(SGW,4)}, 0 offen offset:1024"]
        if fused:
            F[8] += ["v_mov_b32 v208, 0", "global_load_dword v208, v208, s[96:97] sc1"]
        f = F[12]
        for k in range(4): f.append(f"v_lshl_or_b32 {v(WOR+k)}, {v(WOH+k)}, 16, {v(WOR+k)}")
        f.append(f"buffer_store_dwordx4 {v(WOR,4)}, {v(vL16)}, {s(SWS,4)}, {s(sWFo)} offen {SC}")
        for k in range(5):
            f += [f"v_lshlrev_b32 {v(A0+4*k)}, 16, {v(GX+k)}", f"v_and_b32 {v(A0+4*k+1)}, 0xffff0000, {v(GX+k)}",
                  f"v_lshlrev_b32 {v(A0+4*k+2)}, 16, {v(GWt+k)}", f"v_and_b32 {v(A0+4*k+3)}, 0xffff0000, {v(GWt+k)}"]
    f = F[13]
    for k in range(5):
        f += [f"v_mul_f32 {v(A0+4*k)}, {v(A0+4*k)}, {v(A0+4*k+2)}", f"v_mul_f32 {v(A0+4*k+1)}, {v(A0+4*k+1)}, {v(A0+4*k+3)}"]
    for k in range(5): f.append(f"v_cvt_pk_bf16_f32 {v(A0+4*k+2)}, {v(A0+4*k)}, {v(A0+4*k+1)}")
    f = F[14]
    for k in range(5):
        f += [f"v_lshlrev_b32 {v(A0+4*k)}, 16, {v(A0+4*k+2)}", f"v_and_b32 {v(A0+4*k+1)}, 0xffff0000, {v(A0+4*k+2)}"]
    for k in range(5): f.append(f"v_add_f32 {v(A0+4*k)}, {v(A0+4*k)}, {v(A0+4*k+1)}")
    G = A0
    f += [f"v_add_f32 {v(A0)}, {v(A0)}, {v(A0+4)}", f"v_add_f32 {v(A0+8)}, {v(A0+8)}, {v(A0+12)}",
          f"v_add_f32 {v(A0)}, {v(A0)}, {v(A0+16)}", f"v_add_f32 {v(A0)}, {v(A0)}, {v(A0+8)}"]
    f = F[15]
    for sh in (1, 2, 4, 8): f += [f"v_add_f32_dpp {v(G)}, {v(G)}, {v(G)} row_shr:{sh} row_mask:0xf bank_mask:0xf", None]
    f += [f"v_add_f32_dpp {v(G)}, {v(G)}, {v(G)} row_bcast:15 row_mask:0xa bank_mask:0xf", None,
          f"v_add_f32_dpp {v(G)}, {v(G)}, {v(G)} row_bcast:31 row_mask:0xc bank_mask:0xf",
          f"s_mov_b32 s62, {f32(LOG2E)}", f"s_mov_b32 s63, {f32(LOG2E)}",
          f"v_cvt_pk_bf16_f32 {v(G)}, {v(G)}, {v(G)}", f"v_lshlrev_b32 {v(G)}, 16, {v(G)}",
          f"v_mul_f32 {v(G)}, s62, {v(G)}", f"v_exp_f32 {v(G)}, -{v(G)}", None, f"v_add_f32 {v(G)}, 1.0, {v(G)}",
          f"v_rcp_f32 {v(G)}, {v(G)}", None, f"v_cvt_pk_bf16_f32 {v(G)}, {v(G)}, {v(G)}"]
    f = F[16]
    f += [f"v_lshlrev_b32 {v(G)}, 16, {v(G)}", f"v_sub_f32 {v(G+1)}, 1.0, {v(G)}",
          f"v_cvt_pk_bf16_f32 {v(G+1)}, {v(G+1)}, {v(G+1)}", f"v_lshlrev_b32 {v(G+1)}, 16, {v(G+1)}",
          f"s_lshl_b32 s92, {s(sGR)}, 3", f"s_add_u32 s92, s92, {WS_G}", f"v_mov_b32 {v(vT0)}, 0",
          ["s_mov_b32 exec_lo, 0", "s_mov_b32 exec_hi, 0x80000000",
           f"buffer_store_dwordx2 {v(G,2)}, {v(vT0)}, {s(SWS,4)}, s92 offen {SC}", "s_mov_b32 exec_lo, -1", "s_mov_b32 exec_hi, -1"]]
    vIM = 4
    f += [f"s_lshl_b32 s34, {s(sMH)}, 6", f"v_add_u32 v3, s34, {v(vM)}", f"s_lshl_b32 s34, {s(sNG)}, 2"]
    f = F[17]
    sPD = 58
    for jj in range(4):
        f += [[f"s_add_u32 s35, {s(sNG)}, {4*jj}", "s_cmp_ge_u32 s35, 5", f"s_cselect_b32 {s(sPD+jj)}, {s(sBR)}, 0",
               f"s_cmp_eq_u32 {s(sPD+jj)}, 1", "s_cselect_b32 s36, 0x1800, 0x1400" if False else "s_cselect_b32 s36, 6, 5",
               "s_cselect_b32 s37, 48, 40", f"s_cselect_b32 s39, {IMG - 4096}, {IMG}" if False else "s_cselect_b32 s39, 44, 48",
               "s_lshl_b32 s36, s36, 10", "s_lshl_b32 s39, s39, 10"],
              f"s_add_u32 s35, s34, {16*jj}", f"v_add_u32 v8, s35, {v(vG)}", "v_mul_u32_u24 v9, 52, v8", "v_lshrrev_b32 v9, 8, v9",
              "v_mul_u32_u24 v1, 5, v9", "v_sub_u32 v1, v8, v1", "v_lshlrev_b32 v1, 3, v1", "v_mad_u32_u24 v1, v3, s37, v1",
              "v_mad_u32_u24 v1, v9, s36, v1", f"v_add_u32 {v(vIM+jj)}, s39, v1"]
    f = F[18]
    f += ["v_lshrrev_b32 v8, 7, v0", "v_and_b32 v9, 127, v0", "v_mul_u32_u24 v9, 48, v9", "s_movk_i32 s36, 6144", "v_mad_u32_u24 v8, v8, s36, v9",
          f"v_mov_b32 {v(vT0)}, 0x3f80", f"v_mov_b32 {v(vT1)}, 0", f"v_mov_b32 {v(vW0)}, 0", f"v_mov_b32 {v(vW1)}, 0",
          f"v_add_u32 v8, {IMG + 20480}, v8",
          [f"s_cmp_eq_u32 {s(sBR)}, 0", ('br', "s_cbranch_scc1 K1_nopad"),
           ('raw', f"ds_write_b64 v8, {v(vW0,2)} offset:40"), ('raw', f"ds_write_b64 v8, {v(vT0,2)} offset:{40+24576}"), ('label', 'K1_nopad')],
          f"s_mov_b32 s38, {f32(EPS)}", f"s_mov_b32 s64, {f32(QSCALE)}", f"s_mov_b32 s65, {f32(QSCALE)}",
          f"s_mul_i32 s93, {s(sWV)}, 640", f"v_add_u32 v30, s93, {v(vL16)}", f"v_add_u32 v31, {IMG}, v30",
          f"s_mul_i32 s93, {s(sHG)}, {4*81920}", f"s_mul_i32 s35, {s(sRT)}, 5120", "s_add_u32 s93, s93, s35",
          f"s_mul_i32 s35, {s(sBR)}, {3*0x300000}", "s_add_u32 s93, s93, s35"]
    def block(ks, L, steps, fill, order=(0,1,2,3), after=None):
        n = 0
        fill = list(fill)
        per = 2
        for jj in order:
            for i in range(4):
                mm(ks, jj, i)
                n += 1
                did = 0
                if L: p(L.pop(0)); did += 1
                if n % 2 == 0 and n >= 4 and steps: emit(steps.pop(0)); did += 1
                k = per - did if (L or steps) else per + 1
                left = 16 - n
                while fill and (k > 0 or len(fill) > left * (per + 1)):
                    t = fill.pop(0)
                    if t is None: break
                    emit(t); k -= 1
            if after: after(jj)
        for t in fill:
            if t is not None: emit(t)
        assert not L and not steps
    T = 160
    def epi(jj):
        A = ACC + jj*16
        if jj in (1, 2):
            p(f"s_cmp_eq_u32 {s(sFLG+jj)}, 0")
            p(f"s_cbranch_scc1 K1_nophi{jj}{sfx[0]}")
            for k in range(8): p(f"v_pk_mul_f32 {v(T+2*k,2)}, {v(A+2*k,2)}, s[62:63]")
            for k in range(16): p(f"v_exp_f32 {v(T+k)}, {v(T+k)} clamp")
            for k in range(16): p(f"v_max_f32 {v(A+k)}, s38, {v(A+k)}")
            for k in range(8): p(f"v_pk_add_f32 {v(A+2*k,2)}, {v(A+2*k,2)}, {v(T+2*k,2)}")
            p.label(f"K1_nophi{jj}{sfx[0]}")
        if jj in (0, 1) or ACON:
            p(f"s_cmp_eq_u32 {s(sSCL+jj)}, 0")
            p(f"s_cbranch_scc1 K1_noscl{jj}{sfx[0]}")
            for k in range(8): p(f"v_pk_mul_f32 {v(A+2*k,2)}, {v(A+2*k,2)}, s[64:65]")
            p.label(f"K1_noscl{jj}{sfx[0]}")
        P = 96 + jj*8
        for k in range(8): p(f"v_cvt_pk_bf16_f32 {v(P+k)}, {v(A+2*k)}, {v(A+2*k+1)}")
        if jj == 0:
            for i in range(4): p(f"ds_write_b64 {v(vIM+jj)}, {v(P+2*i,2)} offset:{i*640}")
        else:
            p(f"s_cmp_eq_u32 {s(sPD+jj)}, 0")
            p(f"s_cbranch_scc1 K1_dn{jj}{sfx[0]}")
            for i in range(4): p(f"ds_write_b64 {v(vIM+jj)}, {v(P+2*i,2)} offset:{i*768}")
            p(f"s_branch K1_wr{jj}{sfx[0]}")
            p.label(f"K1_dn{jj}{sfx[0]}")
            for i in range(4): p.raw(f"    ds_write_b64 {v(vIM+jj)}, {v(P+2*i,2)} offset:{i*640}")
            p.label(f"K1_wr{jj}{sfx[0]}")
    if os.environ.get('EARLY', '0') == '1':
        for kf in (1, 2, 3, 6):
            for t in F[kf]:
                if t is not None: emit(t)
            F[kf] = []
        for a_, b_ in ((12, 6), (13, 7), (14, 8), (15, 9), (16, 10)):
            if a_ == 16:
                k_ = [i for i, t in enumerate(F[16]) if isinstance(t, str) and t.startswith(f"s_lshl_b32 s34, {s(sMH)}")][0]
                F[b_] = F[b_] + F[16][:k_]; F[16] = F[16][k_:]
            else:
                F[b_] = F[b_] + F[a_]; F[a_] = []
    UP3 = os.environ.get('UP3', '0') == '1'
    if UP3: issue(2)
    p.wait_vm_tag(tags[0])
    p("s_barrier")
    stamp(p, 3)
    stampc(p, 30)
    if UP1: issue(1)
    for t in readlist(0, 0): p(t)
    LAST = (1, 2, 0, 3)
    STAG = os.environ.get('STAG', '0') == '1'
    def loop(late):
        sfx[0] = 'L' if late else 'E'
        if not late and not UP3: issue(2)
        for st in range(10):
            block(0, readlist(st, 1, LAST if st == 9 else (0,1,2,3)), issue_steps(st+2) if (late and st+2 <= 9) else [], F[2*st])
            if st < 9:
                p.wait_vm_tag(tags[st+1], " lgkmcnt(0)")
                p("s_barrier")
                if STAMP > 1: stamp(p, 9 + st)
                block(1, readlist(st+1, 0), issue_steps(st+3) if (not late and st+3 <= 9) else [], F[2*st+1])
            else:
                def after(jj):
                    k = LAST.index(jj)
                    if k >= 1: epi(LAST[k-1])
                block(1, [], [], F[19], LAST, after)
                stamp(p, 4)
                stampc(p, 31)
                epi(LAST[3])
    if STAG:
        p(f"s_cmp_lt_u32 {s(sWV)}, 4")
        p("s_cbranch_scc0 K1_loopL")
        save = (list(p.lg), list(p.vm), p.vmcount, dict(tags))
        loop(False)
        p("s_branch K1_loopdone")
        p.label("K1_loopL")
        p.lg, p.vm, p.vmcount = list(save[0]), list(save[1]), save[2]
        tags.clear(); tags.update(save[3])
        loop(True)
        p.label("K1_loopdone")
    else:
        loop(False)
    p("s_waitcnt lgkmcnt(0)")
    p("s_barrier")
    stamp(p, 5)
    DEFER = fused and os.environ.get('DEFER', '0') == '1'
    p("s_mov_b32 exec_hi, 0xff")
    D = 32
    DR = lambda b: (192 + 4*b) if (DEFER and b < 4) else D + 4*b
    def rdblk(b):
        p(f"ds_read_b128 {v(DR(b),4)}, v31 offset:{b*5120}")
    def stblkA(b):
        p(f"s_add_u32 s36, s91, {b}")
        p("s_lshr_b32 s37, s36, 5")
        p("s_mul_i32 s37, s37, 0x80000")
        p("s_mul_i32 s36, s36, 81920")
        p("s_add_u32 s35, s36, s37")
        p("s_add_u32 s35, s35, s90")
        p(f"buffer_store_dwordx4 {v(DR(b),4)}, v30, {s(SWS,4)}, s35 offen {SC}")
    def stblk(b):
        off = (b//4)*0x300000 + (b%4)*81920
        p(f"s_add_u32 s35, s93, {off}")
        p(f"buffer_store_dwordx4 {v(DR(b),4)}, v30, {s(SWS,4)}, s35 offen {SC}")
    for b in range(4): rdblk(b)
    p(f"s_cmp_eq_u32 {s(sBR)}, 0")
    p("s_cbranch_scc0 K1_bpath")
    p.begin_cond()
    for b in range(4,12): rdblk(b)
    if ACON:
        p(f"s_mul_i32 s91, {s(sHG)}, 12")
        p(f"s_mul_i32 s90, {s(sRT)}, 5120")
    for b in range(12): (stblkA if ACON else stblk)(b)
    if fused:
        p("s_mov_b32 exec_hi, -1")
        p("s_mov_b32 s93, 0x40000000")
        p("s_mov_b32 s92, 0x40000000")
        p("s_branch P1_end")
    else:
        stamp(p, 6)
        if STAMP: p("s_waitcnt vmcnt(0)")
        stamp(p, 7)
        stamp_flush(p, 0, SWS, 8, sWV)
        p("s_endpgm")
    p.end_cond()
    p.label("K1_bpath")
    p("s_waitcnt lgkmcnt(0)")
    if not DEFER:
        for b in range(4): stblk(b)
    p("s_mov_b32 exec_hi, -1")
    p("s_mov_b32 s92, 0x40000000")
    p(f"s_cmp_gt_u32 {s(sWV)}, 3")
    p("s_cbranch_scc1 P1_end" if fused else "s_cbranch_scc1 K1_end")
    p("v_lshrrev_b32 v7, 5, v2")
    p("v_bfe_u32 v6, v2, 2, 2")
    p("v_lshl_add_u32 v5, v7, 3, v6")
    p("v_mul_u32_u24 v5, 48, v5")
    p("v_bfe_u32 v6, v2, 4, 1")
    p("v_lshl_add_u32 v5, v6, 5, v5")
    p("v_and_b32 v6, 3, v2")
    p("v_lshl_add_u32 v5, v6, 3, v5")
    p(f"s_mul_i32 s35, {s(sWV)}, 6144")
    p(f"s_add_u32 s35, s35, {IMG + 20480}")
    p("v_add_u32 v5, s35, v5")
    KV = 176 if DEFER else 96
    Fr = 112
    for t in range(8):
        for h in range(2): p(f"ds_read_b64_tr_b16 {v(Fr+8*t+2*h,2)}, v5 offset:{t*768+h*192}")
        for h in range(2): p(f"ds_read_b64_tr_b16 {v(Fr+8*t+4+2*h,2)}, v5 offset:{24576+t*768+h*192}")
        if t >= 2:
            tt = t-2
            p(f"v_mfma_f32_32x32x16_bf16 {v(KV,16)}, {v(Fr+8*tt,4)}, {v(Fr+8*tt+4,4)}, {'0' if tt==0 else v(KV,16)}")
    for tt in (6,7):
        p(f"v_mfma_f32_32x32x16_bf16 {v(KV,16)}, {v(Fr+8*tt,4)}, {v(Fr+8*tt+4,4)}, {v(KV,16)}")
    p(f"s_lshl_b32 s34, {s(sHG)}, 2")
    p(f"s_add_u32 s34, s34, {s(sWV)}")
    p("s_lshl_b32 s34, s34, 4")
    p(f"s_add_u32 s34, s34, {s(sRT)}")
    p(f"s_mul_i32 s34, s34, {KVP_STRIDE}")
    p(f"s_add_u32 s34, s34, {WS_KVP}")
    if DEFER:
        p("s_mov_b32 s92, s34")
    else:
        p("v_and_b32 v3, 31, v2")
        p("v_lshlrev_b32 v3, 4, v3")
        p("v_mul_u32_u24 v7, 384, v7")
        p("v_add_u32 v3, v3, v7")
        p("s_mov_b32 exec_lo, 0xffffff")
        p("s_mov_b32 exec_hi, 0xffffff")
        for q in range(3):
            p(f"buffer_store_dwordx4 {v(KV+4*q,4)}, v3, {s(SWS,4)}, s34 offen offset:{q*768} {SC}")
    if fused:
        p("s_mov_b32 exec_lo, -1")
        p("s_mov_b32 exec_hi, -1")
        p.label("P1_end")
        p.forget()
        stamp(p, 6)
        return
    stamp(p, 6)
    if STAMP: p("s_waitcnt vmcnt(0)")
    stamp(p, 7)
    stamp_flush(p, 0, SWS, 8, sWV)
    p.label("K1_end")
    p("s_endpgm")
```

```python
from asmlib import *
from gen import *
import os

KVP_STRIDE = 2304

def gen_k1():
    p = Prog()
    header(p, "k1_kernel")
    p.stv = 206
    emit_p1(p, False)
    p.pad()
    return p.text(), dict(name="k1_kernel", vgpr=207, sgpr=100, grid=256, block=512, lds=163840)

def emit_p1(p, fused):
    SX, SW, SWS, SWO, SGW = 12, 16, 20, 68, 72
    sRT, sHG, sBR, sKC, sOX, sOW, sWV = 24, 25, 26, 28, 29, 30, 33
    sMH, sNG = 41, 42
    sINIT, sSCL, sFLG = 44, 48, 52
    sM0X, sM0W = 56, 57
    IMG = 49152
    p("s_cmp_ge_u32 s2, 256")
    p("s_cbranch_scc1 K1_end")
    stamp(p, 0)
    p("s_load_dwordx4 s[4:7], s[0:1], 0")
    p("s_load_dwordx2 s[8:9], s[0:1], 32")
    p("s_load_dwordx2 s[10:11], s[0:1], 72")
    p("s_load_dwordx2 s[76:77], s[0:1], 16")
    p("s_load_dwordx4 s[80:83], s[0:1], 40")
    if fused: p("s_load_dwordx2 s[96:97], s[0:1], 64")
    p("v_lshrrev_b32 v1, 6, v0")
    p("v_and_b32 v2, 63, v0")
    p(f"v_readfirstlane_b32 {s(sWV)}, v1")
    p("s_and_b32 s34, s2, 7")
    p("s_lshr_b32 s35, s2, 3")
    p("s_lshr_b32 s36, s34, 2")
    p("s_and_b32 s37, s34, 3")
    if os.environ.get('AFIRST', '0') == '1':
        p("s_bfe_u32 s58, s35, 0x30001")
        p("s_lshr_b32 s59, s35, 4")
        p("s_lshl_b32 s59, s59, 1")
        p("s_and_b32 s38, s35, 1")
        p("s_or_b32 s59, s59, s38")
    else:
        p("s_lshr_b32 s58, s35, 2")
        p("s_and_b32 s59, s35, 3")
    p(f"s_lshl_b32 {s(sRT)}, s36, 3")
    p(f"s_add_u32 {s(sRT)}, {s(sRT)}, s58")
    if os.environ.get('XMAP', '0') == '1':
        p(f"s_lshr_b32 {s(sBR)}, s37, 1")
        p("s_and_b32 s40, s37, 1")
        p("s_lshl_b32 s40, s40, 2")
        p(f"s_add_u32 {s(sHG)}, s59, s40")
    else:
        p(f"s_lshr_b32 {s(sBR)}, s59, 1")
        p(f"s_and_b32 {s(sHG)}, s59, 1")
        p("s_lshl_b32 s40, s37, 1")
        p(f"s_add_u32 {s(sHG)}, {s(sHG)}, s40")
    p("s_lshl_b32 s43, s37, 2")
    p("s_add_u32 s43, s43, s59")
    vXO, vWO = 4, 6
    p("v_lshrrev_b32 v3, 3, v2")
    p("v_and_b32 v10, 7, v2")
    p("v_xor_b32 v10, v10, v3")
    p("v_lshlrev_b32 v10, 4, v10")
    p("s_movk_i32 s40, 1280")
    p(f"v_mad_u32_u24 {v(vXO)}, v3, s40, v10")
    p(f"s_lshl_b32 s34, {s(sRT)}, 7")
    p(f"s_lshl_b32 s35, {s(sWV)}, 4")
    p("s_add_u32 s34, s34, s35")
    p("s_mul_i32 s34, s34, 1280")
    p(f"v_add_u32 {v(vXO)}, s34, {v(vXO)}")
    p(f"v_add_u32 {v(vXO+1)}, 9216, {v(vXO)}")
    p("v_lshrrev_b32 v3, 5, v2")
    p("v_bfe_u32 v10, v2, 1, 4")
    p("v_and_b32 v11, 1, v2")
    p("v_lshlrev_b32 v11, 4, v11")
    p("s_movk_i32 s35, 3840")
    p("v_mad_u32_u24 v11, v3, s35, v11")
    p(f"s_and_b32 s36, {s(sWV)}, 1")
    p("s_lshl_b32 s36, s36, 2")
    p(f"s_mul_i32 s37, {s(sWV)}, {8*3840}")
    ACON = os.environ.get('ACON', '1') == '1'
    if ACON:
        p(f"s_cmp_eq_u32 {s(sBR)}, 0")
        p("s_movk_i32 s39, 160")
        p("s_cselect_b32 s38, 480, s39")
        p("s_cselect_b32 s39, s39, s40")
        p(f"s_mul_i32 s38, {s(sHG)}, s38")
    else:
        p(f"s_mul_i32 s38, {s(sHG)}, 160")
        p("s_mov_b32 s39, 1280")
    p("s_add_u32 s37, s37, s38")
    p("v_mov_b32 v16, 0x40000000")
    for i in range(2):
        p(f"v_or_b32 v12, s36, v3")
        if i: p("v_or_b32 v12, 2, v12")
        p("v_xor_b32 v12, v12, v10")
        p("v_mul_u32_u24 v13, 52, v12")
        p("v_lshrrev_b32 v13, 8, v13")
        p("v_mul_u32_u24 v14, 5, v13")
        p("v_sub_u32 v14, v12, v14")
        p("v_lshl_add_u32 v14, v14, 5, v11")
        p("v_mad_u32_u24 v14, v13, s39, v14")
        p(f"v_add_u32 v14, s37, v14")
        if i: p(f"v_add_u32 v14, {2*3840-1024}, v14")
        p("v_cmp_eq_u32 vcc, 15, v12")
        p(f"v_cndmask_b32 {v(vWO+i)}, v14, v16, vcc")
        p(f"v_add_u32 {v(vWO+2+i)}, 13312, {v(vWO+i)}")
    p(f"s_lshl_b32 {s(sM0X)}, {s(sWV)}, 11")
    p(f"s_lshl_b32 {s(sM0W)}, {s(sWV)}, 12")
    p(f"s_add_u32 {s(sM0W)}, {s(sM0W)}, 16384")
    ROTG = int(os.environ.get('ROTG', '3'))
    if ROTG == 1:
        p(f"s_mov_b32 {s(sKC)}, 0")
    elif ROTG == 10:
        p(f"s_mul_i32 {s(sKC)}, s59, 3")
        p(f"s_add_u32 {s(sKC)}, {s(sKC)}, s58")
        p(f"s_sub_u32 s34, {s(sKC)}, 10")
        p(f"s_cmp_ge_u32 {s(sKC)}, 10")
        p(f"s_cselect_b32 {s(sKC)}, s34, {s(sKC)}")
    else:
        mg = {3: 86, 4: 64, 5: 52, 2: 128}[ROTG]
        p("s_add_u32 s34, s58, s59")
        p(f"s_mul_i32 s35, s34, {mg}")
        p("s_lshr_b32 s35, s35, 8")
        p(f"s_mul_i32 s35, s35, {ROTG}")
        p("s_sub_u32 s34, s34, s35")
        p("s_mul_i32 s34, s34, 10")
        p(f"s_mul_i32 s34, s34, {mg}")
        p(f"s_lshr_b32 {s(sKC)}, s34, 8")
    p(f"s_lshl_b32 {s(sOX)}, {s(sKC)}, 7")
    p(f"s_mul_i32 {s(sOW)}, {s(sKC)}, 245760")
    p(f"s_mov_b32 m0, {s(sM0X)}")
    p("s_waitcnt lgkmcnt(0)")
    srd(p, SX, 4, 2048*1280)
    p(f"s_cmp_eq_u32 {s(sBR)}, 0")
    p("s_cselect_b32 s6, s6, s8")
    p("s_cselect_b32 s7, s7, s9")
    srd(p, SW, 6, 640*3840)
    tags = {}
    sfx = ['']
    def issue_steps(st):
        slot = (st % 3) * 49152
        g = []
        first = [] if st == 0 else [f"s_add_u32 m0, {s(sM0X)}, {slot}", "s_nop 0"]
        g.append(first + [f"buffer_load_dwordx4 {v(vXO)}, {s(SX,4)}, {s(sOX)} offen lds"])
        g.append([f"buffer_load_dwordx4 {v(vXO+1)}, {s(SX,4)}, {s(sOX)} offen offset:1024 lds"])
        g.append([f"s_add_u32 m0, {s(sM0W)}, {slot}", f"s_add_u32 {s(sOX)}, {s(sOX)}, 128",
                  f"buffer_load_dwordx4 {v(vWO)}, {s(SW,4)}, {s(sOW)} offen lds"])
        for i in range(1, 4):
            g.append([f"buffer_load_dwordx4 {v(vWO+i)}, {s(SW,4)}, {s(sOW)} offen offset:{i*1024} lds"])
        g[-1] += [('tag', st)]
        if st < 9:
            g[-1] += [f"s_add_u32 {s(sOW)}, {s(sOW)}, 245760", f"s_add_u32 {s(sKC)}, {s(sKC)}, 1", f"s_cmp_eq_u32 {s(sKC)}, 10",
                      f"s_cselect_b32 {s(sOX)}, 0, {s(sOX)}", f"s_cselect_b32 {s(sOW)}, 0, {s(sOW)}"]
        return g
    def emit(t):
        if isinstance(t, tuple) and t[0] == 'raw': p.raw("    " + t[1])
        elif isinstance(t, tuple) and t[0] == 'label': p.label(t[1] + sfx[0])
        elif isinstance(t, tuple) and t[0] == 'br': p(t[1] + sfx[0])
        elif isinstance(t, tuple): tags[t[1]] = p.vmtag()
        elif isinstance(t, list):
            for x in t: emit(x)
        else: p(t)
    def issue(st):
        for g in issue_steps(st): emit(g)
    stamp(p, 1)
    issue(0)
    srd(p, SWS, 10, WS_SIZE)
    p("s_getpc_b64 s[60:61]")
    p.label("K1_pc")
    p(f"s_lshl_b32 s34, {s(sWV)}, 13")
    p("v_lshlrev_b32 v26, 7, v2")
    p("v_add_u32 v26, s34, v26")
    p("v_min_u32 v26, CODE_END-K1_pc-4, v26")
    p("global_load_dword v31, v26, s[60:61]")
    if fused:
        p(f"s_or_b32 s34, s2, {s(sWV)}")
        p("s_cmp_lg_u32 s34, 0")
        p("s_cbranch_scc1 P1_notag")
        p("s_memrealtime s[94:95]")
        p("v_mov_b32 v30, 0")
        p("s_waitcnt lgkmcnt(0)")
        p("s_or_b32 s94, s94, 1")
        p("v_mov_b32 v1, s94")
        p("s_mov_b32 exec_lo, 1")
        p("s_mov_b32 exec_hi, 0")
        p.raw("    global_store_dword v30, v1, s[96:97] sc1")
        p("s_mov_b32 exec_lo, -1")
        p("s_mov_b32 exec_hi, -1")
        p.label("P1_notag")
    if os.environ.get('PRIO'):
        p(f"s_cmp_ge_u32 {s(sWV)}, 4")
        p("s_cbranch_scc0 K1_noprio")
        p(f"s_setprio {os.environ['PRIO']}")
        p.label("K1_noprio")
    stamp(p, 2)
    p(f"s_lshr_b32 {s(sMH)}, {s(sWV)}, 2")
    p(f"s_and_b32 {s(sNG)}, {s(sWV)}, 3")
    vXA = [10, 12, 14]; vWA = [16, 20, 24]
    vG, vM = 28, 29
    p(f"v_lshrrev_b32 {v(vG)}, 4, v2")
    p(f"v_and_b32 {v(vM)}, 15, v2")
    p("v_and_b32 v3, 7, v2")
    p(f"v_xor_b32 v3, v3, {v(vG)}")
    p("v_lshlrev_b32 v3, 4, v3")
    p(f"v_lshl_add_u32 v3, {v(vM)}, 7, v3")
    p(f"s_lshl_b32 s34, {s(sMH)}, 13")
    p(f"v_add_u32 {v(vXA[0])}, s34, v3")
    p(f"v_xor_b32 {v(vXA[0]+1)}, 64, {v(vXA[0])}")
    p("v_bfe_u32 v3, v2, 2, 2")
    p(f"v_and_b32 v1, 1, {v(vG)}")
    p("v_lshl_or_b32 v1, v1, 2, v3")
    p(f"v_lshl_add_u32 v30, {v(vG)}, 3, v3")
    p("v_lshlrev_b32 v30, 9, v30")
    p("v_and_b32 v3, 3, v2")
    p("v_lshl_add_u32 v30, v3, 3, v30")
    p("v_add_u32 v30, 16384, v30")
    for jj in range(4):
        p(f"s_add_u32 s35, {s(sNG)}, {4*jj}")
        p(f"v_xor_b32 v3, s35, v1")
        p(f"v_lshl_add_u32 {v(vWA[0]+jj)}, v3, 5, v30")
        p("s_sub_u32 s36, s35, 5")
        p("s_cmp_lt_u32 s36, 5")
        p(f"s_cselect_b32 {s(sFLG+jj)}, {s(sBR)}, 0")
        p(f"s_mul_i32 {s(sINIT+jj)}, {s(sFLG+jj)}, {f32(EPS)}")
        if ACON:
            p(f"s_mul_i32 s36, {s(sHG)}, 15")
            p("s_add_u32 s36, s36, s35")
            p("s_cmp_lt_u32 s36, 40")
        else:
            p("s_cmp_lt_u32 s35, 5")
        p("s_cselect_b32 s36, 1, 0")
        p(f"s_andn2_b32 {s(sSCL+jj)}, s36, {s(sBR)}")
    for sl in (1, 2):
        for k in range(2): p(f"v_add_u32 {v(vXA[sl]+k)}, {sl*49152}, {v(vXA[0]+k)}")
        for k in range(4): p(f"v_add_u32 {v(vWA[sl]+k)}, {sl*49152}, {v(vWA[0]+k)}")
    ACC = 32
    FX = [96, 128]; FW = [112, 144]
    for jj in range(4):
        for k in range(16):
            p(f"v_mov_b32 {v(ACC+jj*16+k)}, {s(sINIT+jj) if jj in (1,2) else 0}")
    UP1 = os.environ.get('UP1', '0') == '1'
    if not UP1: issue(1)
    def rdx(st, ks, i): return f"ds_read_b128 {v(FX[ks]+4*i,4)}, {v(vXA[st%3]+ks)} offset:{i*2048}"
    def rdw(st, ks, jj, h): return f"ds_read_b64_tr_b16 {v(FW[ks]+4*jj+2*h,2)}, {v(vWA[st%3]+jj)} offset:{ks*16384+h*2048}"
    def mm(ks, jj, i):
        A = ACC + (jj*4+i)*4
        p(f"v_mfma_f32_16x16x32_bf16 {v(A,4)}, {v(FW[ks]+4*jj,4)}, {v(FX[ks]+4*i,4)}, {v(A,4)}")
    def readlist(st, ks, order=(0,1,2,3)):
        L = [rdw(st,ks,order[0],0), rdw(st,ks,order[0],1)]
        for i in range(4): L.append(rdx(st,ks,i))
        for jj in order[1:]:
            L.append(rdw(st,ks,jj,0)); L.append(rdw(st,ks,jj,1))
        return L
    GX, GWt, A0, WOR, WOH, vW0, vW1, vT0, vT1, vL16 = 160, 166, 172, 192, 196, 200, 201, 202, 203, 204
    sGR, sJOB, sWFo = 84, 85, 86
    F = {k: [] for k in range(20)}
    f = F[1]
    f += [f"v_lshlrev_b32 {v(vL16)}, 4, v2",
          f"s_lshl_b32 {s(sJOB)}, s2, 3", f"s_add_u32 {s(sJOB)}, {s(sJOB)}, {s(sWV)}",
          [f"s_cmp_ge_u32 {s(sJOB)}, 800", "s_cselect_b32 s76, s80, s76", "s_cselect_b32 s77, s81, s77",
           "s_cselect_b32 s87, 800, 0", "s_cselect_b32 s88, 20, 0"],
          f"s_mov_b32 {s(SWO)}, s76", f"s_and_b32 {s(SWO+1)}, s77, 0xffff", f"s_mov_b32 {s(SWO+2)}, {640*1280}", f"s_mov_b32 {s(SWO+3)}, 0x20000",
          f"s_mov_b32 {s(SGW)}, s82", f"s_and_b32 {s(SGW+1)}, s83, 0xffff", f"s_mov_b32 {s(SGW+2)}, 1280", f"s_mov_b32 {s(SGW+3)}, 0x20000",
          f"s_sub_u32 s87, {s(sJOB)}, s87", "s_mul_i32 s89, s87, 1639", "s_lshr_b32 s89, s89, 16",
          "s_mul_i32 s90, s89, 40", "s_sub_u32 s90, s87, s90", "s_lshl_b32 s91, s89, 2"]
    WLIN = os.environ.get('WLIN', '1') == '1'
    LDSX, GWL = 147456, 155648
    if WLIN:
        f = F[2]
        f += [f"s_lshr_b32 s34, {s(sWV)}, 1", "s_add_u32 s91, s91, s34",
              "s_lshr_b32 s34, s91, 1", "s_mul_i32 s34, s34, 20", "s_and_b32 s35, s91, 1", "s_lshl_b32 s35, s35, 2", "s_add_u32 s34, s34, s35",
              "s_mul_i32 s35, s91, 40", f"s_sub_u32 s35, s35, {40*64-16}",
              ["s_cmp_lt_u32 s91, 64", "s_cselect_b32 s34, s34, s35", "s_cselect_b32 s35, 8, 20"],
              f"s_and_b32 s36, {s(sWV)}, 1", "s_mul_i32 s35, s35, s36", "s_add_u32 s34, s34, s35", "s_mul_i32 s34, s34, 1280",
              f"s_sub_u32 s35, s90, {s(sWV)}", "s_lshl_b32 s35, s35, 5", "s_add_u32 s91, s34, s35",
              f"v_lshlrev_b32 {v(vT1)}, 4, {v(vM)}", f"v_mad_u32_u24 {v(vW0)}, {v(vG)}, s40, {v(vT1)}",
              f"v_bfe_u32 {v(vT1)}, v2, 2, 2", f"v_lshl_add_u32 {v(vT1)}, {v(vG)}, 3, {v(vT1)}", f"v_lshlrev_b32 {v(vT1)}, 8, {v(vT1)}",
              f"v_and_b32 {v(vW1)}, 3, v2", f"v_lshl_add_u32 {v(vW1)}, {v(vW1)}, 3, {v(vT1)}",
              f"s_lshl_b32 s34, {s(sWV)}, 5", f"s_add_u32 s34, s34, {LDSX}", f"v_add_u32 {v(vW1)}, s34, {v(vW1)}"]
        f = F[3]
        f += ["s_mul_i32 s90, s90, 40", "s_add_u32 s90, s90, s88", "s_add_u32 s90, s90, s89",
              "s_lshl_b32 s90, s90, 10", f"s_add_u32 s90, s90, {WS_WF}",
              [f"s_cmp_ge_u32 {s(sJOB)}, 1600", "s_cselect_b32 s91, 0x40000000, s91", f"s_cselect_b32 {s(sWFo)}, 0x40000000, s90"],
              f"s_lshl_b32 {s(sGR)}, {s(sRT)}, 4", f"s_add_u32 {s(sGR)}, {s(sGR)}, s43", f"s_lshl_b32 {s(sGR)}, {s(sGR)}, 3",
              f"s_add_u32 {s(sGR)}, {s(sGR)}, {s(sWV)}", f"s_mul_i32 s92, {s(sGR)}, 1280", f"v_lshlrev_b32 {v(vT0)}, 2, v2",
              f"s_lshl_b32 s87, {s(sWV)}, 10"]
        f = F[6]
        f += [[f"s_add_u32 m0, s87, {LDSX}", "s_nop 0", f"buffer_load_dwordx4 {v(vW0)}, {s(SWO,4)}, s91 offen lds"],
              [f"s_add_u32 m0, s87, {GWL}", "s_nop 0", f"buffer_load_dwordx4 {v(vL16)}, {s(SGW,4)}, s87 offen lds"],
              f"buffer_load_dwordx4 {v(GX,4)}, {v(vL16)}, {s(SX,4)}, s92 offen",
              f"buffer_load_dword {v(GX+4)}, {v(vT0)}, {s(SX,4)}, s92 offen offset:1024"]
        if fused:
            F[8] += ["v_mov_b32 v208, 0", "global_load_dword v208, v208, s[96:97] sc1"]
        f = F[11]
        f += [f"ds_read_b64_tr_b16 {v(WOR,2)}, {v(vW1)}", f"ds_read_b64_tr_b16 {v(WOR+2,2)}, {v(vW1)} offset:1024",
              f"v_add_u32 {v(vW0)}, {GWL}, {v(vL16)}", f"v_add_u32 {v(vT1)}, {GWL}, {v(vT0)}",
              f"ds_read_b128 {v(GWt,4)}, {v(vW0)}", f"ds_read_b32 {v(GWt+4)}, {v(vT1)} offset:1024"]
        f = F[12]
        f.append(f"buffer_store_dwordx4 {v(WOR,4)}, {v(vL16)}, {s(SWS,4)}, {s(sWFo)} offen {SC}")
        for k in range(5):
            f += [f"v_lshlrev_b32 {v(A0+4*k)}, 16, {v(GX+k)}", f"v_and_b32 {v(A0+4*k+1)}, 0xffff0000, {v(GX+k)}",
                  f"v_lshlrev_b32 {v(A0+4*k+2)}, 16, {v(GWt+k)}", f"v_and_b32 {v(A0+4*k+3)}, 0xffff0000, {v(GWt+k)}"]
    else:
        f = F[2]
        f += [f"v_add_u32 {v(vT0)}, s91, {v(vG)}",
              f"v_lshrrev_b32 {v(vT1)}, 1, {v(vT0)}", f"v_mul_u32_u24 {v(vT1)}, 20, {v(vT1)}",
              f"v_and_b32 {v(vW0)}, 1, {v(vT0)}", f"v_lshl_add_u32 {v(vT1)}, {v(vW0)}, 2, {v(vT1)}",
              f"v_mul_u32_u24 {v(vW1)}, 40, {v(vT0)}", f"v_subrev_u32 {v(vW1)}, {40*64-16}, {v(vW1)}",
              f"v_cmp_gt_u32 vcc, 64, {v(vT0)}", f"v_mov_b32 {v(vT0)}, 20", None,
              f"v_cndmask_b32 {v(vW1)}, {v(vW1)}, {v(vT1)}, vcc", f"v_cndmask_b32_e64 {v(vT0)}, {v(vT0)}, 8, vcc",
              f"v_lshlrev_b32 {v(vT1)}, 1, {v(vM)}",
              f"v_mad_u32_u24 {v(vW0)}, {v(vW1)}, s40, {v(vT1)}",
              f"v_mad_u32_u24 {v(vW1)}, {v(vT0)}, s40, {v(vW0)}"]
        f = F[3]
        f += ["s_lshl_b32 s91, s90, 5", "s_mul_i32 s90, s90, 40", "s_add_u32 s90, s90, s88", "s_add_u32 s90, s90, s89",
              "s_lshl_b32 s90, s90, 10", f"s_add_u32 s90, s90, {WS_WF}",
              [f"s_cmp_ge_u32 {s(sJOB)}, 1600", "s_cselect_b32 s91, 0x40000000, s91", f"s_cselect_b32 {s(sWFo)}, 0x40000000, s90"],
              f"s_lshl_b32 {s(sGR)}, {s(sRT)}, 4", f"s_add_u32 {s(sGR)}, {s(sGR)}, s43", f"s_lshl_b32 {s(sGR)}, {s(sGR)}, 3",
              f"s_add_u32 {s(sGR)}, {s(sGR)}, {s(sWV)}", f"s_mul_i32 s92, {s(sGR)}, 1280", f"v_lshlrev_b32 {v(vT0)}, 2, v2"]
        f = F[6]
        for k in range(2):
            for q in range(2):
                f.append(f"buffer_load_ushort {v(WOR+2*k+q)}, {v(vW0+k)}, {s(SWO,4)}, s91 offen offset:{2560*q}")
                f.append(f"buffer_load_ushort {v(WOH+2*k+q)}, {v(vW0+k)}, {s(SWO,4)}, s91 offen offset:{2560*q+1280}")
        f += [f"buffer_load_dwordx4 {v(GX,4)}, {v(vL16)}, {s(SX,4)}, s92 offen",
              f"buffer_load_dword {v(GX+4)}, {v(vT0)}, {s(SX,4)}, s92 offen offset:1024",
              f"buffer_load_dwordx4 {v(GWt,4)}, {v(vL16)}, {s(SGW,4)}, 0 offen",
              f"buffer_load_dword {v(GWt+4)}, {v(vT0)}, {s(SGW,4)}, 0 offen offset:1024"]
        if fused:
            F[8] += ["v_mov_b32 v208, 0", "global_load_dword v208, v208, s[96:97] sc1"]
        f = F[12]
        for k in range(4): f.append(f"v_lshl_or_b32 {v(WOR+k)}, {v(WOH+k)}, 16, {v(WOR+k)}")
        f.append(f"buffer_store_dwordx4 {v(WOR,4)}, {v(vL16)}, {s(SWS,4)}, {s(sWFo)} offen {SC}")
        for k in range(5):
            f += [f"v_lshlrev_b32 {v(A0+4*k)}, 16, {v(GX+k)}", f"v_and_b32 {v(A0+4*k+1)}, 0xffff0000, {v(GX+k)}",
                  f"v_lshlrev_b32 {v(A0+4*k+2)}, 16, {v(GWt+k)}", f"v_and_b32 {v(A0+4*k+3)}, 0xffff0000, {v(GWt+k)}"]
    f = F[13]
    for k in range(5):
        f += [f"v_mul_f32 {v(A0+4*k)}, {v(A0+4*k)}, {v(A0+4*k+2)}", f"v_mul_f32 {v(A0+4*k+1)}, {v(A0+4*k+1)}, {v(A0+4*k+3)}"]
    for k in range(5): f.append(f"v_cvt_pk_bf16_f32 {v(A0+4*k+2)}, {v(A0+4*k)}, {v(A0+4*k+1)}")
    f = F[14]
    for k in range(5):
        f += [f"v_lshlrev_b32 {v(A0+4*k)}, 16, {v(A0+4*k+2)}", f"v_and_b32 {v(A0+4*k+1)}, 0xffff0000, {v(A0+4*k+2)}"]
    for k in range(5): f.append(f"v_add_f32 {v(A0+4*k)}, {v(A0+4*k)}, {v(A0+4*k+1)}")
    G = A0
    f += [f"v_add_f32 {v(A0)}, {v(A0)}, {v(A0+4)}", f"v_add_f32 {v(A0+8)}, {v(A0+8)}, {v(A0+12)}",
          f"v_add_f32 {v(A0)}, {v(A0)}, {v(A0+16)}", f"v_add_f32 {v(A0)}, {v(A0)}, {v(A0+8)}"]
    f = F[15]
    for sh in (1, 2, 4, 8): f += [f"v_add_f32_dpp {v(G)}, {v(G)}, {v(G)} row_shr:{sh} row_mask:0xf bank_mask:0xf", None]
    f += [f"v_add_f32_dpp {v(G)}, {v(G)}, {v(G)} row_bcast:15 row_mask:0xa bank_mask:0xf", None,
          f"v_add_f32_dpp {v(G)}, {v(G)}, {v(G)} row_bcast:31 row_mask:0xc bank_mask:0xf",
          f"s_mov_b32 s62, {f32(LOG2E)}", f"s_mov_b32 s63, {f32(LOG2E)}",
          f"v_cvt_pk_bf16_f32 {v(G)}, {v(G)}, {v(G)}", f"v_lshlrev_b32 {v(G)}, 16, {v(G)}",
          f"v_mul_f32 {v(G)}, s62, {v(G)}", f"v_exp_f32 {v(G)}, -{v(G)}", None, f"v_add_f32 {v(G)}, 1.0, {v(G)}",
          f"v_rcp_f32 {v(G)}, {v(G)}", None, f"v_cvt_pk_bf16_f32 {v(G)}, {v(G)}, {v(G)}"]
    f = F[16]
    f += [f"v_lshlrev_b32 {v(G)}, 16, {v(G)}", f"v_sub_f32 {v(G+1)}, 1.0, {v(G)}",
          f"v_cvt_pk_bf16_f32 {v(G+1)}, {v(G+1)}, {v(G+1)}", f"v_lshlrev_b32 {v(G+1)}, 16, {v(G+1)}",
          f"s_lshl_b32 s92, {s(sGR)}, 3", f"s_add_u32 s92, s92, {WS_G}", f"v_mov_b32 {v(vT0)}, 0",
          ["s_mov_b32 exec_lo, 0", "s_mov_b32 exec_hi, 0x80000000",
           f"buffer_store_dwordx2 {v(G,2)}, {v(vT0)}, {s(SWS,4)}, s92 offen {SC}", "s_mov_b32 exec_lo, -1", "s_mov_b32 exec_hi, -1"]]
    vIM = 4
    f += [f"s_lshl_b32 s34, {s(sMH)}, 6", f"v_add_u32 v3, s34, {v(vM)}", f"s_lshl_b32 s34, {s(sNG)}, 2"]
    f = F[17]
    sPD = 58
    for jj in range(4):
        f += [[f"s_add_u32 s35, {s(sNG)}, {4*jj}", "s_cmp_ge_u32 s35, 5", f"s_cselect_b32 {s(sPD+jj)}, {s(sBR)}, 0",
               f"s_cmp_eq_u32 {s(sPD+jj)}, 1", "s_cselect_b32 s36, 0x1800, 0x1400" if False else "s_cselect_b32 s36, 6, 5",
               "s_cselect_b32 s37, 48, 40", f"s_cselect_b32 s39, {IMG - 4096}, {IMG}" if False else "s_cselect_b32 s39, 44, 48",
               "s_lshl_b32 s36, s36, 10", "s_lshl_b32 s39, s39, 10"],
              f"s_add_u32 s35, s34, {16*jj}", f"v_add_u32 v8, s35, {v(vG)}", "v_mul_u32_u24 v9, 52, v8", "v_lshrrev_b32 v9, 8, v9",
              "v_mul_u32_u24 v1, 5, v9", "v_sub_u32 v1, v8, v1", "v_lshlrev_b32 v1, 3, v1", "v_mad_u32_u24 v1, v3, s37, v1",
              "v_mad_u32_u24 v1, v9, s36, v1", f"v_add_u32 {v(vIM+jj)}, s39, v1"]
    f = F[18]
    f += ["v_lshrrev_b32 v8, 7, v0", "v_and_b32 v9, 127, v0", "v_mul_u32_u24 v9, 48, v9", "s_movk_i32 s36, 6144", "v_mad_u32_u24 v8, v8, s36, v9",
          f"v_mov_b32 {v(vT0)}, 0x3f80", f"v_mov_b32 {v(vT1)}, 0", f"v_mov_b32 {v(vW0)}, 0", f"v_mov_b32 {v(vW1)}, 0",
          f"v_add_u32 v8, {IMG + 20480}, v8",
          [f"s_cmp_eq_u32 {s(sBR)}, 0", ('br', "s_cbranch_scc1 K1_nopad"),
           ('raw', f"ds_write_b64 v8, {v(vW0,2)} offset:40"), ('raw', f"ds_write_b64 v8, {v(vT0,2)} offset:{40+24576}"), ('label', 'K1_nopad')],
          f"s_mov_b32 s38, {f32(EPS)}", f"s_mov_b32 s64, {f32(QSCALE)}", f"s_mov_b32 s65, {f32(QSCALE)}",
          f"s_mul_i32 s93, {s(sWV)}, 640", f"v_add_u32 v30, s93, {v(vL16)}", f"v_add_u32 v31, {IMG}, v30",
          f"s_mul_i32 s93, {s(sHG)}, {4*81920}", f"s_mul_i32 s35, {s(sRT)}, 5120", "s_add_u32 s93, s93, s35",
          f"s_mul_i32 s35, {s(sBR)}, {3*0x300000}", "s_add_u32 s93, s93, s35"]
    def block(ks, L, steps, fill, order=(0,1,2,3), after=None):
        n = 0
        fill = list(fill)
        per = 2
        for jj in order:
            for i in range(4):
                mm(ks, jj, i)
                n += 1
                did = 0
                if L: p(L.pop(0)); did += 1
                if n % 2 == 0 and n >= 4 and steps: emit(steps.pop(0)); did += 1
                k = per - did if (L or steps) else per + 1
                left = 16 - n
                while fill and (k > 0 or len(fill) > left * (per + 1)):
                    t = fill.pop(0)
                    if t is None: break
                    emit(t); k -= 1
            if after: after(jj)
        for t in fill:
            if t is not None: emit(t)
        assert not L and not steps
    T = 160
    def epi(jj):
        A = ACC + jj*16
        if jj in (1, 2):
            p(f"s_cmp_eq_u32 {s(sFLG+jj)}, 0")
            p(f"s_cbranch_scc1 K1_nophi{jj}{sfx[0]}")
            for k in range(8): p(f"v_pk_mul_f32 {v(T+2*k,2)}, {v(A+2*k,2)}, s[62:63]")
            for k in range(16): p(f"v_exp_f32 {v(T+k)}, {v(T+k)} clamp")
            for k in range(16): p(f"v_max_f32 {v(A+k)}, s38, {v(A+k)}")
            for k in range(8): p(f"v_pk_add_f32 {v(A+2*k,2)}, {v(A+2*k,2)}, {v(T+2*k,2)}")
            p.label(f"K1_nophi{jj}{sfx[0]}")
        if jj in (0, 1) or ACON:
            p(f"s_cmp_eq_u32 {s(sSCL+jj)}, 0")
            p(f"s_cbranch_scc1 K1_noscl{jj}{sfx[0]}")
            for k in range(8): p(f"v_pk_mul_f32 {v(A+2*k,2)}, {v(A+2*k,2)}, s[64:65]")
            p.label(f"K1_noscl{jj}{sfx[0]}")
        P = 96 + jj*8
        for k in range(8): p(f"v_cvt_pk_bf16_f32 {v(P+k)}, {v(A+2*k)}, {v(A+2*k+1)}")
        if jj == 0:
            for i in range(4): p(f"ds_write_b64 {v(vIM+jj)}, {v(P+2*i,2)} offset:{i*640}")
        else:
            p(f"s_cmp_eq_u32 {s(sPD+jj)}, 0")
            p(f"s_cbranch_scc1 K1_dn{jj}{sfx[0]}")
            for i in range(4): p(f"ds_write_b64 {v(vIM+jj)}, {v(P+2*i,2)} offset:{i*768}")
            p(f"s_branch K1_wr{jj}{sfx[0]}")
            p.label(f"K1_dn{jj}{sfx[0]}")
            for i in range(4): p.raw(f"    ds_write_b64 {v(vIM+jj)}, {v(P+2*i,2)} offset:{i*640}")
            p.label(f"K1_wr{jj}{sfx[0]}")
    if os.environ.get('EARLY', '0') == '1':
        for kf in (1, 2, 3, 6):
            for t in F[kf]:
                if t is not None: emit(t)
            F[kf] = []
        for a_, b_ in ((12, 6), (13, 7), (14, 8), (15, 9), (16, 10)):
            if a_ == 16:
                k_ = [i for i, t in enumerate(F[16]) if isinstance(t, str) and t.startswith(f"s_lshl_b32 s34, {s(sMH)}")][0]
                F[b_] = F[b_] + F[16][:k_]; F[16] = F[16][k_:]
            else:
                F[b_] = F[b_] + F[a_]; F[a_] = []
    UP3 = os.environ.get('UP3', '0') == '1'
    if UP3: issue(2)
    p.wait_vm_tag(tags[0])
    p("s_barrier")
    stamp(p, 3)
    stampc(p, 30)
    if UP1: issue(1)
    for t in readlist(0, 0): p(t)
    LAST = (1, 2, 0, 3)
    STAG = os.environ.get('STAG', '0') == '1'
    def loop(late):
        sfx[0] = 'L' if late else 'E'
        if not late and not UP3: issue(2)
        for st in range(10):
            block(0, readlist(st, 1, LAST if st == 9 else (0,1,2,3)), issue_steps(st+2) if (late and st+2 <= 9) else [], F[2*st])
            if st < 9:
                p.wait_vm_tag(tags[st+1], " lgkmcnt(0)")
                p("s_barrier")
                if STAMP > 1: stamp(p, 9 + st)
                block(1, readlist(st+1, 0), issue_steps(st+3) if (not late and st+3 <= 9) else [], F[2*st+1])
            else:
                def after(jj):
                    k = LAST.index(jj)
                    if k >= 1: epi(LAST[k-1])
                block(1, [], [], F[19], LAST, after)
                stamp(p, 4)
                stampc(p, 31)
                epi(LAST[3])
    if STAG:
        p(f"s_cmp_lt_u32 {s(sWV)}, 4")
        p("s_cbranch_scc0 K1_loopL")
        save = (list(p.lg), list(p.vm), p.vmcount, dict(tags))
        loop(False)
        p("s_branch K1_loopdone")
        p.label("K1_loopL")
        p.lg, p.vm, p.vmcount = list(save[0]), list(save[1]), save[2]
        tags.clear(); tags.update(save[3])
        loop(True)
        p.label("K1_loopdone")
    else:
        loop(False)
    p("s_waitcnt lgkmcnt(0)")
    p("s_barrier")
    stamp(p, 5)
    DEFER = fused and os.environ.get('DEFER', '0') == '1'
    p("s_mov_b32 exec_hi, 0xff")
    D = 32
    DR = lambda b: (192 + 4*b) if (DEFER and b < 4) else D + 4*b
    def rdblk(b):
        p(f"ds_read_b128 {v(DR(b),4)}, v31 offset:{b*5120}")
    def stblkA(b):
        p(f"s_add_u32 s36, s91, {b}")
        p("s_lshr_b32 s37, s36, 5")
        p("s_mul_i32 s37, s37, 0x80000")
        p("s_mul_i32 s36, s36, 81920")
        p("s_add_u32 s35, s36, s37")
        p("s_add_u32 s35, s35, s90")
        p(f"buffer_store_dwordx4 {v(DR(b),4)}, v30, {s(SWS,4)}, s35 offen {SC}")
    def stblk(b):
        off = (b//4)*0x300000 + (b%4)*81920
        p(f"s_add_u32 s35, s93, {off}")
        p(f"buffer_store_dwordx4 {v(DR(b),4)}, v30, {s(SWS,4)}, s35 offen {SC}")
    for b in range(4): rdblk(b)
    p(f"s_cmp_eq_u32 {s(sBR)}, 0")
    p("s_cbranch_scc0 K1_bpath")
    p.begin_cond()
    for b in range(4,12): rdblk(b)
    if ACON:
        p(f"s_mul_i32 s91, {s(sHG)}, 12")
        p(f"s_mul_i32 s90, {s(sRT)}, 5120")
    for b in range(12): (stblkA if ACON else stblk)(b)
    if fused:
        p("s_mov_b32 exec_hi, -1")
        p("s_mov_b32 s93, 0x40000000")
        p("s_mov_b32 s92, 0x40000000")
        p("s_branch P1_end")
    else:
        stamp(p, 6)
        if STAMP: p("s_waitcnt vmcnt(0)")
        stamp(p, 7)
        stamp_flush(p, 0, SWS, 8, sWV)
        p("s_endpgm")
    p.end_cond()
    p.label("K1_bpath")
    p("s_waitcnt lgkmcnt(0)")
    if not DEFER:
        for b in range(4): stblk(b)
    p("s_mov_b32 exec_hi, -1")
    p("s_mov_b32 s92, 0x40000000")
    p(f"s_cmp_gt_u32 {s(sWV)}, 3")
    p("s_cbranch_scc1 P1_end" if fused else "s_cbranch_scc1 K1_end")
    p("v_lshrrev_b32 v7, 5, v2")
    p("v_bfe_u32 v6, v2, 2, 2")
    p("v_lshl_add_u32 v5, v7, 3, v6")
    p("v_mul_u32_u24 v5, 48, v5")
    p("v_bfe_u32 v6, v2, 4, 1")
    p("v_lshl_add_u32 v5, v6, 5, v5")
    p("v_and_b32 v6, 3, v2")
    p("v_lshl_add_u32 v5, v6, 3, v5")
    p(f"s_mul_i32 s35, {s(sWV)}, 6144")
    p(f"s_add_u32 s35, s35, {IMG + 20480}")
    p("v_add_u32 v5, s35, v5")
    KV = 176 if DEFER else 96
    Fr = 112
    for t in range(8):
        for h in range(2): p(f"ds_read_b64_tr_b16 {v(Fr+8*t+2*h,2)}, v5 offset:{t*768+h*192}")
        for h in range(2): p(f"ds_read_b64_tr_b16 {v(Fr+8*t+4+2*h,2)}, v5 offset:{24576+t*768+h*192}")
        if t >= 2:
            tt = t-2
            p(f"v_mfma_f32_32x32x16_bf16 {v(KV,16)}, {v(Fr+8*tt,4)}, {v(Fr+8*tt+4,4)}, {'0' if tt==0 else v(KV,16)}")
    for tt in (6,7):
        p(f"v_mfma_f32_32x32x16_bf16 {v(KV,16)}, {v(Fr+8*tt,4)}, {v(Fr+8*tt+4,4)}, {v(KV,16)}")
    p(f"s_lshl_b32 s34, {s(sHG)}, 2")
    p(f"s_add_u32 s34, s34, {s(sWV)}")
    p("s_lshl_b32 s34, s34, 4")
    p(f"s_add_u32 s34, s34, {s(sRT)}")
    p(f"s_mul_i32 s34, s34, {KVP_STRIDE}")
    p(f"s_add_u32 s34, s34, {WS_KVP}")
    if DEFER:
        p("s_mov_b32 s92, s34")
    else:
        p("v_and_b32 v3, 31, v2")
        p("v_lshlrev_b32 v3, 4, v3")
        p("v_mul_u32_u24 v7, 384, v7")
        p("v_add_u32 v3, v3, v7")
        p("s_mov_b32 exec_lo, 0xffffff")
        p("s_mov_b32 exec_hi, 0xffffff")
        for q in range(3):
            p(f"buffer_store_dwordx4 {v(KV+4*q,4)}, v3, {s(SWS,4)}, s34 offen offset:{q*768} {SC}")
    if fused:
        p("s_mov_b32 exec_lo, -1")
        p("s_mov_b32 exec_hi, -1")
        p.label("P1_end")
        p.forget()
        stamp(p, 6)
        return
    stamp(p, 6)
    if STAMP: p("s_waitcnt vmcnt(0)")
    stamp(p, 7)
    stamp_flush(p, 0, SWS, 8, sWV)
    p.label("K1_end")
    p("s_endpgm")
```

```python
import os
from asmlib import *
from gen import *
from gen1 import emit_p1
from gen23 import emit_p2, WS_FLG, LDS_RED
from gen3 import *

def gen_fused(name):
    p = Prog()
    header(p, name)
    p.stv = 231
    SWS, sWV, sNON = 20, 33, 94
    SPIN = 200000
    BWORD = 161792
    PW = os.environ.get('PW', '0') == '1'
    DEFER = os.environ.get('DEFER', '0') == '1'
    BLATE = os.environ.get('BLATE', '0') == '1'
    NWL = int(os.environ.get('NWL', '11')); LDSW = 70656
    def wdma():
        out = []
        for f in range(NWL):
            ks, j = divmod(f, 5)
            out.append([f"s_add_u32 m0, s29, {f*1024 - ks*1024}", "s_nop 0",
                        f"buffer_load_dwordx4 v248, {s(SWS,4)}, {s(24+j)} offen offset:{ks*1024} sc1 lds"])
        return out
    cnt = [0]
    def poll(voffs, sbase, lo, hi=0, setexec=True):
        cnt[0] += 1
        L = f"POLL{cnt[0]}"
        if setexec:
            p(f"s_mov_b32 exec_lo, {lo}")
            p(f"s_mov_b32 exec_hi, {hi}")
        p(f"s_mov_b32 s95, {SPIN}")
        if len(voffs) == 1 and os.environ.get('PPOLL', '0') == '1':
            ld = lambda r: p.raw(f"    buffer_load_dword {v(r)}, {v(voffs[0])}, {s(SWS,4)}, {sbase} offen sc1")
            ld(232)
            p("s_sleep 9")
            p.label(L)
            for (rn, rc) in ((233, 232), (232, 233)):
                ld(rn)
                p.raw("    s_waitcnt vmcnt(1)")
                p(f"v_cmp_ne_u32 vcc, {s(sNON)}, {v(rc)}")
                p("s_sub_u32 s95, s95, 1")
                p("s_cmp_eq_u32 s95, 0")
                p(f"s_cbranch_scc1 {L}_out")
                p("s_nop 2")
                p(f"s_cbranch_vccz {L}_out")
            p(f"s_branch {L}")
        else:
            p.label(L)
            for k, vo in enumerate(voffs):
                p.raw(f"    buffer_load_dword {v(232+k)}, {v(vo)}, {s(SWS,4)}, {sbase} offen sc1")
            p.raw("    s_waitcnt vmcnt(0)")
            p(f"v_xor_b32 v232, {s(sNON)}, v232")
            for k in range(1, len(voffs)):
                p(f"v_xor_b32 {v(232+k)}, {s(sNON)}, {v(232+k)}")
                p(f"v_or_b32 v232, v232, {v(232+k)}")
            p("v_cmp_ne_u32 vcc, 0, v232")
            p("s_sub_u32 s95, s95, 1")
            p("s_cmp_eq_u32 s95, 0")
            p(f"s_cbranch_scc1 {L}_out")
            p("s_nop 2")
            p(f"s_cbranch_vccz {L}_out")
            p("s_sleep 1")
            p(f"s_branch {L}")
        p.label(f"{L}_out")
        p("s_mov_b32 exec_lo, -1")
        p("s_mov_b32 exec_hi, -1")
    def publish(which):
        pass
    emit_p1(p, True)
    def publish1():
        p(f"s_mov_b32 s70, {WS_FLG}")
        p("s_lshl_b32 s72, s2, 7")
        p("s_add_u32 s72, s72, s70")
        p("s_mov_b32 s75, s26")
        if DEFER:
            p("s_cmp_lg_u32 s75, 0")
            p("s_cbranch_scc1 S1_nodrain")
        p("s_waitcnt vmcnt(0)")
        p("s_barrier")
        p.label("S1_nodrain")
        stamp(p, 7)
        if not PW:
            p(f"s_cmp_lg_u32 {s(sWV)}, 0")
            p("s_cbranch_scc1 S1_pubdone")
        p(f"v_readfirstlane_b32 {s(sNON)}, v208")
        p(f"s_mov_b32 s95, {SPIN}")
        p.label("S1_tag")
        p(f"s_cmp_lg_u32 {s(sNON)}, 0")
        p("s_cbranch_scc1 S1_havetag")
        p("s_sub_u32 s95, s95, 1")
        p("s_cmp_eq_u32 s95, 0")
        p("s_cbranch_scc1 S1_havetag")
        p("s_sleep 1")
        p("v_mov_b32 v232, 0")
        p.raw("    global_load_dword v208, v232, s[96:97] sc1")
        p.raw("    s_waitcnt vmcnt(0)")
        p(f"v_readfirstlane_b32 {s(sNON)}, v208")
        p("s_branch S1_tag")
        p.label("S1_havetag")
        if PW:
            p(f"s_cmp_lg_u32 {s(sWV)}, 0")
            p("s_cbranch_scc1 S1_pubdone")
        p(f"v_mov_b32 v232, {s(sNON)}")
        p("v_mov_b32 v233, 0")
        p(f"v_mov_b32 v234, {BWORD}")
        p("s_mov_b32 exec_lo, 1")
        p("s_mov_b32 exec_hi, 0")
        p("s_cmp_lg_u32 s75, 0")
        p("s_cselect_b32 s76, 0x40000000, s72" if DEFER else "s_mov_b32 s76, s72")
        p.raw(f"    buffer_store_dword v232, v233, {s(SWS,4)}, s76 offen sc1")
        p.raw("    ds_write_b32 v234, v233")
        p("s_mov_b32 exec_lo, -1")
        p("s_mov_b32 exec_hi, -1")
        p.label("S1_pubdone")
    def sync1(sH, sR):
        if os.environ.get('ACON', '1') == '1':
            p(f"s_lshl_b32 s37, {s(sR)}, 1")
            p("s_sub_u32 s37, s37, 2")
            p("v_and_b32 v236, 3, v2")
            p("v_add_u32 v236, s37, v236")
            p("v_lshrrev_b32 v238, 2, v2")
            p("v_lshlrev_b32 v238, 5, v238")
            p(f"v_add_u32 v238, {s(sH)}, v238")
            p("v_mul_u32_u24 v238, 43, v238")
            p("v_lshrrev_b32 v238, 9, v238")
            p("v_and_b32 v237, 7, v236")
            p("v_lshlrev_b32 v237, 5, v237")
            p("v_bfe_u32 v236, v236, 3, 1")
            p("v_lshl_add_u32 v237, v236, 2, v237")
            p("v_and_b32 v236, 1, v238")
            p("v_lshl_add_u32 v237, v236, 3, v237")
            p("v_lshrrev_b32 v238, 1, v238")
            p("v_add_u32 v237, v237, v238")
            p("v_lshlrev_b32 v237, 7, v237")
            p(f"s_cmp_eq_u32 {s(sR)}, 0")
            p("s_cselect_b32 s71, 0xccc, 0xffc") if False else None
            p("s_movk_i32 s36, 0xccc")
            p("s_movk_i32 s37, 0xffc")
            p("s_cselect_b32 s71, s36, s37")
        else:
            p(f"s_lshr_b32 s36, {s(sH)}, 2")
            p(f"s_lshl_b32 s37, {s(sR)}, 1")
            p("s_sub_u32 s37, s37, 2")
            p("v_add_u32 v236, s37, v2")
            p("v_and_b32 v237, 7, v236")
            p("v_lshlrev_b32 v237, 5, v237")
            p("v_bfe_u32 v236, v236, 3, 1")
            p("v_lshl_add_u32 v237, v236, 2, v237")
            p("s_and_b32 s38, s36, 1")
            p("s_lshl_b32 s38, s38, 3")
            p("s_lshr_b32 s36, s36, 1")
            p("s_add_u32 s38, s38, s36")
            p("v_add_u32 v237, s38, v237")
            p("v_lshlrev_b32 v237, 7, v237")
            p(f"s_cmp_eq_u32 {s(sR)}, 0")
            p("s_cselect_b32 s71, 12, 15")
        p("v_and_b32 v31, 31, v2")
        p("v_lshlrev_b32 v31, 4, v31")
        p("v_lshrrev_b32 v236, 5, v2")
        p("v_mul_u32_u24 v236, 384, v236")
        p("v_add_u32 v31, v31, v236")
        p("v_lshlrev_b32 v238, 7, v2")
        p("v_add_u32 v239, 8192, v238")
        p("v_add_u32 v240, 16384, v238")
        p("v_add_u32 v241, 24576, v238")
        p("s_bfe_u32 s29, s2, 0x30003")
        p(f"s_mul_i32 s29, s29, {5*40960}")
        for j in range(5): p(f"s_add_u32 {s(24+j)}, s29, {WS_WF + j*40960}")
        p(f"s_lshr_b32 s29, {s(sWV)}, 2")
        p("s_lshl_b32 s29, s29, 12")
        p(f"s_lshl_b32 s30, {s(sWV)}, 12")
        p("s_add_u32 s29, s29, s30")
        p("v_lshlrev_b32 v248, 4, v2")
        p("v_add_u32 v248, s29, v248")
        p(f"s_mul_i32 s29, {s(sWV)}, {NWL*1024}")
        p(f"s_add_u32 s29, s29, {LDSW}")
        if PW:
            p(f"s_lshr_b32 s36, {s(sWV)}, 1")
            p("s_lshl_b32 s36, 0x110, s36")
            p("s_and_b32 s36, s36, s71")
            p(f"s_lshr_b32 s37, {s(sWV)}, 2")
            p("s_lshl_b32 s37, 4, s37")
            p("s_or_b32 s71, s36, s37")
            poll([237], "s70", "s71")
        else:
            p(f"s_cmp_lg_u32 {s(sWV)}, 0")
            p("s_cbranch_scc1 S1_skip")
            poll([237], "s70", "s71")
            p.raw("    s_waitcnt lgkmcnt(0)")
            p.label("S1_skip")
            p("s_barrier")
        stamp(p, 8)
    def deferred():
        if not DEFER: return
        p("s_mov_b32 exec_hi, 0xff")
        for b in range(4):
            p(f"s_add_u32 s36, s93, {b*81920}")
            p(f"buffer_store_dwordx4 {v(192+4*b,4)}, v30, {s(SWS,4)}, s36 offen sc1")
        p("s_mov_b32 exec_lo, 0xffffff")
        p("s_mov_b32 exec_hi, 0xffffff")
        for q in range(3):
            p(f"buffer_store_dwordx4 {v(176+4*q,4)}, v31, {s(SWS,4)}, s92 offen offset:{q*768} sc1")
        p("s_mov_b32 exec_lo, -1")
        p("s_mov_b32 exec_hi, -1")
    def pub_late():
        p(f"s_cmp_lg_u32 {s(sWV)}, 0")
        p("s_cbranch_scc1 SM_nopub")
        p("s_cmp_eq_u32 s75, 0")
        p(f"s_cselect_b32 s76, 0x40000000, s72" if DEFER else "s_mov_b32 s76, 0x40000000")
        p(f"v_mov_b32 v232, {s(sNON)}")
        p("v_mov_b32 v233, 0")
        p("s_mov_b32 exec_lo, 1")
        p("s_mov_b32 exec_hi, 0")
        p.raw(f"    buffer_store_dword v232, v233, {s(SWS,4)}, s76 offen sc1")
        p("s_mov_b32 exec_lo, -1")
        p("s_mov_b32 exec_hi, -1")
        p.label("SM_nopub")
    def pre_all():
        p(f"s_cmp_lg_u32 {s(sWV)}, 0")
        p("s_cbranch_scc1 SM_skip")
        for k in range(4): p.raw(f"    buffer_load_dword {v(242+k)}, {v(238+k)}, {s(SWS,4)}, s70 offen sc1")
        p.label("SM_skip")
    def gateB():
        p(f"s_cmp_lg_u32 {s(sWV)}, 0")
        p("s_cbranch_scc1 SA_done")
        p.raw("    s_waitcnt vmcnt(0)")
        for k in range(4): p(f"v_xor_b32 {v(242+k)}, {s(sNON)}, {v(242+k)}")
        p("v_or3_b32 v242, v242, v243, v244")
        p("v_or_b32 v242, v242, v245")
        p("v_cmp_ne_u32 vcc, 0, v242")
        p("s_nop 4")
        p("s_cbranch_vccz SA_skip")
        poll([238, 239, 240, 241], "s70", "-1", "-1", setexec=False)
        p.label("SA_skip")
        p(f"v_mov_b32 v232, {BWORD}")
        p("v_mov_b32 v233, 1")
        p.raw("    ds_write_b32 v232, v233")
        p.raw("    s_waitcnt lgkmcnt(0)")
        p.label("SA_done")
    def waitB():
        p(f"v_mov_b32 v232, {BWORD}")
        p(f"s_mov_b32 s95, {SPIN*8}")
        p("s_waitcnt lgkmcnt(0)")
        p.label("WB_loop")
        p.raw("    ds_read_b32 v233, v232")
        p.raw("    s_waitcnt lgkmcnt(0)")
        p("v_readfirstlane_b32 s73, v233")
        p("s_sub_u32 s95, s95, 1")
        p("s_cmp_eq_u32 s95, 0")
        p("s_cbranch_scc1 WB_out")
        p("s_cmp_eq_u32 s73, 0")
        p("s_cbranch_scc0 WB_out")
        p("s_sleep 1")
        p("s_branch WB_loop")
        p.label("WB_out")
    PUBFIRST = os.environ.get('PUBFIRST', '1') == '1'
    if PUBFIRST: publish1()
    def sync1w(sH, sR):
        if not PUBFIRST: publish1()
        sync1(sH, sR)
    emit_p2(p, dict(sync1=sync1w, pre_all=pre_all, pub_late=pub_late, gateB=gateB, waitB=waitB, wdma=wdma, deferred=deferred, defer=DEFER))
    S = dict(RT=17, CT=18, A=40, B=44, t0=36, t1=37, T0=38, OB=39, TL=19)
    p("s_mov_b32 s30, s29")
    p("s_load_dwordx2 s[4:5], s[0:1], 56")
    p3_setup(p, sWV, S)
    p("s_and_b32 s50, s2, 3")
    p("s_lshl_b32 s50, s50, 6")
    p("s_bfe_u32 s51, s2, 0x10002")
    p("s_lshl_b32 s51, s51, 2")
    p("s_add_u32 s50, s50, s51")
    p("v_and_b32 v1, 7, v2")
    p("v_lshlrev_b32 v1, 3, v1")
    p("v_bfe_u32 v3, v2, 3, 2")
    p("v_add3_u32 v1, v1, v3, s50")
    p("v_lshlrev_b32 v237, 7, v1")
    p(f"s_add_u32 s70, s70, 32768")
    p("s_lshl_b32 s72, s2, 7")
    p("s_add_u32 s72, s72, s70")
    p(f"v_mov_b32 v232, {s(sNON)}")
    p("v_mov_b32 v233, 0")
    p("s_waitcnt lgkmcnt(0)")
    srd(p, 12, 4, 2048*1280)
    if PW:
        p("s_waitcnt vmcnt(4)")
        p(f"v_add_u32 v1, s30, {v(P3_V+4)}")
        for f in range(NWL): p(f"ds_read_b128 {v(P3_W+4*f,4)}, v1 offset:{f*1024}")
        p(f"s_and_b32 s50, {s(sWV)}, 3")
        p("s_lshl_b32 s50, s50, 3")
        p("s_lshl_b32 s50, 0xff, s50")
        p("s_waitcnt vmcnt(0) lgkmcnt(0)")
        p("s_barrier")
        stamp(p, 18)
        p(f"s_cmp_lg_u32 {s(sWV)}, 0")
        p("s_cbranch_scc1 S2_a")
        p("s_mov_b32 exec_lo, 1")
        p("s_mov_b32 exec_hi, 0")
        p.raw(f"    buffer_store_dword v232, v233, {s(SWS,4)}, s72 offen sc1")
        p("s_mov_b32 exec_lo, -1")
        p("s_mov_b32 exec_hi, -1")
        p.label("S2_a")
        for f in range(NWL, 25):
            ks, j = divmod(f, 5)
            p(f"buffer_load_dwordx4 {v(P3_W+4*f,4)}, {v(P3_V + ks//4)}, {s(SWS,4)}, {s(S['B']+j)} offen offset:{(ks%4)*1024} sc1")
        poll([237], "s70", "s50", "0")
    else:
        p("s_waitcnt vmcnt(0)")
        p("s_barrier")
        stamp(p, 18)
        p(f"s_cmp_lg_u32 {s(sWV)}, 0")
        p("s_cbranch_scc1 S2_a")
        p("s_mov_b32 exec_lo, 1")
        p("s_mov_b32 exec_hi, 0")
        p.raw(f"    buffer_store_dword v232, v233, {s(SWS,4)}, s72 offen sc1")
        p("s_mov_b32 exec_lo, -1")
        p("s_mov_b32 exec_hi, -1")
        p.label("S2_a")
        if NWL:
            p(f"v_add_u32 v1, s30, {v(P3_V+4)}")
            for f in range(NWL): p(f"ds_read_b128 {v(P3_W+4*f,4)}, v1 offset:{f*1024}")
        for f in range(NWL, 25):
            ks, j = divmod(f, 5)
            p(f"buffer_load_dwordx4 {v(P3_W+4*f,4)}, {v(P3_V + ks//4)}, {s(SWS,4)}, {s(S['B']+j)} offen offset:{(ks%4)*1024} sc1")
        p("s_waitcnt lgkmcnt(0)")
        p(f"s_cmp_lg_u32 {s(sWV)}, 0")
        p("s_cbranch_scc1 S2_skip")
        poll([237], "s70", "-1", "0")
        p.label("S2_skip")
        p("s_barrier")
    stamp(p, 19)
    if STAMP and os.environ.get('DBGOUT'):
        sel = (0, 1, 3, 4, 5, 6, 7, 8, 10, 12, 17, 18, 19)
        for i, ln in enumerate(sel):
            p(f"v_readlane_b32 {s(76+i)}, {v(p.stv)}, {ln}")
    if STAMP:
        stamp_flush(p, 0, SWS, 8, sWV)
        p("s_mov_b32 exec_lo, -1"); p("s_mov_b32 exec_hi, -1")
        p.stv = 3
    p3_main(p, sWV, SWS, 12, S, 'sc1')
    stamp(p, 6)
    if STAMP: p("s_waitcnt vmcnt(0)")
    stamp(p, 7)
    if STAMP and os.environ.get('DBGOUT'):
        p(f"s_sub_u32 s34, s2, {int(os.environ['DBGOUT'])}")
        p(f"s_or_b32 s34, s34, {s(sWV)}")
        p("s_cmp_lg_u32 s34, 0")
        p("s_cbranch_scc1 DBG_skip")
        p(f"v_readlane_b32 s89, {v(p.stv)}, 24")
        p(f"v_readlane_b32 s90, {v(p.stv)}, 7")
        for i in range(1, 15):
            p(f"s_sub_u32 s34, {s(76+i)}, s76")
            p(f"v_writelane_b32 v20, s34, {i}")
        p("v_mbcnt_lo_u32_b32 v21, -1, 0")
        p("v_lshlrev_b32 v21, 2, v21")
        p("s_mov_b32 exec_lo, 0x7ffe")
        p("s_mov_b32 exec_hi, 0")
        p("global_store_dword v21, v20, s[96:97]")
        p("s_mov_b32 exec_lo, -1")
        p("s_mov_b32 exec_hi, -1")
        p.label("DBG_skip")
    stamp_flush(p, 2, SWS, 8, sWV)
    p.label("K1_end")
    p("s_endpgm")
    p.pad()
    return p.text(), dict(name=name, vgpr=256, sgpr=100, grid=256, block=512, lds=163840)
```
